```python
import torch

def _softmax(x, axis=-1):
    return torch.softmax(x, dim=axis)
def _gelu(x):
    return torch.nn.functional.gelu(x, approximate="tanh")
def _silu(x):
    return torch.nn.functional.silu(x)
def _sigmoid(x):
    return torch.sigmoid(x)
def _layernorm(x, axis=-1, eps=1e-5):
    m = x.mean(dim=axis, keepdim=True)
    v = x.var(dim=axis, keepdim=True, unbiased=False)
    return (x - m) / torch.sqrt(v + eps)
def _scatter_add(tgt, idx, src, axis=0):
    return tgt.clone().index_add_(axis, idx, src)
def _segment_sum(src, seg, n):
    out = torch.zeros((n,) + src.shape[1:], dtype=src.dtype)
    return out.index_add_(0, seg, src)
def _pad(x, pw):
    flat = tuple(v for pair in reversed(pw) for v in pair)
    return torch.nn.functional.pad(x, flat)

kernel_name = 'gated_mix__ssm_conv_s4__softmax_full_mha__prompt'

def setup_inputs():

    _w = (lambda a: (lambda t: t.to(torch.bfloat16) if t.is_floating_point() else t)(torch.as_tensor(a)))
    def _A_setup():
        B, L, D, N = 1, 2048, 512, 128
        A_re = -(lambda _x: torch.exp(torch.as_tensor(_x)))((lambda *s: torch.randn(*s, dtype=torch.bfloat16) * 6.4)(D, N))
        A_im = torch.pi * (lambda *s: torch.randn(*s, dtype=torch.bfloat16) * 0.1)(D, N)
        B_re = (lambda *s: torch.randn(*s, dtype=torch.bfloat16) * 0.2)(D, N)
        B_im = (lambda *s: torch.randn(*s, dtype=torch.bfloat16) * 0.2)(D, N)
        C_re = (lambda *s: torch.randn(*s, dtype=torch.bfloat16) * 0.2)(D, N)
        C_im = (lambda *s: torch.randn(*s, dtype=torch.bfloat16) * 0.2)(D, N)
        log_dt = (lambda *s: torch.randn(*s, dtype=torch.bfloat16) * 0.1)(D) * 0.5 - 4.0
        Dskip = (lambda *s: torch.randn(*s, dtype=torch.bfloat16) * 0.1)(D)
        return {
            "u": _w((lambda *s: torch.randn(*s, dtype=torch.bfloat16) * 0.05)(B, L, D)),
            "A_re": _w(A_re),
            "A_im": _w(A_im),
            "B_re": _w(B_re),
            "B_im": _w(B_im),
            "C_re": _w(C_re),
            "C_im": _w(C_im),
            "log_dt": _w(log_dt),
            "Dskip": _w(Dskip),
        }
    _A_in = _A_setup()

    def _B_setup():
        B, S, D = 1, 2048, 512
        return {
            "x": _w((lambda *s: torch.randn(*s, dtype=torch.bfloat16) * 0.05)(B, S, D)),
            "wqkv": _w((lambda *s: torch.randn(*s, dtype=torch.bfloat16) * 0.8)(D, 3 * D)),
            "wo": _w((lambda *s: torch.randn(*s, dtype=torch.bfloat16) * 0.05)(D, D)),
        }
    _B_in = _B_setup()

    return {
        "A_u": _A_in["u"],
        "A_A_re": _A_in["A_re"],
        "A_A_im": _A_in["A_im"],
        "A_B_re": _A_in["B_re"],
        "A_B_im": _A_in["B_im"],
        "A_C_re": _A_in["C_re"],
        "A_C_im": _A_in["C_im"],
        "A_log_dt": _A_in["log_dt"],
        "A_Dskip": _A_in["Dskip"],
        "B_x": _B_in["x"],
        "B_wqkv": _B_in["wqkv"],
        "B_wo": _B_in["wo"],
        "gate_w": _w((lambda *s: torch.randn(*s, dtype=torch.bfloat16) * 0.05)(512) * 16.0),
    }

def reference(A_u, A_A_re, A_A_im, A_B_re, A_B_im, A_C_re, A_C_im, A_log_dt, A_Dskip, B_x, B_wqkv, B_wo, gate_w):
    def _A_ref(u, A_re, A_im, B_re, B_im, C_re, C_im, log_dt, Dskip):
        Bsz, L, D = u.shape
        dt = torch.exp(log_dt)[:, None]
        A = A_re + 1j * A_im
        Bc = B_re + 1j * B_im
        Cc = C_re + 1j * C_im
        logdA = dt * A
        dB = dt * Bc
        l = (lambda x, dt: x.to(dt))(torch.arange(L), A_re.dtype)
        P = torch.exp(logdA[:, :, None] * l[None, None, :])
        K = torch.einsum("dn,dnl,dn->dl", Cc, P, dB).real
        L2 = 2 * L
        Kp = _pad(K, ((0, 0), (0, L)))
        up = (lambda x, *d: x.permute(*d))(u, 0, 2, 1)
        up = _pad(up, ((0, 0), (0, 0), (0, L)))
        Kf = (lambda x, axes=(-2,-1): torch.fft.rfft2(x.float(), dim=axes))(Kp[:, None, :], axes=(-2, -1))
        Uf = (lambda x, axes=(-2,-1): torch.fft.rfft2(x.float(), dim=axes))(up[:, :, None, :], axes=(-2, -1))
        Yf = Uf * Kf[None, :, :, :]
        y = (lambda x, s, axes=(-2,-1): torch.fft.irfft2(x, s=s, dim=axes).to(torch.bfloat16))(Yf, (1, L2), axes=(-2, -1))[:, :, 0, :L]
        y = (lambda x, *d: x.permute(*d))(y, 0, 2, 1) + u * Dskip[None, None, :]
        return y

    def _B_ref(x, wqkv, wo):
        B, S, D = x.shape
        H = 32; Dh = D // H
        qkv = (lambda x, *d: x.permute(*d))((x @ wqkv).reshape(B, S, 3, H, Dh), 2, 0, 3, 1, 4)
        q, k, v = qkv[0], qkv[1], qkv[2]
        scale = Dh ** -0.5
        scores = torch.einsum("bhqd,bhkd->bhqk", q, k) * scale
        p = _softmax(scores, axis=-1)
        o = torch.einsum("bhqk,bhkd->bhqd", p, v)
        return (lambda x, *d: x.permute(*d))(o, 0, 2, 1, 3).reshape(B, S, D) @ wo

    x = A_u
    g = _sigmoid((x * gate_w).sum(-1, keepdims=True))
    a = _A_ref(x, A_A_re, A_A_im, A_B_re, A_B_im, A_C_re, A_C_im, A_log_dt, A_Dskip)
    b = _B_ref(x, B_wqkv, B_wo)
    return g * a + (1 - g) * b
```

```python
NAME = "gated_mix__ssm_conv_s4__softmax_full_mha__prompt"

WS_QKV = 0
WS_Q = 0
WS_K = 2 << 20
WS_V = 4 << 20
WS_UT = 6 << 20
WS_KX = 8 << 20
WS_O = 10 << 20
WS_YA = 12 << 20
WS_G = 14 << 20
WS_SIZE = 16 << 20

KA = dict(u=0, Are=8, Aim=16, Bre=24, Bim=32, Cre=40, Cim=48, logdt=56, Dskip=64, x=72, wqkv=80, wo=88, gw=96, out=104, dbg=112, ws=120)

class Asm:
    def __init__(self):
        self.l = []
    def __call__(self, s):
        for t in s.split("\n"):
            t = t.strip()
            if t: self.l.append(t if t.endswith(":") or t.startswith(".") else "  " + t)
    def text(self):
        return "\n".join(self.l) + "\n"

def vr(a, n):
    return f"v[{a}:{a+n-1}]" if n > 1 else f"v{a}"
def sr(a, n):
    return f"s[{a}:{a+n-1}]" if n > 1 else f"s{a}"

def srd(A, d, base, nbytes):
    A(f"s_mov_b32 s{d}, s{base}")
    A(f"s_mov_b32 s{d+1}, s{base+1}")
    A(f"s_mov_b32 s{d+2}, {hex(nbytes)}")
    A(f"s_mov_b32 s{d+3}, 0x20000")

def kernel_head(A, name):
    A(f".globl {name}")
    A(".p2align 8")
    A(f".type {name},@function")
    A(f"{name}:")

def kernel_desc(A, name, vgpr, sgpr=96):
    acc = (vgpr + 3) // 4 * 4
    A(".p2align 6")
    A(f".amdhsa_kernel {name}")
    for t in (f".amdhsa_next_free_vgpr {vgpr}", f".amdhsa_next_free_sgpr {sgpr}", f".amdhsa_accum_offset {acc}",
              ".amdhsa_group_segment_fixed_size 0", ".amdhsa_kernarg_size 128", ".amdhsa_user_sgpr_count 2",
              ".amdhsa_user_sgpr_kernarg_segment_ptr 1", ".amdhsa_system_sgpr_workgroup_id_x 1",
              ".amdhsa_float_denorm_mode_32 3"):
        A.l.append("  " + t)
    A(".end_amdhsa_kernel")

def mfma32(D, Aop, Bop, C=None):
    c = vr(D, 16) if C is None else (C if isinstance(C, str) else vr(C, 16))
    return f"v_mfma_f32_32x32x16_bf16 {vr(D,16)}, {vr(Aop,4)}, {vr(Bop,4)}, {c}"

def swap23(A, dst, src, t0, t1):
    A(f"v_and_b32 v{dst}, 0x13, v{src}")
    A(f"v_and_b32 v{t0}, 4, v{src}")
    A(f"v_and_b32 v{t1}, 8, v{src}")
    A(f"v_lshl_or_b32 v{dst}, v{t0}, 1, v{dst}")
    A(f"v_lshrrev_b32 v{t1}, 1, v{t1}")
    A(f"v_or_b32 v{dst}, v{dst}, v{t1}")
```

```python
import re, sys

TRANS = ("v_exp_f32", "v_log_f32", "v_rcp_f32", "v_rsq_f32", "v_sqrt_f32", "v_sin_f32", "v_cos_f32", "v_exp_f16", "v_rcp_iflag_f32")

def regs(tok):
    tok = tok.strip()
    tok = re.sub(r"^-|^abs\(|\)$|^\||\|$", "", tok)
    m = re.fullmatch(r"([vsa])(\d+)", tok)
    if m: return [(m.group(1), int(m.group(2)))]
    m = re.fullmatch(r"([vsa])\[(\d+):(\d+)\]", tok)
    if m: return [(m.group(1), i) for i in range(int(m.group(2)), int(m.group(3)) + 1)]
    if tok == "vcc": return [("s", "vcc_lo"), ("s", "vcc_hi")]
    if tok in ("vcc_lo", "vcc_hi", "m0", "exec_lo", "exec_hi"): return [("s", tok)]
    if tok == "exec": return [("s", "exec_lo"), ("s", "exec_hi")]
    return []

class I:
    def __init__(self, text, line):
        self.text = text; self.line = line
        parts = text.split(None, 1)
        self.op = parts[0]
        rest = parts[1] if len(parts) > 1 else ""
        ops = []; depth = 0; cur = ""
        for ch in rest:
            if ch == "[": depth += 1
            if ch == "]": depth -= 1
            if ch == "," and depth == 0: ops.append(cur); cur = ""
            else: cur += ch
        ops.append(cur)
        self.mods = ""
        if ops:
            t = ops[-1].strip().split(None, 1)
            if t:
                ops[-1] = t[0]; self.mods = t[1] if len(t) > 1 else ""
        self.ops = [o.strip() for o in ops if o.strip()]
        op = self.op
        self.mfma = op.startswith("v_mfma") or op.startswith("v_smfmac")
        self.smf = op.startswith("v_smfmac")
        self.valu = op.startswith("v_") and not self.mfma
        self.salu = op.startswith("s_")
        self.ds = op.startswith("ds_")
        self.vmem = op.startswith("buffer_") or op.startswith("global_")
        self.trans = any(op.startswith(t) for t in TRANS)
        self.dpp = "_dpp" in op or "quad_perm" in self.mods or "row_" in self.mods or "wave_" in self.mods
        self.dot = op.startswith("v_dot")
        self.passes = 0
        if self.mfma: self.passes = 8 if "32x32" in op else 4
        R = [regs(o) for o in self.ops]
        self.w = []; self.r = []; self.srcC = []; self.srcAB = []; self.stdata = []
        if self.mfma:
            self.w = R[0]
            self.srcAB = R[1] + R[2] + (R[3] if self.smf else [])
            self.srcC = R[0] if self.smf else R[3]
            self.r = self.srcAB + self.srcC
        elif self.valu:
            if op.startswith("v_cmp"):
                self.w = R[0]; self.r = sum(R[1:], [])
                if op.startswith("v_cmpx"): self.w = self.w + regs("exec")
            elif op.startswith("v_permlane") and "swap" in op:
                self.w = R[0] + R[1]; self.r = R[0] + R[1]
            elif op.startswith(("v_add_co", "v_sub_co", "v_addc_co", "v_subb_co", "v_mad_u64")):
                self.w = R[0] + R[1]; self.r = sum(R[2:], [])
            else:
                self.w = R[0]; self.r = sum(R[1:], [])
                if op.startswith(("v_fmac", "v_dot2c", "v_pk_fmac")) or "UNUSED_PRESERVE" in self.mods or self.dpp: self.r = self.r + R[0]
                if op.startswith("v_cndmask") and len(self.ops) == 3: self.r += regs("vcc")
        elif self.salu:
            if op.startswith(("s_cmp", "s_waitcnt", "s_nop", "s_barrier", "s_branch", "s_cbranch", "s_endpgm", "s_setprio", "s_sleep")):
                self.r = sum(R, [])
            else:
                self.w = R[0] if R else []; self.r = sum(R[1:], [])
                if "saveexec" in op: self.w = self.w + regs("exec")
        elif self.ds:
            if op.startswith(("ds_read", "ds_bpermute", "ds_permute", "ds_swizzle")):
                self.w = R[0]; self.r = sum(R[1:], [])
            else:
                self.r = sum(R, [])
            if "addtid" in op: self.r += regs("m0")
        elif self.vmem:
            lds = " lds" in (" " + self.mods) or "load_lds" in op
            if "store" in op or ("atomic" in op and "sc0" not in self.mods):
                self.r = sum(R, [])
                if op.endswith(("x4", "x3")):
                    self.stdata = R[0] if op.startswith("buffer_") else R[1]
            elif lds:
                self.r = sum(R, []) + regs("m0")
            elif op in ("buffer_wbl2", "buffer_inv"):
                pass
            else:
                self.w = R[0]; self.r = sum(R[1:], [])
            self.lds = lds
        self.states = 1
        if op == "s_nop": self.states = int(self.ops[0], 0) + 1

def need(p, c):
    n = 0; why = ""
    def up(k, w):
        nonlocal n, why
        if k > n: n = k; why = w
    pw = set(p.w); cr = set(c.r); cw = set(c.w)
    pv = {x for x in pw if x[0] in "va"}; ps = {x for x in pw if x[0] == "s"}
    if p.valu:
        if c.mfma and pv & cr: up(2 if not p.dot else 3, "VALU->MFMA")
        if p.trans and (c.valu) and not c.trans and pv & cr: up(1, "trans->VALU")
        if c.valu and c.dpp and pv & cr: up(2, "VALU->DPP")
        if c.op.startswith("v_permlane") and pv & cr: up(2, "VALU->permlane")
        if c.op.startswith(("v_readlane", "v_readfirstlane")) and pv & cr: up(1, "VALU->readlane")
        if ps & cr:
            if c.vmem: up(5, "VALU sgpr->VMEM")
            if c.valu or c.mfma: up(2, "VALU sgpr->VALU")
            if c.op.startswith(("v_readlane", "v_writelane")): up(4, "VALU sgpr->lanesel")
            if c.salu: up(1, "VALU sgpr->SALU (pad)")
        if ("dst_sel:WORD" in p.mods or "dst_sel:BYTE" in p.mods) and c.valu and pv & (cr | cw): up(1, "sdwa")
        if p.dot and not (c.op == p.op) and (c.valu or c.vmem or c.ds) and pv & (cr | cw): up(3, "dot->other")
        if p.dot and c.op == p.op and pv & set(sum([regs(o) for o in c.ops[1:3]], [])): up(3, "dot->dot AB")
        if ("s", "exec_lo") in pw:
            if c.dpp: up(5, "exec->dpp")
            if c.mfma: up(4, "exec->mfma")
    if p.mfma:
        big = {4: 8, 8: 12}[p.passes]
        if c.mfma:
            if pv & set(c.srcAB): up(big, "MFMA->MFMA AB")
            if pv & set(c.srcC):
                if not (list(p.w) == list(c.srcC) and p.passes == c.passes): up(big - 2, "MFMA->MFMA C overlap")
        elif c.valu:
            if pv & (cr | cw): up(big, "MFMA->VALU")
            if set(p.srcC) & cw: up({4: 3, 8: 7}[p.passes], "MFMA srcC WAR")
        elif c.ds or c.vmem:
            if pv & (cr | cw): up(big, "MFMA->mem")
    if p.salu and ("s", "m0") in pw and ("s", "m0") in cr and (c.ds or c.vmem): up(1, "m0")
    if p.stdata and set(p.stdata) & cw: up(2 if c.valu or c.mfma else 1, "store data WAR")
    return n, why

def check(text):
    ins = []; labels = {}
    for ln, raw in enumerate(text.splitlines(), 1):
        t = raw.split(";")[0].split("//")[0].strip()
        if not t or t.startswith("."):
            continue
        m = re.fullmatch(r"([\w.$]+):", t)
        if m: labels[m.group(1)] = len(ins); continue
        ins.append(I(t, ln))
    preds = [[] for _ in ins]
    for i, x in enumerate(ins):
        if x.op != "s_branch" and x.op != "s_endpgm" and i + 1 < len(ins): preds[i + 1].append(i)
        if x.op.startswith(("s_branch", "s_cbranch")):
            tgt = labels.get(x.ops[0])
            if tgt is not None and tgt < len(ins): preds[tgt].append(i)
    bad = []
    for ci, c in enumerate(ins):
        stack = [(p, 0) for p in preds[ci]]
        seen = {}
        while stack:
            pi, dist = stack.pop()
            if seen.get(pi, 99) <= dist: continue
            seen[pi] = dist
            p = ins[pi]
            n, why = need(p, c)
            if n > dist: bad.append((p, c, n, dist, why))
            nd = dist + p.states
            if nd < 13:
                for q in preds[pi]: stack.append((q, nd))
    for p, c, n, d, why in bad:
        print(f"HAZARD {why}: need {n} have {d}: line {p.line}: {p.text}  ->  line {c.line}: {c.text}")
    return len(bad)

if __name__ == "__main__":
    n = check(open(sys.argv[1]).read())
    print("hazards:", n)
```

```python
from common import *

LOG2E = 0x3fb8aa3b
QSCALE = 0x3eb8aa3b

def f32hex(x):
    import struct
    return hex(struct.unpack("<I", struct.pack("<f", x))[0])

def gen_k1(A, name):
    kernel_head(A, name)
    A("s_cmp_ge_u32 s2, 256")
    A("s_cbranch_scc1 K1_done")
    A(f"s_load_dwordx2 s[8:9], s[0:1], {KA['ws']}")
    A("v_lshrrev_b32 v2, 6, v0")
    A("v_and_b32 v1, 63, v0")
    A("s_and_b32 s10, s2, 7")
    A("v_readfirstlane_b32 s15, v2")
    A("s_lshr_b32 s11, s2, 3")
    A("s_cmp_ge_u32 s11, 24")
    A("s_cbranch_scc1 K1_kgen")
    A(f"s_load_dwordx2 s[4:5], s[0:1], {KA['u']}")
    A(f"s_load_dwordx2 s[6:7], s[0:1], {KA['wqkv']}")
    A(f"s_load_dwordx2 s[28:29], s[0:1], {KA['gw']}")
    A("s_lshr_b32 s12, s10, 1")
    A("s_lshl_b32 s12, s12, 2")
    A("s_and_b32 s13, s11, 3")
    A("s_add_u32 s12, s12, s13")
    A("s_and_b32 s13, s10, 1")
    A("s_mul_i32 s13, s13, 6")
    A("s_lshr_b32 s14, s11, 2")
    A("s_add_u32 s13, s13, s14")
    A("s_cmp_ge_u32 s15, 4")
    A("s_cbranch_scc1 K1_loader")
    gemm_compute(A)
    A("K1_loader:")
    gemm_loader(A)
    A("K1_kgen:")
    kgen(A)
    A("K1_done:")
    A("s_endpgm")

ACC = 0 + 16
SET = [80, 96]
VX = 4
VW = 8
VST = 10

def gemm_compute(A):
    A("s_and_b32 s30, s15, 1")
    A("s_lshr_b32 s31, s15, 1")
    A("v_and_b32 v2, 31, v1")
    A("v_lshrrev_b32 v3, 5, v1")
    swap23(A, 12, 2, 13, 14)
    A("v_bfe_u32 v13, v12, 1, 3")
    A("v_xor_b32 v13, v13, v3")
    A("s_lshl_b32 s32, s30, 13")
    A("v_lshlrev_b32 v14, 7, v12")
    A("v_add_u32 v14, s32, v14")
    for ks in range(4):
        A(f"v_xor_b32 v15, {2*ks}, v13")
        A(f"v_lshl_add_u32 v{VX+ks}, v15, 4, v14")
    A("v_bfe_u32 v13, v1, 2, 2")
    A("v_lshl_add_u32 v14, v3, 3, v13")
    A("v_lshlrev_b32 v14, 8, v14")
    A("v_and_b32 v15, 16, v1")
    A("v_lshl_add_u32 v14, v15, 1, v14")
    A("v_and_b32 v15, 3, v1")
    A("v_lshl_add_u32 v14, v15, 3, v14")
    A("v_add_u32 v14, 0x4000, v14")
    A("s_lshl_b32 s33, s31, 1")
    A("v_xor_b32 v13, s33, v13")
    A(f"v_lshl_add_u32 v{VW}, v13, 6, v14")
    A("v_xor_b32 v13, 1, v13")
    A(f"v_lshl_add_u32 v{VW+1}, v13, 6, v14")
    A("v_lshl_add_u32 v13, v3, 5, v12")
    A(f"v_lshlrev_b32 v{VST}, 4, v13")
    A(f"v_add_u32 v{VST+1}, 0x10000, v{VST}")
    for r in range(ACC, ACC + 64): A(f"v_mov_b32 v{r}, 0")
    for r in range(SET[1], SET[1] + 16): A(f"v_mov_b32 v{r}, 0")
    A("s_lshl_b32 s34, s13, 19")
    A("s_lshl_b32 s35, s31, 18")
    A("s_add_u32 s34, s34, s35")
    A("s_lshl_b32 s35, s12, 12")
    A("s_add_u32 s34, s34, s35")
    A("s_lshl_b32 s35, s30, 11")
    A("s_add_u32 s34, s34, s35")
    A("s_add_u32 s35, s34, 0x20000")
    A("s_waitcnt lgkmcnt(0)")
    srd(A, 24, 8, WS_SIZE)
    A("s_mov_b32 s36, 4")
    A("s_cmp_ge_u32 s13, 8")
    A("s_cbranch_scc1 K1_vtype")
    gemm_loop(A, False)
    A("s_cmp_ge_u32 s13, 4")
    A("s_cbranch_scc1 K1_epi")
    A(f"s_mov_b32 s38, {hex(QSCALE)}")
    A(f"s_mov_b32 s39, {hex(QSCALE)}")
    A("s_nop 7")
    A("s_nop 1")
    for r in range(ACC, ACC + 64, 2):
        A(f"v_pk_mul_f32 {vr(r,2)}, {vr(r,2)}, s[38:39]")
    A("s_branch K1_epi2")
    A("K1_vtype:")
    A("v_lshrrev_b32 v13, 4, v2")
    A("v_lshlrev_b32 v13, 16, v13")
    A("v_lshl_add_u32 v13, v3, 8, v13")
    A("v_and_b32 v14, 15, v2")
    A(f"v_lshl_add_u32 v{VST}, v14, 4, v13")
    A(f"v_add_u32 v{VST+1}, 0x200, v{VST}")
    gemm_loop(A, True)
    A("K1_epi:")
    A("s_nop 7")
    A("s_nop 3")
    A("K1_epi2:")
    for mt in range(2):
        for nt in range(2):
            a = ACC + 16 * (2 * mt + nt)
            for p in range(8):
                A(f"v_cvt_pk_bf16_f32 v{a+p}, v{a+2*p}, v{a+2*p+1}")
            so = "s34" if nt == 0 else "s35"
            A(f"buffer_store_dwordx4 {vr(a,4)}, v{VST}, s[24:27], {so} offen offset:{mt*1024}")
            A(f"buffer_store_dwordx4 {vr(a+4,4)}, v{VST+1}, s[24:27], {so} offen offset:{mt*1024}")
    A("s_endpgm")

def gemm_loop(A, vtype):
    lab = "K1_loopV" if vtype else "K1_loopQ"
    def reads(ks, st, par):
        b = SET[st]
        o = par * 32768
        A(f"ds_read_b128 {vr(b,4)}, v{VX+ks} offset:{o}")
        A(f"ds_read_b64_tr_b16 {vr(b+8,2)}, v{VW} offset:{o+ks*4096}")
        A(f"ds_read_b64_tr_b16 {vr(b+10,2)}, v{VW} offset:{o+ks*4096+1024}")
        A(f"ds_read_b64_tr_b16 {vr(b+12,2)}, v{VW+1} offset:{o+ks*4096}")
        A(f"ds_read_b64_tr_b16 {vr(b+14,2)}, v{VW+1} offset:{o+ks*4096+1024}")
        A(f"ds_read_b128 {vr(b+4,4)}, v{VX+ks} offset:{o+4096}")
    def mm(st):
        b = SET[st]
        for mt in range(2):
            for nt in range(2):
                a = ACC + 16 * (2 * mt + nt)
                x = b + 4 * mt; w = b + 8 + 4 * nt
                A(mfma32(a, x, w) if vtype else mfma32(a, w, x))
    A(".p2align 3")
    A(f"{lab}:")
    for par in range(2):
        A("s_waitcnt lgkmcnt(0)")
        A("s_barrier")
        reads(0, 0, par); mm(1)
        reads(1, 1, par); A("s_waitcnt lgkmcnt(6)"); A("s_sub_u32 s36, s36, 1" if par == 0 else "s_cmp_lg_u32 s36, 0"); mm(0)
        reads(2, 0, par); A("s_waitcnt lgkmcnt(6)"); A("s_nop 0"); mm(1)
        reads(3, 1, par); A("s_waitcnt lgkmcnt(6)"); A("s_nop 0"); mm(0)
    for r in list(range(VX, VX + 4)) + [VW, VW + 1]:
        A(f"v_xor_b32 v{r}, 0x10000, v{r}")
    A(f"s_cbranch_scc1 {lab}")
    A("s_waitcnt lgkmcnt(0)")
    mm(1)

def gemm_loader(A):
    A("s_sub_u32 s15, s15, 4")
    A("v_lshrrev_b32 v2, 3, v1")
    A("v_lshlrev_b32 v2, 10, v2")
    A("v_lshrrev_b32 v3, 4, v1")
    A("v_and_b32 v6, 7, v1")
    A("v_xor_b32 v6, v6, v3")
    A("v_lshl_add_u32 v4, v6, 4, v2")
    A("v_xor_b32 v5, 64, v4")
    A("v_mul_u32_u24 v7, 3072, v3")
    A("v_and_b32 v8, 15, v1")
    A("v_lshlrev_b32 v9, 2, v3")
    A("v_xor_b32 v8, v8, v9")
    A("v_lshl_add_u32 v7, v8, 4, v7")
    A("s_lshl_b32 s30, s12, 17")
    A("s_lshl_b32 s31, s15, 15")
    A("s_add_u32 s30, s30, s31")
    A("s_mul_i32 s31, s15, 49152")
    A("s_lshl_b32 s32, s13, 8")
    A("s_add_u32 s31, s31, s32")
    A("s_lshl_b32 s32, s15, 12")
    A("s_waitcnt lgkmcnt(0)")
    srd(A, 16, 4, 2048 * 512 * 2)
    srd(A, 20, 6, 512 * 1536 * 2)
    srd(A, 24, 8, WS_SIZE)
    srd(A, 40, 28, 1024)
    def issue(c):
        slot = (c % 4) * 32768
        for q in range(4):
            A(f"s_add_u32 m0, s32, {slot + q*1024}")
            A(f"s_add_u32 s33, s30, {q*8192 + c*128}")
            A(f"buffer_load_dwordx4 v{4 + (q & 1)}, s[16:19], s33 offen lds")
            A(f"s_add_u32 m0, s32, {slot + 16384 + q*1024}")
            A(f"s_add_u32 s33, s31, {(c*64 + 4*q)*3072}")
            A(f"buffer_load_dwordx4 v7, s[20:23], s33 offen lds")
    issue(0)
    A("s_and_b32 s34, s15, 1")
    A("s_lshl_b32 s34, s34, 2")
    A("v_xor_b32 v10, s34, v6")
    A("v_lshlrev_b32 v10, 4, v10")
    A("s_cmp_ge_u32 s13, 8")
    A("s_cselect_b32 s35, 0, 0x10000")
    for c in range(8):
        A(f"buffer_load_dwordx4 {vr(32+4*c,4)}, v10, s[40:43], s35 offen offset:{c*128}")
    issue(1); issue(2)
    A("s_and_b32 s34, s13, 3")
    A("s_lshl_b32 s36, s34, 12")
    A("s_lshl_b32 s37, s15, 10")
    A("s_add_u32 s36, s36, s37")
    A("v_lshlrev_b32 v11, 4, v1")
    A("v_add_u32 v11, s36, v11")
    A("v_add_u32 v12, 0x10000, v11")
    A("v_bfe_u32 v14, v1, 2, 2")
    A("v_lshl_add_u32 v15, v14, 2, v3")
    A("v_lshrrev_b32 v14, 1, v15")
    A("v_bfe_u32 v13, v1, 1, 1")
    A("s_lshl_b32 s37, s15, 1")
    A("v_or_b32 v13, s37, v13")
    A("v_xor_b32 v13, v13, v14")
    A("v_lshlrev_b32 v13, 4, v13")
    A("v_lshl_add_u32 v13, v15, 7, v13")
    A("v_and_b32 v14, 1, v1")
    A("v_lshl_add_u32 v13, v14, 3, v13")
    A("s_lshl_b32 s37, s34, 15")
    A("v_add_u32 v13, s37, v13")
    A("v_mov_b32 v9, 0")
    for c in range(8):
        n = 8 * min(2, 7 - c) + (8 if c == 0 else 0)
        A(f"s_waitcnt vmcnt({n}) lgkmcnt(0)")
        A("s_barrier")
        A(f"ds_read_b128 {vr(64,4)}, v{11 + ((c>>1)&1)} offset:{(c&1)*32768}")
        A(f"s_cmp_eq_u32 s13, {c}")
        A(f"s_cbranch_scc0 K1_nout{c}")
        for w in range(4):
            for eh in range(2):
                A(f"ds_read_b64_tr_b16 {vr(16+4*w+2*eh,2)}, v13 offset:{w*4096+eh*2048}")
        A(f"K1_nout{c}:")
        if c + 3 <= 7: issue(c + 3)
        if c == 0: A(f"s_waitcnt vmcnt(24)")
        A("s_waitcnt lgkmcnt(0)")
        for p in range(4):
            A(f"v_dot2_f32_bf16 v9, v{64+p}, v{32+4*c+p}, v9")
    A("s_cmp_ge_u32 s13, 8")
    A("s_cbranch_scc1 K1_gfin")
    A("v_and_b32 v14, 15, v1")
    A("v_lshlrev_b32 v14, 12, v14")
    A("v_lshl_add_u32 v14, v3, 4, v14")
    A("s_lshl_b32 s36, s13, 18")
    A("s_lshl_b32 s37, s15, 16")
    A("s_add_u32 s36, s36, s37")
    A("s_lshl_b32 s37, s12, 8")
    A("s_add_u32 s36, s36, s37")
    A(f"s_add_u32 s36, s36, {hex(WS_UT)}")
    for w in range(4):
        A(f"buffer_store_dwordx4 {vr(16+4*w,4)}, v14, s[24:27], s36 offen offset:{w*64}")
    A("s_endpgm")
    A("K1_gfin:")
    A("s_nop 2")
    A("v_add_f32_dpp v9, v9, v9 quad_perm:[1,0,3,2] row_mask:0xf bank_mask:0xf")
    A("s_nop 1")
    A("v_add_f32_dpp v9, v9, v9 quad_perm:[2,3,0,1] row_mask:0xf bank_mask:0xf")
    A("s_nop 1")
    A("v_add_f32_dpp v9, v9, v9 row_half_mirror row_mask:0xf bank_mask:0xf")
    A("v_cvt_pk_bf16_f32 v9, v9, v9")
    A("v_and_b32 v9, 0xffff0000, v9")
    A(f"v_mul_f32 v9, {hex(LOG2E ^ 0x80000000)}, v9")
    A("v_exp_f32 v9, v9")
    A("s_nop 0")
    A("v_add_f32 v9, 1.0, v9")
    A("v_rcp_f32 v9, v9")
    A("s_nop 0")
    A("v_cvt_pk_bf16_f32 v9, v9, v9")
    A("v_and_b32 v9, 0xffff0000, v9")
    A("v_lshrrev_b32 v14, 3, v1")
    A("v_lshlrev_b32 v14, 2, v14")
    A("s_lshl_b32 s36, s12, 9")
    A("s_lshl_b32 s37, s34, 7")
    A("s_add_u32 s36, s36, s37")
    A("s_lshl_b32 s37, s15, 5")
    A("s_add_u32 s36, s36, s37")
    A(f"s_add_u32 s36, s36, {hex(WS_G)}")
    A("buffer_store_dword v9, v14, s[24:27], s36 offen")
    A("s_endpgm")

ROW = 272
YW = 32 * ROW
XW = 27 * ROW
XOFF = 57344
XM0 = 8 * YW - XOFF

def cmul(A, R, X, E, T):
    A(f"v_pk_mul_f32 {vr(T,2)}, {vr(X,2)}, {vr(E,2)} op_sel:[0,0] op_sel_hi:[1,0]")
    A(f"v_pk_fma_f32 {vr(R,2)}, {vr(X,2)}, {vr(E,2)}, {vr(T,2)} op_sel:[1,1,0] op_sel_hi:[0,1,1] neg_lo:[1,0,0]")

def cmul2(A, a, b):
    for (R, X, E, T) in (a, b):
        A(f"v_pk_mul_f32 {vr(T,2)}, {vr(X,2)}, {vr(E,2)} op_sel:[0,0] op_sel_hi:[1,0]")
    for (R, X, E, T) in (a, b):
        A(f"v_pk_fma_f32 {vr(R,2)}, {vr(X,2)}, {vr(E,2)}, {vr(T,2)} op_sel:[1,1,0] op_sel_hi:[0,1,1] neg_lo:[1,0,0]")

def kgen(A):
    A(f"s_load_dwordx8 s[44:51], s[0:1], {KA['Are']}")
    A(f"s_load_dwordx8 s[52:59], s[0:1], {KA['Cre']}")
    A("s_lshl_b32 s12, s10, 3")
    A("s_add_u32 s12, s12, s11")
    A("s_sub_u32 s12, s12, 24")
    A("s_lshl_b32 s12, s12, 3")
    A("s_add_u32 s12, s12, s15")
    A("s_lshl_b32 s13, s12, 8")
    A("v_lshlrev_b32 v2, 2, v1")
    A("v_add_u32 v2, s13, v2")
    A("s_lshl_b32 s13, s12, 1")
    A("v_mov_b32 v3, s13")
    A("s_waitcnt lgkmcnt(0)")
    P = 4
    for k in range(6):
        A(f"global_load_dword v{P+k}, v2, s[{44+2*k}:{45+2*k}]")
    A("global_load_ushort v10, v3, s[56:57]")
    A("global_load_ushort v11, v3, s[58:59]")
    srd(A, 24, 8, WS_SIZE)
    A("s_mul_i32 s30, s15, %d" % YW)
    A("s_mul_i32 s31, s15, %d" % XW)
    A(f"s_add_u32 s31, s31, {XM0}")
    A("v_and_b32 v16, 31, v1")
    A("v_lshrrev_b32 v17, 5, v1")
    A("v_lshlrev_b32 v17, 4, v17")
    A(f"v_mul_u32_u24 v14, {ROW}, v16")
    A("v_add3_u32 v14, v14, v17, s30")
    A("v_bfe_u32 v18, v1, 2, 1")
    A("v_bfe_u32 v19, v1, 4, 1")
    A("v_lshl_add_u32 v18, v19, 1, v18")
    A("v_and_b32 v19, 3, v1")
    A("v_bfe_u32 v20, v1, 3, 1")
    A("v_lshl_add_u32 v19, v20, 2, v19")
    A("v_mov_b32 v20, 0x22111000")
    A("v_mov_b32 v21, 0x43222100")
    A("v_mov_b32 v22, 0x76543210")
    A("v_cmp_eq_u32 vcc, 1, v18")
    A("v_lshlrev_b32 v23, 2, v19")
    A("v_lshlrev_b32 v24, 3, v18")
    A("v_cndmask_b32 v20, v20, v21, vcc")
    A("v_cmp_eq_u32 vcc, 0, v18")
    A("s_mov_b32 s32, 0x100d0800")
    A("v_bfe_u32 v24, s32, v24, 8")
    A("v_cndmask_b32 v20, v20, v22, vcc")
    A("v_bfe_u32 v20, v20, v23, 4")
    A("v_add_u32 v20, v20, v24")
    A(f"s_add_u32 s33, s31, {XOFF}")
    A(f"v_mul_u32_u24 v12, {ROW}, v20")
    A("v_add3_u32 v12, v12, v17, s33")
    A("v_cmp_lt_u32 vcc, 4, v19")
    A("v_lshlrev_b32 v18, 1, v18")
    A("v_add_u32 v18, 19, v18")
    A("v_addc_co_u32 v18, vcc, 0, v18, vcc")
    A(f"v_mul_u32_u24 v13, {ROW}, v18")
    A("v_add3_u32 v13, v13, v17, s33")
    AC = 64
    for r in range(AC, AC + 32): A(f"v_mov_b32 v{r}, 0")
    A("s_waitcnt vmcnt(0)")
    A("v_lshlrev_b32 v10, 16, v10")
    A(f"v_mul_f32 v10, {hex(LOG2E)}, v10")
    A("v_exp_f32 v10, v10")
    A("v_lshlrev_b32 v11, 16, v11")
    A("v_cvt_pk_bf16_f32 v10, v10, v10")
    A("v_and_b32 v10, 0xffff0000, v10")
    A("v_cmp_eq_u32 vcc, 0, v1")
    A("s_mov_b32 s34, 2")
    A("s_nop 0")
    A(f"v_cndmask_b32 v{AC}, v{AC}, v11, vcc")
    A("K1_kloop:")
    U = 16
    for k in range(6):
        A(f"v_and_b32 v{U+k}, 0xffff0000, v{P+k}")
        A(f"v_lshlrev_b32 v{P+k}, 16, v{P+k}")
    for k in range(4):
        A(f"v_mul_f32 v{U+k}, v10, v{U+k}")
    W0 = 22; T0 = 24; T1 = 26
    cmul(A, W0, U + 4, U + 2, T0)
    E1 = 28; E2 = 30; E4 = 32; E8 = 34; E16 = 36; E256 = 38
    import math
    for k, E in ((1, E1), (8, E8), (256, E256)):
        A(f"v_mul_f32 v40, {f32hex(k*math.log2(math.e))}, v{U}")
        A(f"v_mul_f32 v41, {f32hex(k/(2*math.pi))}, v{U+1}")
        A("v_exp_f32 v40, v40")
        A("v_fract_f32 v41, v41")
        A(f"v_cos_f32 v{E}, v41")
        A(f"v_sin_f32 v{E+1}, v41")
        A("s_nop 0")
        A(f"v_mul_f32 v{E}, v40, v{E}")
        A(f"v_mul_f32 v{E+1}, v40, v{E+1}")
    cmul2(A, (E2, E1, E1, T0), (E16, E8, E8, T1))
    cmul(A, E4, E2, E2, T0)
    YA_, YB_ = 42, 44
    C0, C1 = 46, 47
    A("s_mov_b32 m0, s30")
    A(f"v_mov_b32 v{C0}, 0x00003f80")
    A(f"v_cvt_pk_bf16_f32 v{C1}, v{E8}, v{E8+1}")
    A(f"ds_write_addtid_b32 v{C0} offset:0")
    A(f"ds_write_addtid_b32 v{C1} offset:{ROW}")
    cmul(A, YB_, E8, E16, T1)
    A(f"v_cvt_pk_bf16_f32 v{C0+2}, v{E16}, v{E16+1}")
    A(f"v_cvt_pk_bf16_f32 v{C1+2}, v{YB_}, v{YB_+1}")
    A(f"ds_write_addtid_b32 v{C0+2} offset:{2*ROW}")
    A(f"ds_write_addtid_b32 v{C1+2} offset:{3*ROW}")
    for j in range(4, 32, 2):
        src = E16 if j == 4 else YA_
        cmul2(A, (YA_, src, E16, T0), (YB_, YB_, E16, T1))
        o = 2 * ((j >> 1) & 1)
        A(f"v_cvt_pk_bf16_f32 v{C0+o}, v{YA_}, v{YA_+1}")
        A(f"v_cvt_pk_bf16_f32 v{C1+o}, v{YB_}, v{YB_+1}")
        A(f"ds_write_addtid_b32 v{C0+o} offset:{j*ROW}")
        A(f"ds_write_addtid_b32 v{C1+o} offset:{(j+1)*ROW}")
    A("s_mov_b32 m0, s31")
    cnt = [0]
    def put(reg, entry):
        c = 46 + (cnt[0] & 3); cnt[0] += 1
        A(f"v_cvt_pk_bf16_f32 v{c}, v{reg}, -v{reg+1}")
        A(f"ds_write_addtid_b32 v{c} offset:{XOFF + entry*ROW}")
    PA = 42; BS = 44; OF = 50
    put(W0, 0)
    bases = {1: 8, 2: 13, 3: 16, 4: 19, 5: 21, 6: 23, 7: 25}
    BK = [52, 54, 56, 58, 60, 62, 44]
    for s in range(1, 8):
        cmul2(A, (PA, W0 if s == 1 else PA, E1, T0), (BK[s-1], W0 if s == 1 else BK[s-2], E256, T1))
        put(PA, s); put(BK[s-1], bases[s])
    seq_a = [(BK[0], E2, 9), (BK[0], E2, 10), (BK[0], E2, 11), (BK[0], E2, 12), (BK[3], E8, 20), (BK[5], E8, 24)]
    seq_b = [(BK[1], E4, 14), (BK[1], E4, 15), (BK[2], E4, 17), (BK[2], E4, 18), (BK[4], E8, 22), (BK[6], E8, 26)]
    for (ra, ea, na), (rb, eb, nb) in zip(seq_a, seq_b):
        cmul2(A, (ra, ra, ea, T0), (rb, rb, eb, T1))
        put(ra, na); put(rb, nb)
    A("s_waitcnt lgkmcnt(0)")
    F = [16, 28]
    def rd(ks, st):
        A(f"ds_read_b128 {vr(F[st],4)}, v12 offset:{ks*32}")
        A(f"ds_read_b128 {vr(F[st]+8,4)}, v14 offset:{ks*32}")
        A(f"ds_read_b128 {vr(F[st]+4,4)}, v13 offset:{ks*32}")
    rd(0, 0)
    for ks in range(8):
        st = ks & 1
        if ks < 7:
            rd(ks + 1, st ^ 1)
            A("s_waitcnt lgkmcnt(3)")
        else:
            A("s_waitcnt lgkmcnt(0)")
        A(mfma32(AC, F[st], F[st] + 8))
        A(mfma32(AC + 16, F[st] + 4, F[st] + 8))
    A("s_sub_u32 s34, s34, 1")
    A("s_cmp_lg_u32 s34, 0")
    A("s_cbranch_scc1 K1_kloop")
    A("v_and_b32 v2, 1, v1")
    A("v_cmp_eq_u32 vcc, 1, v2")
    A("v_lshlrev_b32 v2, 4, v1")
    A("s_lshl_b32 s13, s12, 12")
    A(f"s_add_u32 s13, s13, {hex(WS_KX)}")
    A("s_nop 5")
    A(f"v_cndmask_b32 v{AC+16+4}, v{AC+16+4}, v{AC+16+5}, vcc")
    A(f"v_cndmask_b32 v{AC+16+12}, v{AC+16+12}, v{AC+16+13}, vcc")
    for q in range(4):
        a = AC + 8 * q
        for p in range(4):
            A(f"v_cvt_pk_bf16_f32 v{a+p}, v{a+2*p}, v{a+2*p+1}")
        A(f"buffer_store_dwordx4 {vr(a,4)}, v2, s[24:27], s13 offen offset:{q*1024}")
    A("s_endpgm")
```

```python
import sys
sys.path.insert(0, "gen")
from common import *
import k1, hazard
import importlib

def build(which=("k1", "k2", "k3")):
    A = Asm()
    hdr = open("cdna_kernels/%s.s.ref" % NAME).read().split("; Override launch")[0]
    A.l.extend(hdr.rstrip("\n").split("\n"))
    cfg = {"k1": (512, 131072), "k2": (768, 151040), "k3": (512, 131072)}
    for k in which:
        A.l.append(f"; @launch kernel={k}_kernel grid=(256,1,1) block=({cfg[k][0]},1,1) lds={cfg[k][1]}")
    A('.amdgcn_target "amdgcn-amd-amdhsa--gfx950"')
    A(".text")
    mods = {k: importlib.import_module(k) for k in which}
    for k in which:
        getattr(mods[k], "gen_" + k)(A, k + "_kernel")
    A('.section .rodata,"a"')
    vg = {"k1": 112, "k2": 128, "k3": 128}
    for k in which:
        kernel_desc(A, k + "_kernel", vg[k])
    return A.text()

if __name__ == "__main__":
    which = sys.argv[2].split(",") if len(sys.argv) > 2 else ("k1", "k2", "k3")
    t = build(which)
    open(sys.argv[1], "w").write(t)
    print("hazards:", hazard.check(t))
```

```python
NAME = "gated_mix__ssm_conv_s4__softmax_full_mha__prompt"

WS_QKV = 0
WS_Q = 0
WS_K = 2 << 20
WS_V = 4 << 20
WS_UT = 6 << 20
WS_KX = 8 << 20
WS_O = 10 << 20
WS_YA = 12 << 20
WS_G = 14 << 20
WS_SIZE = 16 << 20

KA = dict(u=0, Are=8, Aim=16, Bre=24, Bim=32, Cre=40, Cim=48, logdt=56, Dskip=64, x=72, wqkv=80, wo=88, gw=96, out=104, dbg=112, ws=120)

class Asm:
    def __init__(self):
        self.l = []
    def __call__(self, s):
        for t in s.split("\n"):
            t = t.strip()
            if t: self.l.append(t if t.endswith(":") or t.startswith(".") else "  " + t)
    def text(self):
        return "\n".join(self.l) + "\n"

def vr(a, n):
    return f"v[{a}:{a+n-1}]" if n > 1 else f"v{a}"
def sr(a, n):
    return f"s[{a}:{a+n-1}]" if n > 1 else f"s{a}"

def srd(A, d, base, nbytes):
    A(f"s_mov_b32 s{d}, s{base}")
    A(f"s_mov_b32 s{d+1}, s{base+1}")
    A(f"s_mov_b32 s{d+2}, {hex(nbytes)}")
    A(f"s_mov_b32 s{d+3}, 0x20000")

def kernel_head(A, name):
    A(f".globl {name}")
    A(".p2align 8")
    A(f".type {name},@function")
    A(f"{name}:")

def kernel_desc(A, name, vgpr, sgpr=96):
    acc = (vgpr + 3) // 4 * 4
    A(".p2align 6")
    A(f".amdhsa_kernel {name}")
    for t in (f".amdhsa_next_free_vgpr {vgpr}", f".amdhsa_next_free_sgpr {sgpr}", f".amdhsa_accum_offset {acc}",
              ".amdhsa_group_segment_fixed_size 0", ".amdhsa_kernarg_size 128", ".amdhsa_user_sgpr_count 2",
              ".amdhsa_user_sgpr_kernarg_segment_ptr 1", ".amdhsa_system_sgpr_workgroup_id_x 1",
              ".amdhsa_float_denorm_mode_32 3"):
        A.l.append("  " + t)
    A(".end_amdhsa_kernel")

def mfma32(D, Aop, Bop, C=None):
    c = vr(D, 16) if C is None else (C if isinstance(C, str) else vr(C, 16))
    return f"v_mfma_f32_32x32x16_bf16 {vr(D,16)}, {vr(Aop,4)}, {vr(Bop,4)}, {c}"

def swap23(A, dst, src, t0, t1):
    A(f"v_and_b32 v{dst}, 0x13, v{src}")
    A(f"v_and_b32 v{t0}, 4, v{src}")
    A(f"v_and_b32 v{t1}, 8, v{src}")
    A(f"v_lshl_or_b32 v{dst}, v{t0}, 1, v{dst}")
    A(f"v_lshrrev_b32 v{t1}, 1, v{t1}")
    A(f"v_or_b32 v{dst}, v{dst}, v{t1}")

STAMPS = [False]
WS_ST = 32 << 20
def stamp(A, idx):
    if not STAMPS[0]: return
    A(f"s_memtime s[{64+4*idx}:{65+4*idx}]")
    A(f"s_memrealtime s[{66+4*idx}:{67+4*idx}]")
    A("s_waitcnt lgkmcnt(0)")
def dump(A, kidx, n, wave_sgpr="s63"):
    if not STAMPS[0]: return
    A("s_waitcnt vmcnt(0)")
    stamp(A, n)
    A("s_getreg_b32 s62, hwreg(HW_REG_HW_ID)")
    A("s_getreg_b32 s61, hwreg(HW_REG_XCC_ID)")
    A("s_lshl_b32 s60, s2, 4")
    A(f"s_add_u32 s60, s60, {wave_sgpr}")
    A("s_lshl_b32 s60, s60, 6")
    A(f"s_add_u32 s60, s60, {hex(WS_ST + kidx * 256 * 16 * 64)}")
    A("v_mov_b32 v0, s60")
    for i in range(n + 1):
        A(f"v_mov_b32 v2, s{64+4*i}")
        A(f"v_mov_b32 v3, s{66+4*i}")
        A(f"global_store_dwordx2 v0, v[2:3], s[8:9] offset:{8*i}")
    A("v_mov_b32 v2, s62")
    A("v_mov_b32 v3, s61")
    A("global_store_dwordx2 v0, v[2:3], s[8:9] offset:56")
def savewave(A):
    if STAMPS[0]: A("s_mov_b32 s63, s15")
```

```python
from common import *
import math, struct

def f32hex(x): return hex(struct.unpack("<I", struct.pack("<f", x))[0])
LOG2E = 0x3fb8aa3b
QSCALE = 0x3eb8aa3b

def reg(i): return (i << 21) + ((i + 1) << 12)
F_Q = reg(0)
F_KV = reg(1)
F_UT = reg(3)
F_YA = reg(4)
F_FL = reg(5)
FWS = 12 << 20
HOLES = [0, (1 << 21) + (1 << 12), (3 << 21) + (2 << 12), (4 << 21) + (4 << 12), (5 << 21) + (5 << 12)]

L_CNT = 0
C_QKV, C_KV1, C_KV2, C_CARRY, C_YA, C_FREE, C_O, C_PAIR = 0, 4, 8, 12, 16, 20, 24, 32
L_G = 64
L_CARRY = 320
L_TAB = 640
TABW = 16048
ROW = 272
L_RING = 32768
L_KV = L_TAB + TABW + 9216
KVS = 2080
L_WO = 1024
L_XCH = 66560
L_LX = L_KV + 64 * KVS
L_O = 92160
F_LDS = 163840
SPIN = 200000

class G:
    n = 0
def lab(p):
    G.n += 1
    return f"{p}{G.n}"

def lds_wait(A, addr_v, off, target, tmp_v, tmp_s, cnt_s, sleep=1):
    l = lab("LW"); d = lab("LD")
    A(f"s_mov_b32 s{cnt_s}, 0")
    A(f"{l}:")
    A(f"ds_read_b32 v{tmp_v}, v{addr_v} offset:{off}")
    A("s_waitcnt lgkmcnt(0)")
    A(f"v_readfirstlane_b32 s{tmp_s}, v{tmp_v}")
    A(f"s_add_u32 s{cnt_s}, s{cnt_s}, 1")
    A(f"s_cmp_ge_u32 s{tmp_s}, {target}")
    A(f"s_cbranch_scc1 {d}")
    A(f"s_sleep {sleep}")
    A(f"s_cmp_lt_u32 s{cnt_s}, {hex(SPIN * 8)}")
    A(f"s_cbranch_scc1 {l}")
    A(f"{d}:")

def flag_wait(A, voff, soff, tmp_v, cnt_s, srd_="s[24:27]", sleep=1):
    l = lab("FW"); d = lab("FD")
    A(f"s_mov_b32 s{cnt_s}, 0")
    A(f"{l}:")
    A(f"buffer_load_dword v{tmp_v}, v{voff}, {srd_}, {soff} offen sc1")
    A("s_waitcnt vmcnt(0)")
    A(f"v_cmp_eq_u32 vcc, 1, v{tmp_v}")
    A(f"s_add_u32 s{cnt_s}, s{cnt_s}, 1")
    A("s_cmp_eq_u64 vcc, -1")
    A(f"s_cbranch_scc1 {d}")
    A(f"s_sleep {sleep}")
    A(f"s_cmp_lt_u32 s{cnt_s}, {hex(SPIN)}")
    A(f"s_cbranch_scc1 {l}")
    A(f"{d}:")

def lds_add1(A, zero_v, one_v, off):
    A("s_mov_b64 exec, 1")
    A(f"ds_add_u32 v{zero_v}, v{one_v} offset:{off}")
    A("s_mov_b64 exec, -1")

def signal_last(A, zero_v, one_v, tmp_v, tmp_s, off, n, flag_s):
    sk = lab("SG")
    A("s_mov_b64 exec, 1")
    A(f"ds_add_rtn_u32 v{tmp_v}, v{zero_v}, v{one_v} offset:{off}")
    A("s_waitcnt lgkmcnt(0)")
    A(f"v_readfirstlane_b32 s{tmp_s}, v{tmp_v}")
    A("s_nop 0")
    A(f"s_cmp_eq_u32 s{tmp_s}, {n-1}")
    A(f"s_cbranch_scc0 {sk}")
    A(f"buffer_store_dword v{one_v}, v{zero_v}, s[24:27], s{flag_s} offen sc1")
    A(f"{sk}:")
    A("s_mov_b64 exec, -1")

def mfma16(D, Aop, Bop):
    return f"v_mfma_f32_16x16x32_bf16 {vr(D,4)}, {vr(Aop,4)}, {vr(Bop,4)}, {vr(D,4)}"

def gen_fused(A, name):
    kernel_head(A, name)
    A("F_start:")
    A(f"s_load_dwordx2 s[4:5], s[0:1], {KA['u']}")
    A(f"s_load_dwordx4 s[44:47], s[0:1], {KA['wqkv']}")
    A(f"s_load_dwordx8 s[48:55], s[0:1], {KA['gw']}")
    A("s_cmp_ge_u32 s2, 256")
    A("s_cbranch_scc1 F_done")
    A("v_lshrrev_b32 v2, 6, v0")
    A("v_and_b32 v1, 63, v0")
    A("s_and_b32 s10, s2, 7")
    A("v_readfirstlane_b32 s15, v2")
    A("s_lshr_b32 s11, s2, 3")
    A("s_lshr_b32 s12, s10, 1")
    A("s_lshl_b32 s12, s12, 3")
    A("s_and_b32 s3, s11, 7")
    A("s_add_u32 s12, s12, s3")
    A("s_and_b32 s6, s10, 1")
    A("s_lshr_b32 s7, s11, 3")
    A("s_lshl2_add_u32 s13, s6, s7")
    A("s_lshl1_add_u32 s14, s7, s6")
    A("s_add_u32 s14, s14, s3")
    A("s_and_b32 s14, s14, 7")
    savewave(A)
    A("s_cmp_lt_u32 s15, 8")
    A("s_cbranch_scc1 F_notloader")
    side(A)
    A("F_notloader:")
    A("s_waitcnt lgkmcnt(0)")
    stamp(A, 0)
    A("s_mov_b32 s8, s54")
    A("s_mov_b32 s9, s55")
    srd(A, 24, 54, FWS)
    A("s_cmp_lt_u32 s15, 4")
    A("s_cbranch_scc1 F_gemm")
    A("s_cmp_lt_u32 s15, 6")
    A("s_cbranch_scc1 F_kgen")
    misc(A)
    A("s_branch F_conv")
    A("F_kgen:")
    kgen(A)
    A("F_conv:")
    conv(A)
    A("s_branch F_attn")
    A("F_gemm:")
    gemm(A)
    A("F_attn:")
    attention(A)
    A("F_done:")
    A("s_endpgm")
    A("F_codeend:")

def side(A):
    A("s_sub_u32 s15, s15, 8")
    A("v_lshrrev_b32 v2, 3, v1")
    A("v_bfe_u32 v3, v1, 4, 1")
    A("v_and_b32 v6, 7, v1")
    A("s_and_b32 s30, s15, 1")
    A("s_lshl_b32 s30, s30, 2")
    A("v_xor_b32 v7, v6, v3")
    A("v_xor_b32 v7, s30, v7")
    A("v_lshlrev_b32 v7, 4, v7")
    A("v_lshl_add_u32 v4, v2, 10, v7")
    A("v_xor_b32 v5, 32, v4")
    A("v_lshlrev_b32 v3, 1, v3")
    A("v_xor_b32 v7, v6, v3")
    A("v_mul_u32_u24 v6, 3072, v2")
    A("v_lshl_add_u32 v6, v7, 4, v6")
    A("v_xor_b32 v7, 64, v6")
    A("s_lshl_b32 s30, s12, 16")
    A("s_lshl_b32 s31, s15, 14")
    A("s_add_u32 s30, s30, s31")
    A("s_mul_i32 s31, s15, 49152")
    A("s_lshl_b32 s32, s13, 7")
    A("s_add_u32 s31, s31, s32")
    A("s_lshl_b32 s32, s15, 11")
    A(f"s_add_u32 s32, s32, {L_RING}")
    A("s_mov_b32 s33, 0")
    A("s_waitcnt lgkmcnt(0)")
    stamp(A, 0)
    srd(A, 16, 4, 2048 * 512 * 2)
    srd(A, 20, 44, 512 * 1536 * 2)
    A("F_ld:")
    A("s_cmp_lt_u32 s33, 3")
    A("s_cbranch_scc1 F_ld1")
    A("s_waitcnt vmcnt(16)")
    A("s_barrier")
    A("F_ld1:")
    A("s_add_u32 s34, s14, s33")
    A("s_and_b32 s34, s34, 7")
    A("s_lshl_b32 s35, s34, 7")
    A("s_add_u32 s35, s35, s30")
    A("s_mul_i32 s36, s34, 196608")
    A("s_add_u32 s36, s36, s31")
    A("s_and_b32 s37, s33, 3")
    A("s_lshl_b32 s37, s37, 15")
    A("s_add_u32 m0, s37, s32")
    A("s_add_u32 s38, s35, 7168")
    A("buffer_load_dwordx4 v4, s[16:19], s35 offen lds")
    A("buffer_load_dwordx4 v5, s[16:19], s38 offen offset:1024 lds")
    for mat in range(3):
        A("s_add_u32 m0, m0, 8192")
        A(f"s_add_u32 s38, s36, {24576 - 1024}")
        A("buffer_load_dwordx4 v6, s[20:23], s36 offen lds")
        A("buffer_load_dwordx4 v7, s[20:23], s38 offen offset:1024 lds")
        if mat < 2: A("s_add_u32 s36, s36, 1024")
    A("s_add_u32 s33, s33, 1")
    A("s_cmp_lt_u32 s33, 8")
    A("s_cbranch_scc1 F_ld")
    A("s_mov_b32 s8, s54")
    A("s_mov_b32 s9, s55")
    srd(A, 24, 54, FWS)
    for n in (16, 8, 0):
        A(f"s_waitcnt vmcnt({n})")
        A("s_barrier")
    stamp(A, 1)
    A("v_lshlrev_b32 v3, 4, v1")
    A("v_and_b32 v2, 31, v1")
    A("v_lshlrev_b32 v2, 6, v2")
    A("v_mov_b32 v8, 0")
    A("v_mov_b32 v9, 1")
    A("s_lshl_b32 s30, s10, 11")
    A(f"s_add_u32 s30, s30, {hex(F_FL + 16384)}")
    A("s_and_b32 s31, s11, 3")
    A("s_lshl2_add_u32 s31, s10, s31")
    A("s_lshl_b32 s31, s31, 17")
    A(f"s_add_u32 s31, s31, {hex(F_KV)}")
    A("s_lshr_b32 s32, s11, 2")
    A("s_lshl_b32 s32, s32, 3")
    A("s_add_u32 s32, s32, s15")
    A(f"s_mul_i32 s33, s15, {KVS}")
    A(f"s_add_u32 s33, s33, {L_KV}")
    A("s_barrier")
    flag_wait(A, 2, "s30", 10, 34)
    stamp(A, 2)
    order = [0, 32, 4, 36] + [x for p in zip(range(8, 32, 4), range(40, 64, 4)) for x in p]
    for n, s in enumerate(order):
        A(f"s_add_u32 s35, s32, {s}")
        A("s_and_b32 s35, s35, 63")
        A("s_lshl_b32 s35, s35, 11")
        A(f"s_add_u32 m0, s33, {s*KVS}")
        A("s_add_u32 s35, s35, s31")
        A("buffer_load_dwordx4 v3, s[24:27], s35 offen sc1 lds")
        A("buffer_load_dwordx4 v3, s[24:27], s35 offen offset:1024 sc1 lds")
        if n == 7:
            A("s_waitcnt vmcnt(8)")
            lds_add1(A, 8, 9, C_KV1)
    A("s_waitcnt vmcnt(0)")
    lds_add1(A, 8, 9, C_KV2)
    stamp(A, 3)
    outproj(A)

def outproj(A):
    A("s_and_b32 s30, s15, 1")
    A("s_lshr_b32 s31, s15, 1")
    A("v_and_b32 v7, 31, v1")
    A("v_lshrrev_b32 v12, 5, v1")
    A("s_lshl_b32 s32, s12, 6")
    A("s_lshl_b32 s33, s30, 5")
    A("s_add_u32 s32, s32, s33")
    A("s_lshl_b32 s33, s13, 6")
    A("s_lshl_b32 s34, s31, 5")
    A("s_add_u32 s33, s33, s34")
    A("v_lshlrev_b32 v10, 15, v12")
    A("v_lshl_add_u32 v10, v7, 2, v10")
    A("s_lshl_b32 s34, s33, 12")
    A("s_lshl_b32 s35, s32, 2")
    A("s_add_u32 s34, s34, s35")
    A(f"s_add_u32 s34, s34, {hex(F_YA)}")
    srd(A, 16, 46, 512 * 512 * 2)
    srd(A, 20, 50, 2048 * 512 * 2)
    A("v_lshrrev_b32 v4, 3, v1")
    A("v_lshlrev_b32 v4, 10, v4")
    A("v_and_b32 v5, 7, v1")
    A("v_bfe_u32 v6, v1, 4, 1")
    A("v_lshlrev_b32 v6, 2, v6")
    A("v_xor_b32 v5, v5, v6")
    A("v_lshl_add_u32 v4, v5, 4, v4")
    A("s_lshl_b32 s36, s15, 17")
    A("s_lshl_b32 s37, s13, 7")
    A("s_add_u32 s36, s36, s37")
    A("s_lshl_b32 s37, s15, 14")
    A(f"s_add_u32 s37, s37, {L_WO}")
    lds_wait(A, 8, C_FREE, 4, 11, 38, 39, sleep=32)
    lds_wait(A, 8, C_YA, 4, 11, 38, 39, sleep=8)
    A("s_mov_b32 s38, 16")
    A("F_wo:")
    A("s_mov_b32 m0, s37")
    A("s_add_u32 s37, s37, 1024")
    A("buffer_load_dwordx4 v4, s[16:19], s36 offen lds")
    A("s_add_u32 s36, s36, 8192")
    A("s_sub_u32 s38, s38, 1")
    A("s_cmp_lg_u32 s38, 0")
    A("s_cbranch_scc1 F_wo")
    A("s_lshl_b32 s36, s13, 11")
    A(f"s_add_u32 s36, s36, {hex(F_FL + 2*16384)}")
    flag_wait(A, 2, "s36", 11, 38, sleep=8)
    YA = 48
    for c in range(2):
        for p in range(4):
            A(f"s_add_u32 s36, s34, {(8*c + p)*8192}")
            A(f"buffer_load_dword v{YA+4*c+p}, v10, s[24:27], s36 offen sc1")
    A("s_lshl_b32 s36, s30, 7")
    A("v_lshl_add_u32 v11, v7, 2, s36")
    A(f"ds_read_b32 v11, v11 offset:{L_G}")
    A("s_lshl_b32 s36, s30, 10")
    A(f"s_add_u32 s36, s36, {L_O}")
    A("v_add_u32 v4, s36, v3")
    A("v_bfe_u32 v13, v1, 2, 2")
    A("v_lshl_add_u32 v14, v12, 2, v13")
    A("v_lshlrev_b32 v14, 7, v14")
    A("v_lshrrev_b32 v13, 1, v13")
    A("v_xor_b32 v13, s31, v13")
    A("v_lshl_add_u32 v14, v13, 6, v14")
    A("v_and_b32 v13, 16, v1")
    A("v_lshl_add_u32 v14, v13, 1, v14")
    A("v_and_b32 v13, 1, v1")
    A("v_lshl_add_u32 v14, v13, 4, v14")
    A("v_and_b32 v13, 2, v1")
    A("v_lshl_add_u32 v14, v13, 2, v14")
    A(f"v_add_u32 v5, {L_WO}, v14")
    A("v_lshlrev_b32 v6, 10, v7")
    A("v_lshl_add_u32 v6, v12, 4, v6")
    A("s_lshl_b32 s32, s32, 10")
    A("s_lshl_b32 s33, s33, 1")
    A("s_add_u32 s32, s32, s33")
    AC = 16; GA = 32
    for r in range(AC, AC + 16): A(f"v_mov_b32 v{r}, 0")
    A("s_waitcnt vmcnt(0) lgkmcnt(0)")
    for q in range(8):
        A(f"v_lshlrev_b32 v{GA+2*q}, 16, v{YA+q}")
        A(f"v_and_b32 v{GA+2*q+1}, 0xffff0000, v{YA+q}")
    for r in range(GA, GA + 16): A(f"v_mul_f32 v{r}, v11, v{r}")
    A("v_sub_f32 v11, 1.0, v11")
    A("v_cvt_pk_bf16_f32 v11, v11, v11")
    A("v_and_b32 v11, 0xffff0000, v11")
    A("s_lshl_b32 s34, s15, 17")
    A("s_lshl_b32 s35, s12, 11")
    A("s_add_u32 s34, s34, s35")
    A(f"s_add_u32 s34, s34, {hex(F_Q)}")
    A("s_lshl_b32 s35, s15, 12")
    A(f"s_add_u32 s35, s35, {L_O}")
    A("s_lshr_b32 s36, s12, 2")
    A("s_lshl_b32 s36, s36, 11")
    A(f"s_add_u32 s36, s36, {hex(F_FL + 3*16384)}")
    stamp(A, 4)
    A("s_barrier")
    A("s_setprio 3")
    flag_wait(A, 2, "s36", 13, 38)
    stamp(A, 5)
    for c in range(4):
        for hh in range(2):
            A(f"s_add_u32 m0, s35, {c*16384 + hh*2048}")
            A(f"s_add_u32 s37, s34, {(8*c + hh)*65536}")
            A("buffer_load_dwordx4 v3, s[24:27], s37 offen sc1 lds")
            A("buffer_load_dwordx4 v3, s[24:27], s37 offen offset:1024 sc1 lds")
    F = 56
    for c in range(4):
        for ks in range(8):
            b = F + 8 * ks
            A(f"ds_read_b64_tr_b16 {vr(b+4,2)}, v5 offset:{c*16384 + ks*2048}")
            A(f"ds_read_b64_tr_b16 {vr(b+6,2)}, v5 offset:{c*16384 + ks*2048+1024}")
        A(f"s_waitcnt vmcnt({12 - 4*c})")
        A("s_barrier")
        for ks in range(8):
            A(f"ds_read_b128 {vr(F+8*ks,4)}, v4 offset:{c*16384 + ks*2048}")
        for ks in range(8):
            A(f"s_waitcnt lgkmcnt({7-ks})")
            A(mfma32(AC, F + 8 * ks + 4, F + 8 * ks))
    A("s_nop 7")
    A("s_nop 3")
    for r in range(16): A(f"v_fma_f32 v{AC+r}, v{AC+r}, v11, v{GA+r}")
    for p in range(8): A(f"v_cvt_pk_bf16_f32 v{GA+p}, v{AC+2*p}, v{AC+2*p+1}")
    A(f"buffer_store_dwordx4 {vr(GA,4)}, v6, s[20:23], s32 offen")
    A(f"buffer_store_dwordx4 {vr(GA+4,4)}, v6, s[20:23], s32 offen offset:32")
    dump(A, 0, 6)
    A("s_endpgm")

def misc(A):
    A("s_sub_u32 s16, s15, 6")
    srd(A, 36, 52, 256)
    srd(A, 40, 48, 1024)
    A("v_mov_b32 v8, 0")
    A("v_mov_b32 v9, 1")
    A("v_and_b32 v2, 7, v1")
    A("v_bfe_u32 v3, v1, 4, 1")
    A("v_xor_b32 v2, v2, v3")
    A("v_lshlrev_b32 v2, 4, v2")
    A("s_cmp_eq_u32 s16, 0")
    A("s_cbranch_scc1 F_mg")
    A("s_cmp_lt_u32 s2, 16")
    A("s_cbranch_scc0 F_mg")
    A("v_lshlrev_b32 v3, 6, v1")
    A("s_lshl_b32 s30, s2, 12")
    A(f"s_add_u32 s30, s30, {hex(F_FL)}")
    A("buffer_store_dword v8, v3, s[24:27], s30 offen sc1")
    A("F_mg:")
    GW = 32
    for i in range(8):
        A(f"s_add_u32 s30, s14, {i}")
        A("s_and_b32 s30, s30, 7")
        A("s_lshl_b32 s30, s30, 7")
        A(f"buffer_load_dwordx4 {vr(GW+4*i,4)}, v2, s[40:43], s30 offen")
    A("s_cmp_eq_u32 s16, 0")
    A("s_cbranch_scc1 F_m0")
    A("s_lshl_b32 s30, s2, 2")
    A("s_waitcnt vmcnt(0)")
    A("s_cmp_lt_u32 s2, 16")
    A("s_cbranch_scc0 F_m1")
    A("s_mov_b64 exec, 1")
    A("buffer_store_dword v9, v8, s[36:39], s30 offen sc1")
    A("s_mov_b64 exec, -1")
    A("s_branch F_m1")
    A("F_m0:")
    A("v_lshlrev_b32 v2, 4, v1")
    A("v_cmp_gt_u32 vcc, 40, v1")
    for r in range(100, 104): A(f"v_mov_b32 v{r}, 0")
    A("s_and_saveexec_b64 s[30:31], vcc")
    A("ds_write_b128 v2, v[100:103]")
    A("s_mov_b64 exec, s[30:31]")
    A("s_getpc_b64 s[30:31]")
    A("F_pc:")
    A("s_lshl_b32 s32, s11, 10")
    A("s_min_u32 s32, s32, F_codeend - F_start - 1024")
    A("s_sub_u32 s30, s30, F_pc - F_start")
    A("s_subb_u32 s31, s31, 0")
    A("v_add_u32 v2, s32, v2")
    A("global_load_dwordx4 v[12:15], v2, s[30:31]")
    for k, h in enumerate(HOLES):
        A(f"s_mov_b32 s32, {hex(h)}")
        A(f"buffer_load_dword v{16+k}, v8, s[24:27], s32 offen")
    A("global_load_dword v22, v8, s[46:47]")
    A("global_load_dword v23, v8, s[50:51]")
    A("F_m1:")
    A("s_lshl_b32 s30, s16, 12")
    A(f"s_add_u32 s30, s30, {L_RING}")
    A("v_lshlrev_b32 v24, 4, v1")
    A("v_add_u32 v24, s30, v24")
    for q in range(1, 4):
        A(f"v_xor_b32 v{24+q}, {q*1024 + q*32}, v24")
    A("v_lshrrev_b32 v3, 4, v1")
    A("v_bfe_u32 v4, v1, 2, 2")
    A("v_lshl_add_u32 v5, v4, 2, v3")
    A("v_and_b32 v4, 2, v4")
    A("v_lshrrev_b32 v6, 1, v3")
    A("v_or_b32 v4, v4, v6")
    A("v_bfe_u32 v6, v1, 1, 1")
    A("s_lshl_b32 s30, s16, 2")
    A("v_or_b32 v6, s30, v6")
    A("v_xor_b32 v6, v6, v4")
    A("v_lshlrev_b32 v6, 4, v6")
    A("v_lshl_add_u32 v6, v5, 7, v6")
    A("v_and_b32 v4, 1, v1")
    A("v_lshl_add_u32 v6, v4, 3, v6")
    A(f"v_add_u32 v28, {L_RING}, v6")
    A("v_xor_b32 v29, 64 + 2048, v28")
    A("v_xor_b32 v30, 32, v28")
    A("v_xor_b32 v31, 32, v29")
    A("v_and_b32 v4, 15, v1")
    A("v_lshlrev_b32 v4, 12, v4")
    A("v_lshl_add_u32 v7, v3, 4, v4")
    A("s_lshl_b32 s31, s14, 18")
    A("s_lshl_b32 s32, s16, 17")
    A("s_add_u32 s31, s31, s32")
    A("s_lshl_b32 s32, s12, 7")
    A("s_add_u32 s31, s31, s32")
    A(f"s_add_u32 s31, s31, {hex(F_UT)}")
    A("s_add_u32 s32, s31, 0x10000")
    A("s_lshl_b32 s33, s14, 5")
    A("s_add_u32 s33, s33, s12")
    A("s_lshl_b32 s33, s33, 6")
    A(f"s_add_u32 s33, s33, {hex(F_FL)}")
    A("v_and_b32 v2, 15, v1")
    A("v_lshlrev_b32 v2, 2, v2")
    GA = 64
    for q in range(4): A(f"v_mov_b32 v{GA+q}, 0")
    X = 68
    UT = 84
    A("s_waitcnt lgkmcnt(0)")
    for i in range(8):
        A("s_barrier")
        for q in range(4):
            A(f"ds_read_b128 {vr(X+4*q,4)}, v{24+q} offset:{(i&1)*32768}")
        if i == 0:
            for cg in range(2):
                for w in range(2):
                    for eh in range(2):
                        A(f"ds_read_b64_tr_b16 {vr(UT+8*cg+4*w+2*eh,2)}, v{28+2*cg+eh} offset:{w*4096}")
        if i == 2:
            A("s_cmp_eq_u32 s16, 0")
            A("s_cbranch_scc0 F_m2")
            A("s_mov_b64 exec, 1")
            A("buffer_store_dword v9, v8, s[24:27], s33 offen sc1")
            A("s_mov_b64 exec, -1")
            A("F_m2:")
        A("s_waitcnt vmcnt(8) lgkmcnt(0)" if i == 0 else "s_waitcnt lgkmcnt(0)")
        if i == 0:
            for cg in range(2):
                for w in range(2):
                    A(f"buffer_store_dwordx4 {vr(UT+8*cg+4*w,4)}, v7, s[24:27], s{31+cg} offen offset:{w*64} sc1")
        for p in range(4):
            for q in range(4):
                A(f"v_dot2_f32_bf16 v{GA+q}, v{X+4*q+p}, v{GW+4*i+p}, v{GA+q}")
        if i & 1:
            for q in range(4): A(f"v_xor_b32 v{24+q}, 0x10000, v{24+q}")
        if i == 1:
            flag_wait(A, 2, "0", 104, 34, srd_="s[36:39]", sleep=2)
    for m in ("quad_perm:[1,0,3,2]", "quad_perm:[2,3,0,1]", "row_half_mirror"):
        for q in range(4):
            A(f"v_add_f32_dpp v{GA+q}, v{GA+q}, v{GA+q} {m} row_mask:0xf bank_mask:0xf")
    for q in range(4): A(f"v_cvt_pk_bf16_f32 v{GA+q}, v{GA+q}, v{GA+q}")
    for q in range(4): A(f"v_and_b32 v{GA+q}, 0xffff0000, v{GA+q}")
    for q in range(4): A(f"v_mul_f32 v{GA+q}, {hex(LOG2E ^ 0x80000000)}, v{GA+q}")
    for q in range(4): A(f"v_exp_f32 v{GA+q}, v{GA+q}")
    for q in range(4): A(f"v_add_f32 v{GA+q}, 1.0, v{GA+q}")
    for q in range(4): A(f"v_rcp_f32 v{GA+q}, v{GA+q}")
    A("v_lshrrev_b32 v2, 3, v1")
    A("s_lshl_b32 s30, s16, 7")
    A("v_lshl_add_u32 v2, v2, 2, s30")
    for q in range(4): A(f"v_cvt_pk_bf16_f32 v{GA+q}, v{GA+q}, v{GA+q}")
    for q in range(4): A(f"v_and_b32 v{GA+q}, 0xffff0000, v{GA+q}")
    for q in range(4): A(f"ds_write_b32 v2, v{GA+q} offset:{L_G + 32*q}")

def cmul(A, R, X, E, T):
    A(f"v_pk_mul_f32 {vr(T,2)}, {vr(X,2)}, {vr(E,2)} op_sel:[0,0] op_sel_hi:[1,0]")
    A(f"v_pk_fma_f32 {vr(R,2)}, {vr(X,2)}, {vr(E,2)}, {vr(T,2)} op_sel:[1,1,0] op_sel_hi:[0,1,1] neg_lo:[1,0,0]")
def cmul2(A, a, b):
    for (R, X, E, T) in (a, b):
        A(f"v_pk_mul_f32 {vr(T,2)}, {vr(X,2)}, {vr(E,2)} op_sel:[0,0] op_sel_hi:[1,0]")
    for (R, X, E, T) in (a, b):
        A(f"v_pk_fma_f32 {vr(R,2)}, {vr(X,2)}, {vr(E,2)}, {vr(T,2)} op_sel:[1,1,0] op_sel_hi:[0,1,1] neg_lo:[1,0,0]")

def kgen(A):
    A(f"s_load_dwordx16 s[28:43], s[0:1], {KA['Are']}")
    A("s_sub_u32 s16, s15, 4")
    A("s_lshl1_add_u32 s17, s2, s16")
    A("s_lshl_b32 s18, s17, 8")
    A("v_lshlrev_b32 v2, 2, v1")
    A("v_add_u32 v2, s18, v2")
    A("s_lshl_b32 s18, s17, 1")
    A("v_mov_b32 v3, s18")
    A("s_waitcnt lgkmcnt(0)")
    P = 4
    for k in range(6):
        A(f"global_load_dword v{P+k}, v2, s[{28+2*k}:{29+2*k}]")
    A("global_load_ushort v10, v3, s[40:41]")
    A("global_load_ushort v11, v3, s[42:43]")
    A(f"s_mul_i32 s19, s16, {TABW}")
    A(f"s_add_u32 s19, s19, {L_TAB}")
    XE = 32 * ROW
    A("v_and_b32 v16, 31, v1")
    A("v_lshrrev_b32 v17, 5, v1")
    A("v_lshlrev_b32 v17, 4, v17")
    A(f"v_mul_u32_u24 v14, {ROW}, v16")
    A("v_add3_u32 v14, v14, v17, s19")
    A("v_bfe_u32 v18, v1, 2, 1")
    A("v_bfe_u32 v19, v1, 4, 1")
    A("v_lshl_add_u32 v18, v19, 1, v18")
    A("v_and_b32 v19, 3, v1")
    A("v_bfe_u32 v20, v1, 3, 1")
    A("v_lshl_add_u32 v19, v20, 2, v19")
    A("v_mov_b32 v20, 0x22111000")
    A("v_mov_b32 v21, 0x43222100")
    A("v_mov_b32 v22, 0x76543210")
    A("v_cmp_eq_u32 vcc, 1, v18")
    A("v_lshlrev_b32 v23, 2, v19")
    A("v_lshlrev_b32 v24, 3, v18")
    A("v_cndmask_b32 v20, v20, v21, vcc")
    A("v_cmp_eq_u32 vcc, 0, v18")
    A("s_mov_b32 s20, 0x100d0800")
    A("v_bfe_u32 v24, s20, v24, 8")
    A("v_cndmask_b32 v20, v20, v22, vcc")
    A("v_bfe_u32 v20, v20, v23, 4")
    A("v_add_u32 v20, v20, v24")
    A(f"s_add_u32 s20, s19, {XE}")
    A(f"v_mul_u32_u24 v12, {ROW}, v20")
    A("v_add3_u32 v12, v12, v17, s20")
    A("v_cmp_lt_u32 vcc, 4, v19")
    A("v_lshlrev_b32 v18, 1, v18")
    A("v_add_u32 v18, 19, v18")
    A("v_addc_co_u32 v18, vcc, 0, v18, vcc")
    A(f"v_mul_u32_u24 v13, {ROW}, v18")
    A("v_add3_u32 v13, v13, v17, s20")
    AC = 64
    for r in range(AC, AC + 32): A(f"v_mov_b32 v{r}, 0")
    A("s_mov_b32 m0, s19")
    A("s_waitcnt vmcnt(0)")
    stamp(A, 1)
    A("v_lshlrev_b32 v10, 16, v10")
    A(f"v_mul_f32 v10, {hex(LOG2E)}, v10")
    A("v_exp_f32 v10, v10")
    A("v_lshlrev_b32 v11, 16, v11")
    A("v_cvt_pk_bf16_f32 v10, v10, v10")
    A("v_and_b32 v10, 0xffff0000, v10")
    A("v_cmp_eq_u32 vcc, 0, v1")
    A("s_mov_b32 s21, 2")
    A("s_nop 0")
    A(f"v_cndmask_b32 v{AC}, v{AC}, v11, vcc")
    A("F_kloop:")
    U = 16
    for k in range(6):
        A(f"v_and_b32 v{U+k}, 0xffff0000, v{P+k}")
        A(f"v_lshlrev_b32 v{P+k}, 16, v{P+k}")
    for k in range(4):
        A(f"v_mul_f32 v{U+k}, v10, v{U+k}")
    W0 = 22; T0 = 24; T1 = 26
    cmul(A, W0, U + 4, U + 2, T0)
    E1 = 28; E2 = 30; E4 = 32; E8 = 34; E16 = 36; E256 = 38
    for n, (k, E) in enumerate(((1, E1), (8, E8), (256, E256))):
        A(f"v_mul_f32 v{40+n}, {f32hex(k*math.log2(math.e))}, v{U}")
        A(f"v_mul_f32 v{43+n}, {f32hex(k/(2*math.pi))}, v{U+1}")
    for n in range(3):
        A(f"v_exp_f32 v{40+n}, v{40+n}")
        A(f"v_fract_f32 v{43+n}, v{43+n}")
    for n, E in enumerate((E1, E8, E256)):
        A(f"v_cos_f32 v{E}, v{43+n}")
        A(f"v_sin_f32 v{E+1}, v{43+n}")
    for n, E in enumerate((E1, E8, E256)):
        A(f"v_mul_f32 v{E}, v{40+n}, v{E}")
        A(f"v_mul_f32 v{E+1}, v{40+n}, v{E+1}")
    cmul2(A, (E2, E1, E1, T0), (E16, E8, E8, T1))
    YA_, YB_ = 42, 44
    C0, C1 = 46, 47
    A(f"v_mov_b32 v{C0}, 0x00003f80")
    A(f"v_cvt_pk_bf16_f32 v{C1}, v{E8}, v{E8+1}")
    A(f"ds_write_addtid_b32 v{C0} offset:0")
    A(f"ds_write_addtid_b32 v{C1} offset:{ROW}")
    cmul2(A, (E4, E2, E2, T0), (YB_, E8, E16, T1))
    A(f"v_cvt_pk_bf16_f32 v{C0+2}, v{E16}, v{E16+1}")
    A(f"v_cvt_pk_bf16_f32 v{C1+2}, v{YB_}, v{YB_+1}")
    A(f"ds_write_addtid_b32 v{C0+2} offset:{2*ROW}")
    A(f"ds_write_addtid_b32 v{C1+2} offset:{3*ROW}")
    for j in range(4, 32, 2):
        if j in (8, 28): A("s_barrier")
        src = E16 if j == 4 else YA_
        cmul2(A, (YA_, src, E16, T0), (YB_, YB_, E16, T1))
        o = 2 * ((j >> 1) & 1)
        A(f"v_cvt_pk_bf16_f32 v{C0+o}, v{YA_}, v{YA_+1}")
        A(f"v_cvt_pk_bf16_f32 v{C1+o}, v{YB_}, v{YB_+1}")
        A(f"ds_write_addtid_b32 v{C0+o} offset:{j*ROW}")
        A(f"ds_write_addtid_b32 v{C1+o} offset:{(j+1)*ROW}")
    cnt = [0]
    def put(rg, entry):
        c = 46 + (cnt[0] & 3); cnt[0] += 1
        A(f"v_cvt_pk_bf16_f32 v{c}, v{rg}, -v{rg+1}")
        A(f"ds_write_addtid_b32 v{c} offset:{XE + entry*ROW}")
    PA = 42
    put(W0, 0)
    bases = {1: 8, 2: 13, 3: 16, 4: 19, 5: 21, 6: 23, 7: 25}
    BK = [52, 54, 56, 58, 60, 62, 44]
    for s in range(1, 8):
        cmul2(A, (PA, W0 if s == 1 else PA, E1, T0), (BK[s-1], W0 if s == 1 else BK[s-2], E256, T1))
        put(PA, s); put(BK[s-1], bases[s])
    A("s_barrier")
    seq_a = [(BK[0], E2, 9), (BK[0], E2, 10), (BK[0], E2, 11), (BK[0], E2, 12), (BK[3], E8, 20), (BK[5], E8, 24)]
    seq_b = [(BK[1], E4, 14), (BK[1], E4, 15), (BK[2], E4, 17), (BK[2], E4, 18), (BK[4], E8, 22), (BK[6], E8, 26)]
    for (ra, ea, na), (rb, eb, nb) in zip(seq_a, seq_b):
        cmul2(A, (ra, ra, ea, T0), (rb, rb, eb, T1))
        put(ra, na); put(rb, nb)
    A("s_waitcnt lgkmcnt(0)")
    F = [16, 28]
    def rd(ks, st):
        A(f"ds_read_b128 {vr(F[st],4)}, v12 offset:{ks*32}")
        A(f"ds_read_b128 {vr(F[st]+8,4)}, v14 offset:{ks*32}")
        A(f"ds_read_b128 {vr(F[st]+4,4)}, v13 offset:{ks*32}")
    rd(0, 0)
    for ks in range(8):
        st = ks & 1
        if ks < 7:
            rd(ks + 1, st ^ 1)
            A("s_waitcnt lgkmcnt(3)")
        else:
            A("s_waitcnt lgkmcnt(0)")
        A(mfma32(AC, F[st], F[st] + 8))
        A(mfma32(AC + 16, F[st] + 4, F[st] + 8))
        if ks == 3: A("s_barrier")
    A("s_sub_u32 s21, s21, 1")
    A("s_cmp_lg_u32 s21, 0")
    A("s_cbranch_scc1 F_kloop")
    stamp(A, 2)
    A("v_and_b32 v2, 31, v1")
    A("v_lshlrev_b32 v3, 6, v2")
    A("s_lshr_b32 s20, s2, 5")
    A("s_lshl_b32 s20, s20, 11")
    A(f"s_add_u32 s20, s20, {hex(F_FL)}")
    flag_wait(A, 3, "s20", 4, 21)
    A("v_lshlrev_b32 v3, 4, v1")
    A("s_lshl_b32 s20, s17, 12")
    A(f"s_add_u32 s20, s20, {hex(F_UT)}")
    A("s_add_u32 m0, s19, 512")
    A("v_and_b32 v4, 1, v1")
    for q in range(4):
        A(f"buffer_load_dwordx4 v3, s[24:27], s20 offen offset:{q*1024} sc1 lds")
    A("v_cmp_eq_u32 vcc, 1, v4")
    A("v_add_u32 v3, s19, v3")
    for r in range(4): A(f"v_mov_b32 v{16+r}, 0")
    A(f"v_cndmask_b32 v{AC+16+4}, v{AC+16+4}, v{AC+16+5}, vcc")
    A(f"v_cndmask_b32 v{AC+16+12}, v{AC+16+12}, v{AC+16+13}, vcc")
    A("v_lshrrev_b32 v4, 5, v1")
    A("v_lshl_add_u32 v4, v4, 12, v3")
    A("ds_write_b128 v4, v[16:19]")
    for q in range(4):
        a = AC + 8 * q
        for p in range(4):
            A(f"v_cvt_pk_bf16_f32 v{a+p}, v{a+2*p}, v{a+2*p+1}")
        A(f"ds_write_b128 v3, {vr(a,4)} offset:{5120 + q*1024}")
    A("s_waitcnt vmcnt(0)")

def conv(A):
    A("s_sub_u32 s16, s15, 4")
    AC = 64
    UB = L_TAB + 512
    KB = L_TAB + 5120
    A("v_and_b32 v7, 31, v1")
    A("v_lshrrev_b32 v8, 5, v1")
    A("v_lshl_add_u32 v4, v8, 2, v7")
    A("v_lshlrev_b32 v4, 4, v4")
    A("s_lshl_b32 s30, s16, 9")
    A(f"s_add_u32 s31, s30, {UB - 64 - 512}")
    A("v_add_u32 v5, s31, v4")
    A(f"s_sub_u32 s31, {UB - 64 - 512 + 7*512}, s30")
    A("v_add_u32 v4, s31, v4")
    A("v_and_b32 v6, 16, v1")
    A("v_lshlrev_b32 v6, 1, v6")
    A("v_and_b32 v9, 3, v1")
    A("v_lshl_add_u32 v6, v9, 3, v6")
    A("v_bfe_u32 v9, v1, 2, 2")
    A("v_lshl_add_u32 v9, v8, 3, v9")
    A("v_lshlrev_b32 v9, 3, v9")
    A("v_sub_u32 v6, v6, v9")
    A(f"v_add_u32 v6, {KB + 32}, v6")
    A("s_waitcnt lgkmcnt(0)")
    for r in range(AC, AC + 64): A(f"v_mov_b32 v{r}, 0")
    A("s_add_u32 s30, s16, 1")
    A("s_setprio 3")
    stamp(A, 3)
    A("s_barrier")
    SETS = [16, 40]
    def rd(nn, st, both):
        b = SETS[st]
        for ch in range(2):
            A(f"ds_read_b64_tr_b16 {vr(b+4*ch,2)}, v6 offset:{nn*128 + 32 + ch*TABW}")
            A(f"ds_read_b64_tr_b16 {vr(b+4*ch+2,2)}, v6 offset:{nn*128 + ch*TABW}")
            A(f"ds_read_b128 {vr(b+8+4*ch,4)}, v4 offset:{(4-nn)*128 + ch*TABW}")
        if both:
            for ch in range(2):
                A(f"ds_read_b128 {vr(b+16+4*ch,4)}, v5 offset:{(4-nn)*128 + ch*TABW}")
    def mm(st, both):
        b = SETS[st]
        for ch in range(2):
            A(mfma32(AC + 32 * ch, b + 8 + 4 * ch, b + 4 * ch))
        if both:
            for ch in range(2):
                A(mfma32(AC + 32 * ch + 16, b + 16 + 4 * ch, b + 4 * ch))
    rd(0, 0, True)
    A("F_c1:")
    A("s_sub_u32 s30, s30, 1")
    A("s_cmp_lg_u32 s30, 0")
    for nn in range(4):
        rd(nn + 1, (nn + 1) & 1, True)
        A("s_waitcnt lgkmcnt(8)")
        mm(nn & 1, True)
    A("v_add_u32 v6, 512, v6")
    A("v_subrev_u32 v4, 512, v4")
    A("v_subrev_u32 v5, 512, v5")
    A("s_cbranch_scc1 F_c1")
    A("s_lshl_b32 s30, s16, 1")
    A("s_sub_u32 s30, 7, s30")
    A("F_c2:")
    A("s_sub_u32 s30, s30, 1")
    A("s_cmp_lg_u32 s30, 0")
    for nn in range(4):
        rd(nn + 1, (nn + 1) & 1, False)
        A("s_waitcnt lgkmcnt(6)")
        mm(nn & 1, False)
    A("v_add_u32 v6, 512, v6")
    A("v_subrev_u32 v4, 512, v4")
    A("s_cbranch_scc1 F_c2")
    A("s_waitcnt lgkmcnt(0)")
    A("s_nop 7")
    T = 16
    def lvl(dst, src, add):
        for k in range(4):
            A(f"v_add_f32_dpp v{dst(k,0)}, v{src(k,0)}, v{add(k,0)} wave_shr:1 row_mask:0xf bank_mask:0xf bound_ctrl:0")
        for g in range(1, 4):
            for k in range(4):
                A(f"v_add_f32_dpp v{dst(k,g)}, v{src(k,g-1)}, v{add(k,g)} wave_ror:1 row_mask:0x1 bank_mask:0x1")
            for k in range(4):
                A(f"v_add_f32_dpp v{dst(k,g)}, v{src(k,g)}, v{add(k,g)} wave_shr:1 row_mask:0xf bank_mask:0xf")
    Z = lambda rho: (lambda k, g: AC + 16 * k + 4 * g + rho)
    TT = lambda k, g: T + 4 * k + g
    lvl(TT, Z(3), Z(2))
    lvl(Z(2), TT, Z(1))
    A("s_lshl_b32 s30, s16, 5")
    A(f"s_add_u32 s31, s30, {L_CARRY}")
    A(f"s_sub_u32 s32, {L_CARRY + 7*32}, s30")
    A("v_mov_b32 v4, s32")
    A("v_mov_b32 v5, s31")
    A("v_mov_b32 v8, 0")
    A("v_mov_b32 v9, 1")
    A("s_mov_b32 exec_lo, 0")
    A("s_mov_b32 exec_hi, 0x80000000")
    for k in range(4):
        ch, lo = k >> 1, k & 1
        o = (32 + 16 * ch) // 4
        A(f"ds_write2_b32 v{4+lo}, v{Z(2)(k,3)}, v{TT(k,3)} offset0:{o} offset1:{o+1}")
        A(f"ds_write_b32 v{4+lo}, v{Z(3)(k,3)} offset:{4*o+8}")
    A(f"ds_add_u32 v8, v9 offset:{C_CARRY}")
    A("s_mov_b64 exec, -1")
    lvl(Z(1), Z(2), Z(0))
    A("v_min_u32 v7, 3, v1")
    A("v_lshl_add_u32 v4, v7, 2, v4")
    A("v_lshl_add_u32 v5, v7, 2, v5")
    lds_wait(A, 8, C_CARRY, 4, 10, 33, 34)
    for k in range(4):
        ch, lo = k >> 1, k & 1
        A(f"ds_read_b32 v{32+k}, v{4+lo} offset:{16*ch}")
    A("v_lshlrev_b32 v3, 2, v1")
    A("s_lshl_b32 s34, s2, 13")
    A(f"s_add_u32 s34, s34, {hex(F_YA)}")
    A("s_lshl_b32 s30, s16, 10")
    A("s_add_u32 s35, s34, s30")
    A("s_add_u32 s34, s34, 7168")
    A("s_sub_u32 s34, s34, s30")
    A("s_waitcnt lgkmcnt(0)")
    for k in range(4):
        A(f"v_add_f32 v{Z(1)(k,0)}, v{Z(1)(k,0)}, v{32+k}")
    for lo in range(2):
        for g in range(4):
            A(f"v_cvt_pk_bf16_f32 v{40+4*lo+g}, v{Z(1)(lo,g)}, v{Z(1)(2+lo,g)}")
            A(f"buffer_store_dword v{40+4*lo+g}, v3, s[24:27], s{34+lo} offen offset:{g*256} sc1")
    A("s_lshl_b32 s40, s2, 6")
    A(f"s_add_u32 s40, s40, {hex(F_FL + 2*16384)}")
    A(f"s_mov_b32 s41, {C_YA}")
    stamp(A, 4)

def gemm(A):
    ACC = 16
    SET = [64, 92]
    A("v_and_b32 v2, 15, v1")
    A("v_lshrrev_b32 v3, 4, v1")
    A("v_lshrrev_b32 v7, 2, v2")
    A("v_and_b32 v8, 3, v1")
    A("v_lshl_add_u32 v9, v7, 3, v8")
    A("v_lshrrev_b32 v10, 1, v8")
    A("v_lshl_or_b32 v10, v7, 1, v10")
    A("v_xor_b32 v10, v10, v3")
    A("v_lshlrev_b32 v10, 4, v10")
    A("v_lshl_add_u32 v4, v9, 7, v10")
    A(f"v_add_u32 v4, {L_RING}, v4")
    A("v_xor_b32 v5, 64, v4")
    A("v_lshl_add_u32 v10, v3, 3, v7")
    A("v_lshlrev_b32 v10, 7, v10")
    A("v_lshrrev_b32 v11, 1, v7")
    A("v_and_b32 v12, 1, v3")
    A("v_lshl_or_b32 v11, v12, 1, v11")
    A("v_xor_b32 v11, s15, v11")
    A("v_lshl_add_u32 v10, v11, 5, v10")
    A("v_lshl_add_u32 v10, v8, 3, v10")
    A(f"v_add_u32 v6, {L_RING + 8192}, v10")
    A("v_lshl_add_u32 v9, v12, 2, v9")
    A("v_and_b32 v10, 32, v1")
    A("v_add_lshl_u32 v7, v9, v10, 4")
    A("v_lshlrev_b32 v3, 4, v1")
    for r in range(ACC, ACC + 48): A(f"v_mov_b32 v{r}, 0")
    for r in range(SET[1], SET[1] + 28): A(f"v_mov_b32 v{r}, 0")
    A("s_lshl2_add_u32 s30, s13, s15")
    A("s_lshl_b32 s31, s30, 16")
    A("s_lshl_b32 s32, s12, 11")
    A("s_add_u32 s31, s31, s32")
    A("s_lshl_b32 s32, s31, 1")
    A(f"s_add_u32 s31, s31, {hex(F_Q)}")
    A(f"s_add_u32 s32, s32, {hex(F_KV)}")
    A(f"s_mov_b32 s38, {hex(QSCALE)}")
    A(f"s_mov_b32 s39, {hex(QSCALE)}")
    A("s_lshl_b32 s40, s13, 5")
    A("s_add_u32 s40, s40, s12")
    A("s_lshl_b32 s40, s40, 6")
    A(f"s_add_u32 s40, s40, {hex(F_FL + 16384)}")
    A(f"s_mov_b32 s41, {C_QKV}")
    A("s_mov_b32 s36, 4")
    stamp(A, 1)
    def step(ks, st, par):
        b = SET[st]; c = SET[st ^ 1]; o = par * 32768
        rds = []
        for mat in range(3):
            for e in range(2):
                rds.append(f"ds_read_b64_tr_b16 {vr(b+16+4*mat+2*e,2)}, v6 offset:{o + mat*8192 + ks*4096 + e*512}")
        for mt in range(4):
            rds.append(f"ds_read_b128 {vr(b+4*mt,4)}, v{4+ks} offset:{o + (mt&1)*512 + (mt>>1)*4096}")
        n = 0
        for mat in range(3):
            for mt in range(4):
                d = ACC + 16 * mat + 4 * mt
                x = c + 4 * mt; w = c + 16 + 4 * mat
                if n < len(rds): A(rds[n])
                n += 1
                A(mfma16(d, x, w) if mat == 2 else mfma16(d, w, x))
    A(".p2align 3")
    A("F_gl:")
    for par in range(2):
        A("s_waitcnt lgkmcnt(0)")
        A("s_barrier")
        step(0, 0, par)
        A("s_waitcnt lgkmcnt(0)")
        A("s_sub_u32 s36, s36, 1" if par == 0 else "s_cmp_lg_u32 s36, 0")
        step(1, 1, par)
    for r in (4, 5, 6): A(f"v_xor_b32 v{r}, 0x10000, v{r}")
    A("s_cbranch_scc1 F_gl")
    A("s_waitcnt lgkmcnt(0)")
    c = SET[1]
    for mat in (1, 2, 0):
        for mt in range(4):
            d = ACC + 16 * mat + 4 * mt
            x = c + 4 * mt; w = c + 16 + 4 * mat
            A(mfma16(d, x, w) if mat == 2 else mfma16(d, w, x))
    stamp(A, 2)
    PK = 64
    def pack(mat, dst):
        for mt in range(4):
            d = ACC + 16 * mat + 4 * mt
            A(f"v_cvt_pk_bf16_f32 v{dst+2*mt}, v{d}, v{d+1}")
            A(f"v_cvt_pk_bf16_f32 v{dst+2*mt+1}, v{d+2}, v{d+3}")
    def swaps(dst):
        for gp in range(2):
            A(f"v_permlane16_swap_b32 v{dst+4*gp}, v{dst+4*gp+2}")
            A(f"v_permlane16_swap_b32 v{dst+4*gp+1}, v{dst+4*gp+3}")
    pack(1, PK)
    pack(2, PK + 8)
    swaps(PK)
    for gp in range(2):
        A(f"buffer_store_dwordx4 {vr(PK+8+4*gp,4)}, v3, s[24:27], s32 offen offset:{gp*2048+1024} sc1")
        A(f"buffer_store_dwordx4 {vr(PK+4*gp,4)}, v7, s[24:27], s32 offen offset:{gp*2048} sc1")
    for r in range(ACC, ACC + 16, 2):
        A(f"v_pk_mul_f32 {vr(r,2)}, {vr(r,2)}, s[38:39]")
    pack(0, PK + 16)
    A("s_nop 0")
    swaps(PK + 16)
    for gp in range(2):
        A(f"buffer_store_dwordx4 {vr(PK+16+4*gp,4)}, v7, s[24:27], s31 offen offset:{gp*1024} sc1")
    stamp(A, 3)
    A("s_barrier")
    A("v_mov_b32 v16, 0x3f803f80")
    for r in range(17, 20): A(f"v_mov_b32 v{r}, v16")
    for r in range(20, 24): A(f"v_mov_b32 v{r}, 0")
    A(f"v_mul_u32_u24 v6, {KVS}, v1")
    A(f"v_add_u32 v6, {L_KV + 2048}, v6")
    A("ds_write_b128 v6, v[16:19]")
    A("ds_write_b128 v6, v[20:23] offset:16")
    A("s_waitcnt lgkmcnt(0)")
    A("v_mov_b32 v8, 0")
    A("v_mov_b32 v9, 1")
    lds_add1(A, 8, 9, C_KV1)

SA, SB, OA, OB, QA, QB = 16, 32, 48, 64, 80, 84
FS = [88, 100]
VIDX, VK, VV0, VV1 = 2, 4, 5, 6
def pv(O, V, S):
    return f"v_smfmac_f32_32x32x32_bf16 {vr(O,16)}, {vr(V,4)}, {vr(S,8)}, v{VIDX}"

def attention(A):
    A("v_mov_b32 v10, s41")
    A("v_lshlrev_b32 v3, 4, v1")
    A("s_and_b32 s30, s11, 3")
    A("s_lshl2_add_u32 s30, s10, s30")
    A("s_lshr_b32 s31, s11, 2")
    A("s_and_b32 s32, s15, 3")
    A("s_lshr_b32 s33, s15, 2")
    A("s_lshl2_add_u32 s34, s31, s32")
    A("s_lshl_b32 s34, s34, 11")
    A("s_lshl_b32 s35, s30, 16")
    A("s_add_u32 s34, s34, s35")
    A(f"s_add_u32 s34, s34, {hex(F_Q)}")
    A(f"s_mul_i32 s35, s33, {32*KVS}")
    A(f"s_add_u32 s35, s35, {L_KV}")
    A("v_and_b32 v7, 31, v1")
    A("v_lshrrev_b32 v11, 5, v1")
    A(f"v_add_u32 v{VK}, s35, v3")
    A("v_lshlrev_b32 v11, 8, v11")
    A("v_lshl_add_u32 v11, v7, 4, v11")
    A("v_add_u32 v11, 1024, v11")
    A("v_and_b32 v12, 27, v7")
    A("v_cmp_eq_u32 vcc, 16, v12")
    A("v_mov_b32 v12, 2064")
    A("v_mov_b32 v13, 2048")
    A("v_cndmask_b32 v12, v12, v13, vcc")
    A("v_cmp_gt_u32 vcc, 16, v7")
    A("v_add_u32 v13, 512, v11")
    A(f"v_mov_b32 v{VIDX}, 0xdddddddd")
    A(f"v_cndmask_b32 v{VV0}, v12, v11, vcc")
    A(f"v_cndmask_b32 v{VV1}, v12, v13, vcc")
    A(f"v_add_u32 v{VV0}, s35, v{VV0}")
    A(f"v_add_u32 v{VV1}, s35, v{VV1}")
    for r in range(SB + 8, SB + 48): A(f"v_mov_b32 v{r}, 0")
    for r in range(FS[1] + 8, FS[1] + 12): A(f"v_mov_b32 v{r}, 0")
    A("s_waitcnt vmcnt(0)")
    sk = lab("SG")
    A("s_mov_b64 exec, 1")
    A("ds_add_rtn_u32 v12, v10, v9")
    A("s_waitcnt lgkmcnt(0)")
    A("v_readfirstlane_b32 s36, v12")
    A("s_nop 0")
    A("s_cmp_eq_u32 s36, 3")
    A(f"s_cbranch_scc0 {sk}")
    A("buffer_store_dword v9, v8, s[24:27], s40 offen sc1")
    A(f"{sk}:")
    A("s_mov_b64 exec, -1")
    A("s_setprio 2")
    lds_wait(A, 8, C_KV1, 8, 12, 36, 37)
    A(f"buffer_load_dwordx4 {vr(QA,4)}, v3, s[24:27], s34 offen sc1")
    A(f"buffer_load_dwordx4 {vr(QB,4)}, v3, s[24:27], s34 offen offset:1024 sc1")
    A(f"ds_read_b128 {vr(FS[0],4)}, v{VK}")
    A(f"ds_read_b128 {vr(FS[0]+4,4)}, v{VV0}")
    A("s_mov_b32 s36, 1")
    A("s_mov_b32 s37, 0")
    A("s_waitcnt vmcnt(0) lgkmcnt(0)")
    stamp(A, 5)
    A(mfma32(SA, FS[0], QA, "0"))
    A("s_nop 7")
    A("s_nop 1")
    def E(S, a, b):
        for i in range(a, b): A(f"v_exp_f32 v{S+i}, v{S+i}")
    A(".p2align 3")
    A("F_al:")
    A("s_sub_u32 s36, s36, 1")
    A("s_cmp_lg_u32 s36, 0")
    U = 4
    for t in range(U):
        cur, oth = FS[t & 1], FS[(t & 1) ^ 1]
        E(SA, 0, 2)
        A(pv(OB, oth + 8, SB + 8))
        A(f"ds_read_b128 {vr(cur+8,4)}, v{VV1} offset:{t*KVS}")
        A(f"ds_read_b128 {vr(oth,4)}, v{VK} offset:{(t+1)*KVS}")
        E(SA, 2, 6)
        A(mfma32(SB, cur, QB, "0"))
        A(f"ds_read_b128 {vr(oth+4,4)}, v{VV0} offset:{(t+1)*KVS}")
        if t == U - 1:
            for r in (VK, VV0, VV1): A(f"v_add_u32 v{r}, {U*KVS}, v{r}")
        E(SA, 6, 12)
        A(pv(OA, cur + 4, SA))
        E(SA, 12, 16)
        A("s_waitcnt lgkmcnt(0)")
        E(SB, 0, 1)
        A(pv(OA, cur + 8, SA + 8))
        E(SB, 1, 5)
        A(mfma32(SA, oth, QA, "0"))
        E(SB, 5, 11)
        A(pv(OB, cur + 4, SB))
        A(f"v_exp_f32_e64 v{SB+11}, v{SB+11}")
        E(SB, 12, 16)
    A("s_cbranch_scc1 F_al")
    A("s_add_u32 s37, s37, 1")
    A("s_cmp_eq_u32 s37, 1")
    A("s_cbranch_scc0 F_ev2")
    lds_wait(A, 8, C_KV2, 4, 12, 38, 39)
    A("s_mov_b32 s36, 6")
    A("s_branch F_al")
    A("F_ev2:")
    A("s_cmp_eq_u32 s37, 2")
    A("s_cbranch_scc0 F_aend")
    A("s_setprio 1")
    A("s_mov_b32 s36, 1")
    A("s_cmp_eq_u32 s33, 0")
    A("s_cbranch_scc0 F_al")
    lds_add1(A, 8, 9, C_FREE)
    A("s_branch F_al")
    A("F_aend:")
    A(pv(OB, FS[1] + 8, SB + 8))
    lds_wait(A, 8, C_FREE, 4, 12, 38, 39)
    A("s_lshl_b32 s38, s15, 11")
    A(f"s_add_u32 s38, s38, {L_XCH}")
    A("v_add_u32 v10, s38, v3")
    A("s_lshl_b32 s38, s15, 8")
    A(f"s_add_u32 s38, s38, {L_LX}")
    A("v_lshl_add_u32 v11, v1, 2, s38")
    A("s_lshl_b32 s38, s32, 2")
    A("v_mov_b32 v13, s38")
    A("s_cmp_eq_u32 s33, 0")
    A("s_cbranch_scc1 F_x0")
    A(f"ds_write_b128 v10, {vr(OA,4)}")
    A(f"ds_write_b128 v10, {vr(OA+4,4)} offset:1024")
    A(f"ds_write_b32 v11, v{OA+8}")
    for r in range(9): A(f"v_mov_b32 v{SA+r}, v{OB+r}")
    for r in range(4): A(f"v_mov_b32 v{QA+r}, v{QB+r}")
    A("s_add_u32 s34, s34, 1024")
    A("v_subrev_u32 v10, 8192, v10")
    A("v_subrev_u32 v11, 1024, v11")
    A("s_branch F_x1")
    A("F_x0:")
    A(f"ds_write_b128 v10, {vr(OB,4)}")
    A(f"ds_write_b128 v10, {vr(OB+4,4)} offset:1024")
    A(f"ds_write_b32 v11, v{OB+8}")
    for r in range(9): A(f"v_mov_b32 v{SA+r}, v{OA+r}")
    A("v_add_u32 v10, 8192, v10")
    A("v_add_u32 v11, 1024, v11")
    A("F_x1:")
    lds_add1(A, 13, 9, C_PAIR)
    lds_wait(A, 13, C_PAIR, 2, 12, 38, 39)
    A(f"ds_read_b128 {vr(OA,4)}, v10")
    A(f"ds_read_b128 {vr(OA+4,4)}, v10 offset:1024")
    A(f"ds_read_b32 v{OA+8}, v11")
    A("s_mov_b32 s38, 0x17800000")
    A("s_mov_b32 s39, 0x50000000")
    A("s_lshl_b32 s40, s31, 5")
    A("s_add_u32 s40, s40, s30")
    A("s_lshl_b32 s40, s40, 6")
    A(f"s_add_u32 s40, s40, {hex(F_FL + 3*16384)}")
    A("s_waitcnt lgkmcnt(0)")
    for r in (8, 0, 1, 2, 3, 4, 5, 6, 7): A(f"v_add_f32 v{OA+r}, v{OA+r}, v{SA+r}")
    A("F_fin:")
    A(f"v_rcp_f32 v12, v{OA+8}")
    A(f"v_mov_b32 v7, v{OA+8}")
    for r in range(8): A(f"v_mul_f32 v{OA+r}, v{OA+r}, v12")
    for r in range(8): A(f"v_fma_f32 v7, v{OA+r}, 0, v7")
    A("v_subrev_u32 v7, s38, v7")
    A("v_cmp_gt_u32 vcc, s39, v7")
    for p in range(4): A(f"v_cvt_pk_bf16_f32 v{SA+p}, v{OA+2*p}, v{OA+2*p+1}")
    A("s_cmp_eq_u64 vcc, -1")
    A("s_cbranch_scc0 F_slow")
    A("F_store:")
    A(f"buffer_store_dwordx4 {vr(SA,4)}, v3, s[24:27], s34 offen sc1")
    A("s_waitcnt vmcnt(0)")
    signal_last(A, 8, 9, 12, 36, C_O, 8, 40)
    dump(A, 0, 6)
    A("s_endpgm")
    A("F_slow:")
    A("s_cmp_eq_u32 s37, 9")
    A("s_cbranch_scc1 F_store")
    A("s_mov_b32 s37, 9")
    A("s_lshl_b32 s35, s30, 17")
    A(f"s_add_u32 s35, s35, {hex(F_KV)}")
    A("v_mov_b32 v12, 0xff800000")
    A("s_mov_b32 s36, s35")
    A("s_mov_b32 s41, 64")
    A("F_slow1:")
    A(f"buffer_load_dwordx4 {vr(FS[0],4)}, v3, s[24:27], s36 offen sc1")
    A("s_add_u32 s36, s36, 2048")
    A("s_waitcnt vmcnt(0)")
    A(mfma32(SA, FS[0], QA, "0"))
    A("s_nop 7")
    A("s_nop 3")
    for r in range(0, 16, 2): A(f"v_max3_f32 v12, v12, v{SA+r}, v{SA+r+1}")
    A("s_sub_u32 s41, s41, 1")
    A("s_cmp_lg_u32 s41, 0")
    A("s_cbranch_scc1 F_slow1")
    A("v_mov_b32 v13, v12")
    A("s_nop 1")
    A("v_permlane32_swap_b32 v12, v13")
    A("s_nop 1")
    A("v_max_f32 v14, v12, v13")
    for r in range(16): A(f"v_mov_b32 v{OA+r}, 0")
    for r in range(4, 12): A(f"v_mov_b32 v{FS[0]+r}, 0x3f803f80")
    A("v_and_b32 v10, 15, v1")
    A("v_lshrrev_b32 v11, 5, v1")
    A("v_lshlrev_b32 v11, 8, v11")
    A("v_lshl_add_u32 v10, v10, 4, v11")
    A("s_mov_b32 s41, 64")
    A("F_slow2:")
    A(f"buffer_load_dwordx4 {vr(FS[0],4)}, v3, s[24:27], s35 offen sc1")
    A("s_mov_b32 exec_lo, 0xffff")
    A("s_mov_b32 exec_hi, 0xffff")
    A(f"buffer_load_dwordx4 {vr(FS[0]+4,4)}, v10, s[24:27], s35 offen offset:1024 sc1")
    A(f"buffer_load_dwordx4 {vr(FS[0]+8,4)}, v10, s[24:27], s35 offen offset:1536 sc1")
    A("s_mov_b64 exec, -1")
    A("s_add_u32 s35, s35, 2048")
    A("s_waitcnt vmcnt(0)")
    A(mfma32(SA, FS[0], QA, "0"))
    A("s_nop 7")
    A("s_nop 3")
    for r in range(16): A(f"v_sub_f32 v{SA+r}, v{SA+r}, v14")
    for r in range(16): A(f"v_exp_f32 v{SA+r}, v{SA+r}")
    A("s_nop 1")
    A(pv(OA, FS[0] + 4, SA))
    A(pv(OA, FS[0] + 8, SA + 8))
    A("s_sub_u32 s41, s41, 1")
    A("s_cmp_lg_u32 s41, 0")
    A("s_nop 7")
    A("s_nop 3")
    A("s_cbranch_scc1 F_slow2")
    A("s_branch F_fin")
```

```python
import sys
sys.path.insert(0, "gen")
import common
from common import *
import hazard
def build():
    import fused
    A = Asm()
    hdr = open("cdna_kernels/%s.s.ref" % NAME).read().split("; Override launch")[0]
    A.l.extend(hdr.rstrip("\n").split("\n"))
    A.l.append(f"; @launch grid=(256,1,1) block=(768,1,1) lds={fused.F_LDS}")
    A('.amdgcn_target "amdgcn-amd-amdhsa--gfx950"')
    A(".text")
    fused.gen_fused(A, NAME + "_kernel")
    A('.section .rodata,"a"')
    kernel_desc(A, NAME + "_kernel", 128)
    return A.text()
if __name__ == "__main__":
    if len(sys.argv) > 2 and sys.argv[2] == "st": common.STAMPS[0] = True
    if len(sys.argv) > 3 and sys.argv[2] == "pad": common.PAD[0] = sys.argv[3]; common.PAD[1] = int(sys.argv[4])
    t = build()
    open(sys.argv[1], "w").write(t)
    print("hazards:", hazard.check(t))
```

```python
NAME = "gated_mix__ssm_conv_s4__softmax_full_mha__prompt"

WS_QKV = 0
WS_Q = 0
WS_K = 2 << 20
WS_V = 4 << 20
WS_UT = 6 << 20
WS_KX = 8 << 20
WS_O = 10 << 20
WS_YA = 12 << 20
WS_G = 14 << 20
WS_SIZE = 16 << 20

KA = dict(u=0, Are=8, Aim=16, Bre=24, Bim=32, Cre=40, Cim=48, logdt=56, Dskip=64, x=72, wqkv=80, wo=88, gw=96, out=104, dbg=112, ws=120)

class Asm:
    def __init__(self):
        self.l = []
    def __call__(self, s):
        for t in s.split("\n"):
            t = t.strip()
            if t: self.l.append(t if t.endswith(":") or t.startswith(".") else "  " + t)
    def text(self):
        return "\n".join(self.l) + "\n"

def vr(a, n):
    return f"v[{a}:{a+n-1}]" if n > 1 else f"v{a}"
def sr(a, n):
    return f"s[{a}:{a+n-1}]" if n > 1 else f"s{a}"

def srd(A, d, base, nbytes):
    A(f"s_mov_b32 s{d}, s{base}")
    A(f"s_mov_b32 s{d+1}, s{base+1}")
    A(f"s_mov_b32 s{d+2}, {hex(nbytes)}")
    A(f"s_mov_b32 s{d+3}, 0x20000")

def kernel_head(A, name):
    A(f".globl {name}")
    A(".p2align 8")
    A(f".type {name},@function")
    A(f"{name}:")

def kernel_desc(A, name, vgpr, sgpr=96):
    acc = (vgpr + 3) // 4 * 4
    A(".p2align 6")
    A(f".amdhsa_kernel {name}")
    for t in (f".amdhsa_next_free_vgpr {vgpr}", f".amdhsa_next_free_sgpr {sgpr}", f".amdhsa_accum_offset {acc}",
              ".amdhsa_group_segment_fixed_size 0", ".amdhsa_kernarg_size 128", ".amdhsa_user_sgpr_count 2",
              ".amdhsa_user_sgpr_kernarg_segment_ptr 1", ".amdhsa_system_sgpr_workgroup_id_x 1",
              ".amdhsa_float_denorm_mode_32 3"):
        A.l.append("  " + t)
    A(".end_amdhsa_kernel")

def mfma32(D, Aop, Bop, C=None):
    c = vr(D, 16) if C is None else (C if isinstance(C, str) else vr(C, 16))
    return f"v_mfma_f32_32x32x16_bf16 {vr(D,16)}, {vr(Aop,4)}, {vr(Bop,4)}, {c}"

def swap23(A, dst, src, t0, t1):
    A(f"v_and_b32 v{dst}, 0x13, v{src}")
    A(f"v_and_b32 v{t0}, 4, v{src}")
    A(f"v_and_b32 v{t1}, 8, v{src}")
    A(f"v_lshl_or_b32 v{dst}, v{t0}, 1, v{dst}")
    A(f"v_lshrrev_b32 v{t1}, 1, v{t1}")
    A(f"v_or_b32 v{dst}, v{dst}, v{t1}")

STAMPS = [False]
WS_ST = 32 << 20
def stamp(A, idx):
    if not STAMPS[0]: return
    A(f"s_memtime s[{64+4*idx}:{65+4*idx}]")
    A(f"s_memrealtime s[{66+4*idx}:{67+4*idx}]")
    A("s_waitcnt lgkmcnt(0)")
def dump(A, kidx, n, wave_sgpr="s63"):
    if not STAMPS[0]: return
    A("s_waitcnt vmcnt(0)")
    stamp(A, n)
    A("s_getreg_b32 s62, hwreg(HW_REG_HW_ID)")
    A("s_getreg_b32 s61, hwreg(HW_REG_XCC_ID)")
    A("s_lshl_b32 s60, s2, 4")
    A(f"s_add_u32 s60, s60, {wave_sgpr}")
    A("s_lshl_b32 s60, s60, 6")
    A(f"s_add_u32 s60, s60, {hex(WS_ST + kidx * 256 * 16 * 64)}")
    A("v_mov_b32 v0, s60")
    for i in range(n + 1):
        A(f"v_mov_b32 v2, s{64+4*i}")
        A(f"v_mov_b32 v3, s{66+4*i}")
        A(f"global_store_dwordx2 v0, v[2:3], s[8:9] offset:{8*i}")
    A("v_mov_b32 v2, s62")
    A("v_mov_b32 v3, s61")
    A("global_store_dwordx2 v0, v[2:3], s[8:9] offset:56")
def savewave(A):
    if STAMPS[0]: A("s_mov_b32 s63, s15")

PAD = [None, 0]
def pad_init(A):
    if PAD[0] is not None: A("s_memrealtime s[56:57]")
def pad(A, point):
    if PAD[0] != point: return
    import random
    l = "PD%d" % random.randrange(1 << 30)
    A(f"{l}:")
    A("s_memrealtime s[58:59]")
    A("s_waitcnt lgkmcnt(0)")
    A("s_sub_u32 s58, s58, s56")
    A(f"s_cmp_lt_u32 s58, {PAD[1]}")
    A(f"s_cbranch_scc1 {l}")
```

```python
from common import *
import math, struct

def f32hex(x): return hex(struct.unpack("<I", struct.pack("<f", x))[0])
LOG2E = 0x3fb8aa3b
QSCALE = 0x3eb8aa3b

def reg(i): return (i << 21) + ((i + 1) << 12)
F_Q = reg(0)
F_KV = reg(1)
F_UT = reg(3)
F_YA = reg(4)
F_FL = reg(5)
FWS = 12 << 20
HOLES = [0, (1 << 21) + (1 << 12), (3 << 21) + (2 << 12), (4 << 21) + (4 << 12), (5 << 21) + (5 << 12)]

L_CNT = 0
C_QKV, C_KV1, C_KV2, C_CARRY, C_YA, C_FREE, C_O, C_PAIR = 0, 4, 8, 12, 16, 20, 24, 32
L_G = 64
L_CARRY = 320
L_TAB = 640
TABW = 16048
ROW = 272
L_RING = 32768
L_KV = L_TAB + TABW + 9216
KVS = 2080
L_WO = 1024
L_XCH = 66560
L_LX = L_KV + 64 * KVS
L_O = 92160
F_LDS = 163840
SPIN = 200000

class G:
    n = 0
def lab(p):
    G.n += 1
    return f"{p}{G.n}"

def lds_wait(A, addr_v, off, target, tmp_v, tmp_s, cnt_s, sleep=1):
    l = lab("LW"); d = lab("LD")
    A(f"s_mov_b32 s{cnt_s}, 0")
    A(f"{l}:")
    A(f"ds_read_b32 v{tmp_v}, v{addr_v} offset:{off}")
    A("s_waitcnt lgkmcnt(0)")
    A(f"v_readfirstlane_b32 s{tmp_s}, v{tmp_v}")
    A(f"s_add_u32 s{cnt_s}, s{cnt_s}, 1")
    A(f"s_cmp_ge_u32 s{tmp_s}, {target}")
    A(f"s_cbranch_scc1 {d}")
    A(f"s_sleep {sleep}")
    A(f"s_cmp_lt_u32 s{cnt_s}, {hex(SPIN * 8)}")
    A(f"s_cbranch_scc1 {l}")
    A(f"{d}:")

def flag_wait(A, voff, soff, tmp_v, cnt_s, srd_="s[24:27]", sleep=1):
    l = lab("FW"); d = lab("FD")
    A(f"s_mov_b32 s{cnt_s}, 0")
    A(f"{l}:")
    A(f"buffer_load_dword v{tmp_v}, v{voff}, {srd_}, {soff} offen sc1")
    A("s_waitcnt vmcnt(0)")
    A(f"v_cmp_eq_u32 vcc, 1, v{tmp_v}")
    A(f"s_add_u32 s{cnt_s}, s{cnt_s}, 1")
    A("s_cmp_eq_u64 vcc, -1")
    A(f"s_cbranch_scc1 {d}")
    A(f"s_sleep {sleep}")
    A(f"s_cmp_lt_u32 s{cnt_s}, {hex(SPIN)}")
    A(f"s_cbranch_scc1 {l}")
    A(f"{d}:")

def lds_add1(A, zero_v, one_v, off):
    A("s_mov_b64 exec, 1")
    A(f"ds_add_u32 v{zero_v}, v{one_v} offset:{off}")
    A("s_mov_b64 exec, -1")

def signal_last(A, zero_v, one_v, tmp_v, tmp_s, off, n, flag_s):
    sk = lab("SG")
    A("s_mov_b64 exec, 1")
    A(f"ds_add_rtn_u32 v{tmp_v}, v{zero_v}, v{one_v} offset:{off}")
    A("s_waitcnt lgkmcnt(0)")
    A(f"v_readfirstlane_b32 s{tmp_s}, v{tmp_v}")
    A("s_nop 0")
    A(f"s_cmp_eq_u32 s{tmp_s}, {n-1}")
    A(f"s_cbranch_scc0 {sk}")
    A(f"buffer_store_dword v{one_v}, v{zero_v}, s[24:27], s{flag_s} offen sc1")
    A(f"{sk}:")
    A("s_mov_b64 exec, -1")

def mfma16(D, Aop, Bop):
    return f"v_mfma_f32_16x16x32_bf16 {vr(D,4)}, {vr(Aop,4)}, {vr(Bop,4)}, {vr(D,4)}"

def gen_fused(A, name):
    kernel_head(A, name)
    A("F_start:")
    pad_init(A)
    A(f"s_load_dwordx2 s[4:5], s[0:1], {KA['u']}")
    A(f"s_load_dwordx4 s[44:47], s[0:1], {KA['wqkv']}")
    A(f"s_load_dwordx8 s[48:55], s[0:1], {KA['gw']}")
    A("s_cmp_ge_u32 s2, 256")
    A("s_cbranch_scc1 F_done")
    A("v_lshrrev_b32 v2, 6, v0")
    A("v_and_b32 v1, 63, v0")
    A("s_and_b32 s10, s2, 7")
    A("v_readfirstlane_b32 s15, v2")
    A("s_lshr_b32 s11, s2, 3")
    A("s_lshr_b32 s12, s10, 1")
    A("s_lshl_b32 s12, s12, 3")
    A("s_and_b32 s3, s11, 7")
    A("s_add_u32 s12, s12, s3")
    A("s_and_b32 s6, s10, 1")
    A("s_lshr_b32 s7, s11, 3")
    A("s_lshl2_add_u32 s13, s6, s7")
    A("s_lshl1_add_u32 s14, s7, s6")
    A("s_add_u32 s14, s14, s3")
    A("s_and_b32 s14, s14, 7")
    savewave(A)
    A("s_cmp_lt_u32 s15, 8")
    A("s_cbranch_scc1 F_notloader")
    side(A)
    A("F_notloader:")
    A("s_waitcnt lgkmcnt(0)")
    stamp(A, 0)
    A("s_mov_b32 s8, s54")
    A("s_mov_b32 s9, s55")
    srd(A, 24, 54, FWS)
    A("s_cmp_lt_u32 s15, 4")
    A("s_cbranch_scc1 F_gemm")
    A("s_cmp_lt_u32 s15, 6")
    A("s_cbranch_scc1 F_kgen")
    misc(A)
    A("s_branch F_conv")
    A("F_kgen:")
    kgen(A)
    A("F_conv:")
    conv(A)
    A("s_branch F_attn")
    A("F_gemm:")
    gemm(A)
    A("F_attn:")
    attention(A)
    A("F_done:")
    A("s_endpgm")
    A("F_codeend:")

def side(A):
    A("s_sub_u32 s15, s15, 8")
    A("v_lshrrev_b32 v2, 3, v1")
    A("v_bfe_u32 v3, v1, 4, 1")
    A("v_and_b32 v6, 7, v1")
    A("s_and_b32 s30, s15, 1")
    A("s_lshl_b32 s30, s30, 2")
    A("v_xor_b32 v7, v6, v3")
    A("v_xor_b32 v7, s30, v7")
    A("v_lshlrev_b32 v7, 4, v7")
    A("v_lshl_add_u32 v4, v2, 10, v7")
    A("v_xor_b32 v5, 32, v4")
    A("v_lshlrev_b32 v3, 1, v3")
    A("v_xor_b32 v7, v6, v3")
    A("v_mul_u32_u24 v6, 3072, v2")
    A("v_lshl_add_u32 v6, v7, 4, v6")
    A("v_xor_b32 v7, 64, v6")
    A("s_lshl_b32 s30, s12, 16")
    A("s_lshl_b32 s31, s15, 14")
    A("s_add_u32 s30, s30, s31")
    A("s_mul_i32 s31, s15, 49152")
    A("s_lshl_b32 s32, s13, 7")
    A("s_add_u32 s31, s31, s32")
    A("s_lshl_b32 s32, s15, 11")
    A(f"s_add_u32 s32, s32, {L_RING}")
    A("s_mov_b32 s33, 0")
    A("s_waitcnt lgkmcnt(0)")
    stamp(A, 0)
    pad(A, "start")
    srd(A, 16, 4, 2048 * 512 * 2)
    srd(A, 20, 44, 512 * 1536 * 2)
    A("F_ld:")
    A("s_cmp_lt_u32 s33, 3")
    A("s_cbranch_scc1 F_ld1")
    A("s_waitcnt vmcnt(16)")
    A("s_barrier")
    A("F_ld1:")
    A("s_add_u32 s34, s14, s33")
    A("s_and_b32 s34, s34, 7")
    A("s_lshl_b32 s35, s34, 7")
    A("s_add_u32 s35, s35, s30")
    A("s_mul_i32 s36, s34, 196608")
    A("s_add_u32 s36, s36, s31")
    A("s_and_b32 s37, s33, 3")
    A("s_lshl_b32 s37, s37, 15")
    A("s_add_u32 m0, s37, s32")
    A("s_add_u32 s38, s35, 7168")
    A("buffer_load_dwordx4 v4, s[16:19], s35 offen lds")
    A("buffer_load_dwordx4 v5, s[16:19], s38 offen offset:1024 lds")
    for mat in range(3):
        A("s_add_u32 m0, m0, 8192")
        A(f"s_add_u32 s38, s36, {24576 - 1024}")
        A("buffer_load_dwordx4 v6, s[20:23], s36 offen lds")
        A("buffer_load_dwordx4 v7, s[20:23], s38 offen offset:1024 lds")
        if mat < 2: A("s_add_u32 s36, s36, 1024")
    A("s_add_u32 s33, s33, 1")
    A("s_cmp_lt_u32 s33, 8")
    A("s_cbranch_scc1 F_ld")
    A("s_mov_b32 s8, s54")
    A("s_mov_b32 s9, s55")
    srd(A, 24, 54, FWS)
    for n in (16, 8, 0):
        A(f"s_waitcnt vmcnt({n})")
        A("s_barrier")
    stamp(A, 1)
    A("v_lshlrev_b32 v3, 4, v1")
    A("v_and_b32 v2, 31, v1")
    A("v_lshlrev_b32 v2, 6, v2")
    A("v_mov_b32 v8, 0")
    A("v_mov_b32 v9, 1")
    A("s_lshl_b32 s30, s10, 11")
    A(f"s_add_u32 s30, s30, {hex(F_FL + 16384)}")
    A("s_and_b32 s31, s11, 3")
    A("s_lshl2_add_u32 s31, s10, s31")
    A("s_lshl_b32 s31, s31, 17")
    A(f"s_add_u32 s31, s31, {hex(F_KV)}")
    A("s_lshr_b32 s32, s11, 2")
    A("s_lshl_b32 s32, s32, 3")
    A("s_add_u32 s32, s32, s15")
    A(f"s_mul_i32 s33, s15, {KVS}")
    A(f"s_add_u32 s33, s33, {L_KV}")
    A("s_barrier")
    flag_wait(A, 2, "s30", 10, 34)
    stamp(A, 2)
    order = [0, 32, 4, 36] + [x for p in zip(range(8, 32, 4), range(40, 64, 4)) for x in p]
    for n, s in enumerate(order):
        A(f"s_add_u32 s35, s32, {s}")
        A("s_and_b32 s35, s35, 63")
        A("s_lshl_b32 s35, s35, 11")
        A(f"s_add_u32 m0, s33, {s*KVS}")
        A("s_add_u32 s35, s35, s31")
        A("buffer_load_dwordx4 v3, s[24:27], s35 offen sc1 lds")
        A("buffer_load_dwordx4 v3, s[24:27], s35 offen offset:1024 sc1 lds")
        if n == 7:
            A("s_waitcnt vmcnt(8)")
            lds_add1(A, 8, 9, C_KV1)
    A("s_waitcnt vmcnt(0)")
    lds_add1(A, 8, 9, C_KV2)
    stamp(A, 3)
    outproj(A)

def outproj(A):
    A("s_and_b32 s30, s15, 1")
    A("s_lshr_b32 s31, s15, 1")
    A("v_and_b32 v7, 31, v1")
    A("v_lshrrev_b32 v12, 5, v1")
    A("s_lshl_b32 s32, s12, 6")
    A("s_lshl_b32 s33, s30, 5")
    A("s_add_u32 s32, s32, s33")
    A("s_lshl_b32 s33, s13, 6")
    A("s_lshl_b32 s34, s31, 5")
    A("s_add_u32 s33, s33, s34")
    A("v_lshlrev_b32 v10, 15, v12")
    A("v_lshl_add_u32 v10, v7, 2, v10")
    A("s_lshl_b32 s34, s33, 12")
    A("s_lshl_b32 s35, s32, 2")
    A("s_add_u32 s34, s34, s35")
    A(f"s_add_u32 s34, s34, {hex(F_YA)}")
    srd(A, 16, 46, 512 * 512 * 2)
    srd(A, 20, 50, 2048 * 512 * 2)
    A("v_lshrrev_b32 v4, 3, v1")
    A("v_lshlrev_b32 v4, 10, v4")
    A("v_and_b32 v5, 7, v1")
    A("v_bfe_u32 v6, v1, 4, 1")
    A("v_lshlrev_b32 v6, 2, v6")
    A("v_xor_b32 v5, v5, v6")
    A("v_lshl_add_u32 v4, v5, 4, v4")
    A("s_lshl_b32 s36, s15, 17")
    A("s_lshl_b32 s37, s13, 7")
    A("s_add_u32 s36, s36, s37")
    A("s_lshl_b32 s37, s15, 14")
    A(f"s_add_u32 s37, s37, {L_WO}")
    lds_wait(A, 8, C_FREE, 4, 11, 38, 39, sleep=32)
    lds_wait(A, 8, C_YA, 4, 11, 38, 39, sleep=8)
    A("s_mov_b32 s38, 16")
    A("F_wo:")
    A("s_mov_b32 m0, s37")
    A("s_add_u32 s37, s37, 1024")
    A("buffer_load_dwordx4 v4, s[16:19], s36 offen lds")
    A("s_add_u32 s36, s36, 8192")
    A("s_sub_u32 s38, s38, 1")
    A("s_cmp_lg_u32 s38, 0")
    A("s_cbranch_scc1 F_wo")
    A("s_lshl_b32 s36, s13, 11")
    A(f"s_add_u32 s36, s36, {hex(F_FL + 2*16384)}")
    flag_wait(A, 2, "s36", 11, 38, sleep=8)
    YA = 48
    for c in range(2):
        for p in range(4):
            A(f"s_add_u32 s36, s34, {(8*c + p)*8192}")
            A(f"buffer_load_dword v{YA+4*c+p}, v10, s[24:27], s36 offen sc1")
    A("s_lshl_b32 s36, s30, 7")
    A("v_lshl_add_u32 v11, v7, 2, s36")
    A(f"ds_read_b32 v11, v11 offset:{L_G}")
    A("s_lshl_b32 s36, s30, 10")
    A(f"s_add_u32 s36, s36, {L_O}")
    A("v_add_u32 v4, s36, v3")
    A("v_bfe_u32 v13, v1, 2, 2")
    A("v_lshl_add_u32 v14, v12, 2, v13")
    A("v_lshlrev_b32 v14, 7, v14")
    A("v_lshrrev_b32 v13, 1, v13")
    A("v_xor_b32 v13, s31, v13")
    A("v_lshl_add_u32 v14, v13, 6, v14")
    A("v_and_b32 v13, 16, v1")
    A("v_lshl_add_u32 v14, v13, 1, v14")
    A("v_and_b32 v13, 1, v1")
    A("v_lshl_add_u32 v14, v13, 4, v14")
    A("v_and_b32 v13, 2, v1")
    A("v_lshl_add_u32 v14, v13, 2, v14")
    A(f"v_add_u32 v5, {L_WO}, v14")
    A("v_lshlrev_b32 v6, 10, v7")
    A("v_lshl_add_u32 v6, v12, 4, v6")
    A("s_lshl_b32 s32, s32, 10")
    A("s_lshl_b32 s33, s33, 1")
    A("s_add_u32 s32, s32, s33")
    AC = 16; GA = 32
    for r in range(AC, AC + 16): A(f"v_mov_b32 v{r}, 0")
    A("s_waitcnt vmcnt(0) lgkmcnt(0)")
    for q in range(8):
        A(f"v_lshlrev_b32 v{GA+2*q}, 16, v{YA+q}")
        A(f"v_and_b32 v{GA+2*q+1}, 0xffff0000, v{YA+q}")
    for r in range(GA, GA + 16): A(f"v_mul_f32 v{r}, v11, v{r}")
    A("v_sub_f32 v11, 1.0, v11")
    A("v_cvt_pk_bf16_f32 v11, v11, v11")
    A("v_and_b32 v11, 0xffff0000, v11")
    A("s_lshl_b32 s34, s15, 17")
    A("s_lshl_b32 s35, s12, 11")
    A("s_add_u32 s34, s34, s35")
    A(f"s_add_u32 s34, s34, {hex(F_Q)}")
    A("s_lshl_b32 s35, s15, 12")
    A(f"s_add_u32 s35, s35, {L_O}")
    A("s_lshr_b32 s36, s12, 2")
    A("s_lshl_b32 s36, s36, 11")
    A(f"s_add_u32 s36, s36, {hex(F_FL + 3*16384)}")
    stamp(A, 4)
    A("s_barrier")
    A("s_setprio 3")
    flag_wait(A, 2, "s36", 13, 38)
    stamp(A, 5)
    for c in range(4):
        for hh in range(2):
            A(f"s_add_u32 m0, s35, {c*16384 + hh*2048}")
            A(f"s_add_u32 s37, s34, {(8*c + hh)*65536}")
            A("buffer_load_dwordx4 v3, s[24:27], s37 offen sc1 lds")
            A("buffer_load_dwordx4 v3, s[24:27], s37 offen offset:1024 sc1 lds")
    F = 56
    for c in range(4):
        for ks in range(8):
            b = F + 8 * ks
            A(f"ds_read_b64_tr_b16 {vr(b+4,2)}, v5 offset:{c*16384 + ks*2048}")
            A(f"ds_read_b64_tr_b16 {vr(b+6,2)}, v5 offset:{c*16384 + ks*2048+1024}")
        A(f"s_waitcnt vmcnt({12 - 4*c})")
        A("s_barrier")
        for ks in range(8):
            A(f"ds_read_b128 {vr(F+8*ks,4)}, v4 offset:{c*16384 + ks*2048}")
        for ks in range(8):
            A(f"s_waitcnt lgkmcnt({7-ks})")
            A(mfma32(AC, F + 8 * ks + 4, F + 8 * ks))
    A("s_nop 7")
    A("s_nop 3")
    for r in range(16): A(f"v_fma_f32 v{AC+r}, v{AC+r}, v11, v{GA+r}")
    for p in range(8): A(f"v_cvt_pk_bf16_f32 v{GA+p}, v{AC+2*p}, v{AC+2*p+1}")
    A(f"buffer_store_dwordx4 {vr(GA,4)}, v6, s[20:23], s32 offen")
    A(f"buffer_store_dwordx4 {vr(GA+4,4)}, v6, s[20:23], s32 offen offset:32")
    pad(A, "end")
    dump(A, 0, 6)
    A("s_endpgm")

def misc(A):
    A("s_sub_u32 s16, s15, 6")
    srd(A, 36, 52, 256)
    srd(A, 40, 48, 1024)
    A("v_mov_b32 v8, 0")
    A("v_mov_b32 v9, 1")
    A("v_and_b32 v2, 7, v1")
    A("v_bfe_u32 v3, v1, 4, 1")
    A("v_xor_b32 v2, v2, v3")
    A("v_lshlrev_b32 v2, 4, v2")
    A("s_cmp_eq_u32 s16, 0")
    A("s_cbranch_scc1 F_mg")
    A("s_cmp_lt_u32 s2, 16")
    A("s_cbranch_scc0 F_mg")
    A("v_lshlrev_b32 v3, 6, v1")
    A("s_lshl_b32 s30, s2, 12")
    A(f"s_add_u32 s30, s30, {hex(F_FL)}")
    A("buffer_store_dword v8, v3, s[24:27], s30 offen sc1")
    A("F_mg:")
    GW = 32
    for i in range(8):
        A(f"s_add_u32 s30, s14, {i}")
        A("s_and_b32 s30, s30, 7")
        A("s_lshl_b32 s30, s30, 7")
        A(f"buffer_load_dwordx4 {vr(GW+4*i,4)}, v2, s[40:43], s30 offen")
    A("s_cmp_eq_u32 s16, 0")
    A("s_cbranch_scc1 F_m0")
    A("s_lshl_b32 s30, s2, 2")
    A("s_waitcnt vmcnt(0)")
    A("s_cmp_lt_u32 s2, 16")
    A("s_cbranch_scc0 F_m1")
    A("s_mov_b64 exec, 1")
    A("buffer_store_dword v9, v8, s[36:39], s30 offen sc1")
    A("s_mov_b64 exec, -1")
    A("s_branch F_m1")
    A("F_m0:")
    A("v_lshlrev_b32 v2, 4, v1")
    A("v_cmp_gt_u32 vcc, 40, v1")
    for r in range(100, 104): A(f"v_mov_b32 v{r}, 0")
    A("s_and_saveexec_b64 s[30:31], vcc")
    A("ds_write_b128 v2, v[100:103]")
    A("s_mov_b64 exec, s[30:31]")
    A("s_getpc_b64 s[30:31]")
    A("F_pc:")
    A("s_lshl_b32 s32, s11, 10")
    A("s_min_u32 s32, s32, F_codeend - F_start - 1024")
    A("s_sub_u32 s30, s30, F_pc - F_start")
    A("s_subb_u32 s31, s31, 0")
    A("v_add_u32 v2, s32, v2")
    A("global_load_dwordx4 v[12:15], v2, s[30:31]")
    for k, h in enumerate(HOLES):
        A(f"s_mov_b32 s32, {hex(h)}")
        A(f"buffer_load_dword v{16+k}, v8, s[24:27], s32 offen")
    A("global_load_dword v22, v8, s[46:47]")
    A("global_load_dword v23, v8, s[50:51]")
    A("F_m1:")
    A("s_lshl_b32 s30, s16, 12")
    A(f"s_add_u32 s30, s30, {L_RING}")
    A("v_lshlrev_b32 v24, 4, v1")
    A("v_add_u32 v24, s30, v24")
    for q in range(1, 4):
        A(f"v_xor_b32 v{24+q}, {q*1024 + q*32}, v24")
    A("v_lshrrev_b32 v3, 4, v1")
    A("v_bfe_u32 v4, v1, 2, 2")
    A("v_lshl_add_u32 v5, v4, 2, v3")
    A("v_and_b32 v4, 2, v4")
    A("v_lshrrev_b32 v6, 1, v3")
    A("v_or_b32 v4, v4, v6")
    A("v_bfe_u32 v6, v1, 1, 1")
    A("s_lshl_b32 s30, s16, 2")
    A("v_or_b32 v6, s30, v6")
    A("v_xor_b32 v6, v6, v4")
    A("v_lshlrev_b32 v6, 4, v6")
    A("v_lshl_add_u32 v6, v5, 7, v6")
    A("v_and_b32 v4, 1, v1")
    A("v_lshl_add_u32 v6, v4, 3, v6")
    A(f"v_add_u32 v28, {L_RING}, v6")
    A("v_xor_b32 v29, 64 + 2048, v28")
    A("v_xor_b32 v30, 32, v28")
    A("v_xor_b32 v31, 32, v29")
    A("v_and_b32 v4, 15, v1")
    A("v_lshlrev_b32 v4, 12, v4")
    A("v_lshl_add_u32 v7, v3, 4, v4")
    A("s_lshl_b32 s31, s14, 18")
    A("s_lshl_b32 s32, s16, 17")
    A("s_add_u32 s31, s31, s32")
    A("s_lshl_b32 s32, s12, 7")
    A("s_add_u32 s31, s31, s32")
    A(f"s_add_u32 s31, s31, {hex(F_UT)}")
    A("s_add_u32 s32, s31, 0x10000")
    A("s_lshl_b32 s33, s14, 5")
    A("s_add_u32 s33, s33, s12")
    A("s_lshl_b32 s33, s33, 6")
    A(f"s_add_u32 s33, s33, {hex(F_FL)}")
    A("v_and_b32 v2, 15, v1")
    A("v_lshlrev_b32 v2, 2, v2")
    GA = 64
    for q in range(4): A(f"v_mov_b32 v{GA+q}, 0")
    X = 68
    UT = 84
    A("s_waitcnt lgkmcnt(0)")
    for i in range(8):
        A("s_barrier")
        for q in range(4):
            A(f"ds_read_b128 {vr(X+4*q,4)}, v{24+q} offset:{(i&1)*32768}")
        if i == 0:
            for cg in range(2):
                for w in range(2):
                    for eh in range(2):
                        A(f"ds_read_b64_tr_b16 {vr(UT+8*cg+4*w+2*eh,2)}, v{28+2*cg+eh} offset:{w*4096}")
        if i == 2:
            A("s_cmp_eq_u32 s16, 0")
            A("s_cbranch_scc0 F_m2")
            A("s_mov_b64 exec, 1")
            A("buffer_store_dword v9, v8, s[24:27], s33 offen sc1")
            A("s_mov_b64 exec, -1")
            A("F_m2:")
        A("s_waitcnt vmcnt(8) lgkmcnt(0)" if i == 0 else "s_waitcnt lgkmcnt(0)")
        if i == 0:
            for cg in range(2):
                for w in range(2):
                    A(f"buffer_store_dwordx4 {vr(UT+8*cg+4*w,4)}, v7, s[24:27], s{31+cg} offen offset:{w*64} sc1")
        for p in range(4):
            for q in range(4):
                A(f"v_dot2_f32_bf16 v{GA+q}, v{X+4*q+p}, v{GW+4*i+p}, v{GA+q}")
        if i & 1:
            for q in range(4): A(f"v_xor_b32 v{24+q}, 0x10000, v{24+q}")
        if i == 1:
            flag_wait(A, 2, "0", 104, 34, srd_="s[36:39]", sleep=2)
    for m in ("quad_perm:[1,0,3,2]", "quad_perm:[2,3,0,1]", "row_half_mirror"):
        for q in range(4):
            A(f"v_add_f32_dpp v{GA+q}, v{GA+q}, v{GA+q} {m} row_mask:0xf bank_mask:0xf")
    for q in range(4): A(f"v_cvt_pk_bf16_f32 v{GA+q}, v{GA+q}, v{GA+q}")
    for q in range(4): A(f"v_and_b32 v{GA+q}, 0xffff0000, v{GA+q}")
    for q in range(4): A(f"v_mul_f32 v{GA+q}, {hex(LOG2E ^ 0x80000000)}, v{GA+q}")
    for q in range(4): A(f"v_exp_f32 v{GA+q}, v{GA+q}")
    for q in range(4): A(f"v_add_f32 v{GA+q}, 1.0, v{GA+q}")
    for q in range(4): A(f"v_rcp_f32 v{GA+q}, v{GA+q}")
    A("v_lshrrev_b32 v2, 3, v1")
    A("s_lshl_b32 s30, s16, 7")
    A("v_lshl_add_u32 v2, v2, 2, s30")
    for q in range(4): A(f"v_cvt_pk_bf16_f32 v{GA+q}, v{GA+q}, v{GA+q}")
    for q in range(4): A(f"v_and_b32 v{GA+q}, 0xffff0000, v{GA+q}")
    for q in range(4): A(f"ds_write_b32 v2, v{GA+q} offset:{L_G + 32*q}")

def cmul(A, R, X, E, T):
    A(f"v_pk_mul_f32 {vr(T,2)}, {vr(X,2)}, {vr(E,2)} op_sel:[0,0] op_sel_hi:[1,0]")
    A(f"v_pk_fma_f32 {vr(R,2)}, {vr(X,2)}, {vr(E,2)}, {vr(T,2)} op_sel:[1,1,0] op_sel_hi:[0,1,1] neg_lo:[1,0,0]")
def cmul2(A, a, b):
    for (R, X, E, T) in (a, b):
        A(f"v_pk_mul_f32 {vr(T,2)}, {vr(X,2)}, {vr(E,2)} op_sel:[0,0] op_sel_hi:[1,0]")
    for (R, X, E, T) in (a, b):
        A(f"v_pk_fma_f32 {vr(R,2)}, {vr(X,2)}, {vr(E,2)}, {vr(T,2)} op_sel:[1,1,0] op_sel_hi:[0,1,1] neg_lo:[1,0,0]")

def kgen(A):
    A(f"s_load_dwordx16 s[28:43], s[0:1], {KA['Are']}")
    A("s_sub_u32 s16, s15, 4")
    A("s_lshl1_add_u32 s17, s2, s16")
    A("s_lshl_b32 s18, s17, 8")
    A("v_lshlrev_b32 v2, 2, v1")
    A("v_add_u32 v2, s18, v2")
    A("s_lshl_b32 s18, s17, 1")
    A("v_mov_b32 v3, s18")
    A("s_waitcnt lgkmcnt(0)")
    P = 4
    for k in range(6):
        A(f"global_load_dword v{P+k}, v2, s[{28+2*k}:{29+2*k}]")
    A("global_load_ushort v10, v3, s[40:41]")
    A("global_load_ushort v11, v3, s[42:43]")
    A(f"s_mul_i32 s19, s16, {TABW}")
    A(f"s_add_u32 s19, s19, {L_TAB}")
    XE = 32 * ROW
    A("v_and_b32 v16, 31, v1")
    A("v_lshrrev_b32 v17, 5, v1")
    A("v_lshlrev_b32 v17, 4, v17")
    A(f"v_mul_u32_u24 v14, {ROW}, v16")
    A("v_add3_u32 v14, v14, v17, s19")
    A("v_bfe_u32 v18, v1, 2, 1")
    A("v_bfe_u32 v19, v1, 4, 1")
    A("v_lshl_add_u32 v18, v19, 1, v18")
    A("v_and_b32 v19, 3, v1")
    A("v_bfe_u32 v20, v1, 3, 1")
    A("v_lshl_add_u32 v19, v20, 2, v19")
    A("v_mov_b32 v20, 0x22111000")
    A("v_mov_b32 v21, 0x43222100")
    A("v_mov_b32 v22, 0x76543210")
    A("v_cmp_eq_u32 vcc, 1, v18")
    A("v_lshlrev_b32 v23, 2, v19")
    A("v_lshlrev_b32 v24, 3, v18")
    A("v_cndmask_b32 v20, v20, v21, vcc")
    A("v_cmp_eq_u32 vcc, 0, v18")
    A("s_mov_b32 s20, 0x100d0800")
    A("v_bfe_u32 v24, s20, v24, 8")
    A("v_cndmask_b32 v20, v20, v22, vcc")
    A("v_bfe_u32 v20, v20, v23, 4")
    A("v_add_u32 v20, v20, v24")
    A(f"s_add_u32 s20, s19, {XE}")
    A(f"v_mul_u32_u24 v12, {ROW}, v20")
    A("v_add3_u32 v12, v12, v17, s20")
    A("v_cmp_lt_u32 vcc, 4, v19")
    A("v_lshlrev_b32 v18, 1, v18")
    A("v_add_u32 v18, 19, v18")
    A("v_addc_co_u32 v18, vcc, 0, v18, vcc")
    A(f"v_mul_u32_u24 v13, {ROW}, v18")
    A("v_add3_u32 v13, v13, v17, s20")
    AC = 64
    for r in range(AC, AC + 32): A(f"v_mov_b32 v{r}, 0")
    A("s_mov_b32 m0, s19")
    A("s_waitcnt vmcnt(0)")
    stamp(A, 1)
    A("v_lshlrev_b32 v10, 16, v10")
    A(f"v_mul_f32 v10, {hex(LOG2E)}, v10")
    A("v_exp_f32 v10, v10")
    A("v_lshlrev_b32 v11, 16, v11")
    A("v_cvt_pk_bf16_f32 v10, v10, v10")
    A("v_and_b32 v10, 0xffff0000, v10")
    A("v_cmp_eq_u32 vcc, 0, v1")
    A("s_mov_b32 s21, 2")
    A("s_nop 0")
    A(f"v_cndmask_b32 v{AC}, v{AC}, v11, vcc")
    A("F_kloop:")
    U = 16
    for k in range(6):
        A(f"v_and_b32 v{U+k}, 0xffff0000, v{P+k}")
        A(f"v_lshlrev_b32 v{P+k}, 16, v{P+k}")
    for k in range(4):
        A(f"v_mul_f32 v{U+k}, v10, v{U+k}")
    W0 = 22; T0 = 24; T1 = 26
    cmul(A, W0, U + 4, U + 2, T0)
    E1 = 28; E2 = 30; E4 = 32; E8 = 34; E16 = 36; E256 = 38
    for n, (k, E) in enumerate(((1, E1), (8, E8), (256, E256))):
        A(f"v_mul_f32 v{40+n}, {f32hex(k*math.log2(math.e))}, v{U}")
        A(f"v_mul_f32 v{43+n}, {f32hex(k/(2*math.pi))}, v{U+1}")
    for n in range(3):
        A(f"v_exp_f32 v{40+n}, v{40+n}")
        A(f"v_fract_f32 v{43+n}, v{43+n}")
    for n, E in enumerate((E1, E8, E256)):
        A(f"v_cos_f32 v{E}, v{43+n}")
        A(f"v_sin_f32 v{E+1}, v{43+n}")
    for n, E in enumerate((E1, E8, E256)):
        A(f"v_mul_f32 v{E}, v{40+n}, v{E}")
        A(f"v_mul_f32 v{E+1}, v{40+n}, v{E+1}")
    cmul2(A, (E2, E1, E1, T0), (E16, E8, E8, T1))
    YA_, YB_ = 42, 44
    C0, C1 = 46, 47
    A(f"v_mov_b32 v{C0}, 0x00003f80")
    A(f"v_cvt_pk_bf16_f32 v{C1}, v{E8}, v{E8+1}")
    A(f"ds_write_addtid_b32 v{C0} offset:0")
    A(f"ds_write_addtid_b32 v{C1} offset:{ROW}")
    cmul2(A, (E4, E2, E2, T0), (YB_, E8, E16, T1))
    A(f"v_cvt_pk_bf16_f32 v{C0+2}, v{E16}, v{E16+1}")
    A(f"v_cvt_pk_bf16_f32 v{C1+2}, v{YB_}, v{YB_+1}")
    A(f"ds_write_addtid_b32 v{C0+2} offset:{2*ROW}")
    A(f"ds_write_addtid_b32 v{C1+2} offset:{3*ROW}")
    for j in range(4, 32, 2):
        if j in (8, 28): A("s_barrier")
        src = E16 if j == 4 else YA_
        cmul2(A, (YA_, src, E16, T0), (YB_, YB_, E16, T1))
        o = 2 * ((j >> 1) & 1)
        A(f"v_cvt_pk_bf16_f32 v{C0+o}, v{YA_}, v{YA_+1}")
        A(f"v_cvt_pk_bf16_f32 v{C1+o}, v{YB_}, v{YB_+1}")
        A(f"ds_write_addtid_b32 v{C0+o} offset:{j*ROW}")
        A(f"ds_write_addtid_b32 v{C1+o} offset:{(j+1)*ROW}")
    cnt = [0]
    def put(rg, entry):
        c = 46 + (cnt[0] & 3); cnt[0] += 1
        A(f"v_cvt_pk_bf16_f32 v{c}, v{rg}, -v{rg+1}")
        A(f"ds_write_addtid_b32 v{c} offset:{XE + entry*ROW}")
    PA = 42
    put(W0, 0)
    bases = {1: 8, 2: 13, 3: 16, 4: 19, 5: 21, 6: 23, 7: 25}
    BK = [52, 54, 56, 58, 60, 62, 44]
    for s in range(1, 8):
        cmul2(A, (PA, W0 if s == 1 else PA, E1, T0), (BK[s-1], W0 if s == 1 else BK[s-2], E256, T1))
        put(PA, s); put(BK[s-1], bases[s])
    A("s_barrier")
    seq_a = [(BK[0], E2, 9), (BK[0], E2, 10), (BK[0], E2, 11), (BK[0], E2, 12), (BK[3], E8, 20), (BK[5], E8, 24)]
    seq_b = [(BK[1], E4, 14), (BK[1], E4, 15), (BK[2], E4, 17), (BK[2], E4, 18), (BK[4], E8, 22), (BK[6], E8, 26)]
    for (ra, ea, na), (rb, eb, nb) in zip(seq_a, seq_b):
        cmul2(A, (ra, ra, ea, T0), (rb, rb, eb, T1))
        put(ra, na); put(rb, nb)
    A("s_waitcnt lgkmcnt(0)")
    F = [16, 28]
    def rd(ks, st):
        A(f"ds_read_b128 {vr(F[st],4)}, v12 offset:{ks*32}")
        A(f"ds_read_b128 {vr(F[st]+8,4)}, v14 offset:{ks*32}")
        A(f"ds_read_b128 {vr(F[st]+4,4)}, v13 offset:{ks*32}")
    rd(0, 0)
    for ks in range(8):
        st = ks & 1
        if ks < 7:
            rd(ks + 1, st ^ 1)
            A("s_waitcnt lgkmcnt(3)")
        else:
            A("s_waitcnt lgkmcnt(0)")
        A(mfma32(AC, F[st], F[st] + 8))
        A(mfma32(AC + 16, F[st] + 4, F[st] + 8))
        if ks == 3: A("s_barrier")
    A("s_sub_u32 s21, s21, 1")
    A("s_cmp_lg_u32 s21, 0")
    A("s_cbranch_scc1 F_kloop")
    stamp(A, 2)
    A("v_and_b32 v2, 31, v1")
    A("v_lshlrev_b32 v3, 6, v2")
    A("s_lshr_b32 s20, s2, 5")
    A("s_lshl_b32 s20, s20, 11")
    A(f"s_add_u32 s20, s20, {hex(F_FL)}")
    flag_wait(A, 3, "s20", 4, 21)
    A("v_lshlrev_b32 v3, 4, v1")
    A("s_lshl_b32 s20, s17, 12")
    A(f"s_add_u32 s20, s20, {hex(F_UT)}")
    A("s_add_u32 m0, s19, 512")
    A("v_and_b32 v4, 1, v1")
    for q in range(4):
        A(f"buffer_load_dwordx4 v3, s[24:27], s20 offen offset:{q*1024} sc1 lds")
    A("v_cmp_eq_u32 vcc, 1, v4")
    A("v_add_u32 v3, s19, v3")
    for r in range(4): A(f"v_mov_b32 v{16+r}, 0")
    A(f"v_cndmask_b32 v{AC+16+4}, v{AC+16+4}, v{AC+16+5}, vcc")
    A(f"v_cndmask_b32 v{AC+16+12}, v{AC+16+12}, v{AC+16+13}, vcc")
    A("v_lshrrev_b32 v4, 5, v1")
    A("v_lshl_add_u32 v4, v4, 12, v3")
    A("ds_write_b128 v4, v[16:19]")
    for q in range(4):
        a = AC + 8 * q
        for p in range(4):
            A(f"v_cvt_pk_bf16_f32 v{a+p}, v{a+2*p}, v{a+2*p+1}")
        A(f"ds_write_b128 v3, {vr(a,4)} offset:{5120 + q*1024}")
    A("s_waitcnt vmcnt(0)")

def conv(A):
    A("s_sub_u32 s16, s15, 4")
    AC = 64
    UB = L_TAB + 512
    KB = L_TAB + 5120
    A("v_and_b32 v7, 31, v1")
    A("v_lshrrev_b32 v8, 5, v1")
    A("v_lshl_add_u32 v4, v8, 2, v7")
    A("v_lshlrev_b32 v4, 4, v4")
    A("s_lshl_b32 s30, s16, 9")
    A(f"s_add_u32 s31, s30, {UB - 64 - 512}")
    A("v_add_u32 v5, s31, v4")
    A(f"s_sub_u32 s31, {UB - 64 - 512 + 7*512}, s30")
    A("v_add_u32 v4, s31, v4")
    A("v_and_b32 v6, 16, v1")
    A("v_lshlrev_b32 v6, 1, v6")
    A("v_and_b32 v9, 3, v1")
    A("v_lshl_add_u32 v6, v9, 3, v6")
    A("v_bfe_u32 v9, v1, 2, 2")
    A("v_lshl_add_u32 v9, v8, 3, v9")
    A("v_lshlrev_b32 v9, 3, v9")
    A("v_sub_u32 v6, v6, v9")
    A(f"v_add_u32 v6, {KB + 32}, v6")
    A("s_waitcnt lgkmcnt(0)")
    for r in range(AC, AC + 64): A(f"v_mov_b32 v{r}, 0")
    A("s_add_u32 s30, s16, 1")
    A("s_setprio 3")
    stamp(A, 3)
    A("s_barrier")
    SETS = [16, 40]
    def rd(nn, st, both):
        b = SETS[st]
        for ch in range(2):
            A(f"ds_read_b64_tr_b16 {vr(b+4*ch,2)}, v6 offset:{nn*128 + 32 + ch*TABW}")
            A(f"ds_read_b64_tr_b16 {vr(b+4*ch+2,2)}, v6 offset:{nn*128 + ch*TABW}")
            A(f"ds_read_b128 {vr(b+8+4*ch,4)}, v4 offset:{(4-nn)*128 + ch*TABW}")
        if both:
            for ch in range(2):
                A(f"ds_read_b128 {vr(b+16+4*ch,4)}, v5 offset:{(4-nn)*128 + ch*TABW}")
    def mm(st, both):
        b = SETS[st]
        for ch in range(2):
            A(mfma32(AC + 32 * ch, b + 8 + 4 * ch, b + 4 * ch))
        if both:
            for ch in range(2):
                A(mfma32(AC + 32 * ch + 16, b + 16 + 4 * ch, b + 4 * ch))
    rd(0, 0, True)
    A("F_c1:")
    A("s_sub_u32 s30, s30, 1")
    A("s_cmp_lg_u32 s30, 0")
    for nn in range(4):
        rd(nn + 1, (nn + 1) & 1, True)
        A("s_waitcnt lgkmcnt(8)")
        mm(nn & 1, True)
    A("v_add_u32 v6, 512, v6")
    A("v_subrev_u32 v4, 512, v4")
    A("v_subrev_u32 v5, 512, v5")
    A("s_cbranch_scc1 F_c1")
    A("s_lshl_b32 s30, s16, 1")
    A("s_sub_u32 s30, 7, s30")
    A("F_c2:")
    A("s_sub_u32 s30, s30, 1")
    A("s_cmp_lg_u32 s30, 0")
    for nn in range(4):
        rd(nn + 1, (nn + 1) & 1, False)
        A("s_waitcnt lgkmcnt(6)")
        mm(nn & 1, False)
    A("v_add_u32 v6, 512, v6")
    A("v_subrev_u32 v4, 512, v4")
    A("s_cbranch_scc1 F_c2")
    A("s_waitcnt lgkmcnt(0)")
    A("s_nop 7")
    T = 16
    def lvl(dst, src, add):
        for k in range(4):
            A(f"v_add_f32_dpp v{dst(k,0)}, v{src(k,0)}, v{add(k,0)} wave_shr:1 row_mask:0xf bank_mask:0xf bound_ctrl:0")
        for g in range(1, 4):
            for k in range(4):
                A(f"v_add_f32_dpp v{dst(k,g)}, v{src(k,g-1)}, v{add(k,g)} wave_ror:1 row_mask:0x1 bank_mask:0x1")
            for k in range(4):
                A(f"v_add_f32_dpp v{dst(k,g)}, v{src(k,g)}, v{add(k,g)} wave_shr:1 row_mask:0xf bank_mask:0xf")
    Z = lambda rho: (lambda k, g: AC + 16 * k + 4 * g + rho)
    TT = lambda k, g: T + 4 * k + g
    lvl(TT, Z(3), Z(2))
    lvl(Z(2), TT, Z(1))
    A("s_lshl_b32 s30, s16, 5")
    A(f"s_add_u32 s31, s30, {L_CARRY}")
    A(f"s_sub_u32 s32, {L_CARRY + 7*32}, s30")
    A("v_mov_b32 v4, s32")
    A("v_mov_b32 v5, s31")
    A("v_mov_b32 v8, 0")
    A("v_mov_b32 v9, 1")
    A("s_mov_b32 exec_lo, 0")
    A("s_mov_b32 exec_hi, 0x80000000")
    for k in range(4):
        ch, lo = k >> 1, k & 1
        o = (32 + 16 * ch) // 4
        A(f"ds_write2_b32 v{4+lo}, v{Z(2)(k,3)}, v{TT(k,3)} offset0:{o} offset1:{o+1}")
        A(f"ds_write_b32 v{4+lo}, v{Z(3)(k,3)} offset:{4*o+8}")
    A(f"ds_add_u32 v8, v9 offset:{C_CARRY}")
    A("s_mov_b64 exec, -1")
    lvl(Z(1), Z(2), Z(0))
    A("v_min_u32 v7, 3, v1")
    A("v_lshl_add_u32 v4, v7, 2, v4")
    A("v_lshl_add_u32 v5, v7, 2, v5")
    lds_wait(A, 8, C_CARRY, 4, 10, 33, 34)
    for k in range(4):
        ch, lo = k >> 1, k & 1
        A(f"ds_read_b32 v{32+k}, v{4+lo} offset:{16*ch}")
    A("v_lshlrev_b32 v3, 2, v1")
    A("s_lshl_b32 s34, s2, 13")
    A(f"s_add_u32 s34, s34, {hex(F_YA)}")
    A("s_lshl_b32 s30, s16, 10")
    A("s_add_u32 s35, s34, s30")
    A("s_add_u32 s34, s34, 7168")
    A("s_sub_u32 s34, s34, s30")
    A("s_waitcnt lgkmcnt(0)")
    for k in range(4):
        A(f"v_add_f32 v{Z(1)(k,0)}, v{Z(1)(k,0)}, v{32+k}")
    for lo in range(2):
        for g in range(4):
            A(f"v_cvt_pk_bf16_f32 v{40+4*lo+g}, v{Z(1)(lo,g)}, v{Z(1)(2+lo,g)}")
            A(f"buffer_store_dword v{40+4*lo+g}, v3, s[24:27], s{34+lo} offen offset:{g*256} sc1")
    A("s_lshl_b32 s40, s2, 6")
    A(f"s_add_u32 s40, s40, {hex(F_FL + 2*16384)}")
    A(f"s_mov_b32 s41, {C_YA}")
    stamp(A, 4)

def gemm(A):
    ACC = 16
    SET = [64, 92]
    A("v_and_b32 v2, 15, v1")
    A("v_lshrrev_b32 v3, 4, v1")
    A("v_lshrrev_b32 v7, 2, v2")
    A("v_and_b32 v8, 3, v1")
    A("v_lshl_add_u32 v9, v7, 3, v8")
    A("v_lshrrev_b32 v10, 1, v8")
    A("v_lshl_or_b32 v10, v7, 1, v10")
    A("v_xor_b32 v10, v10, v3")
    A("v_lshlrev_b32 v10, 4, v10")
    A("v_lshl_add_u32 v4, v9, 7, v10")
    A(f"v_add_u32 v4, {L_RING}, v4")
    A("v_xor_b32 v5, 64, v4")
    A("v_lshl_add_u32 v10, v3, 3, v7")
    A("v_lshlrev_b32 v10, 7, v10")
    A("v_lshrrev_b32 v11, 1, v7")
    A("v_and_b32 v12, 1, v3")
    A("v_lshl_or_b32 v11, v12, 1, v11")
    A("v_xor_b32 v11, s15, v11")
    A("v_lshl_add_u32 v10, v11, 5, v10")
    A("v_lshl_add_u32 v10, v8, 3, v10")
    A(f"v_add_u32 v6, {L_RING + 8192}, v10")
    A("v_lshl_add_u32 v9, v12, 2, v9")
    A("v_and_b32 v10, 32, v1")
    A("v_add_lshl_u32 v7, v9, v10, 4")
    A("v_lshlrev_b32 v3, 4, v1")
    for r in range(ACC, ACC + 48): A(f"v_mov_b32 v{r}, 0")
    for r in range(SET[1], SET[1] + 28): A(f"v_mov_b32 v{r}, 0")
    A("s_lshl2_add_u32 s30, s13, s15")
    A("s_lshl_b32 s31, s30, 16")
    A("s_lshl_b32 s32, s12, 11")
    A("s_add_u32 s31, s31, s32")
    A("s_lshl_b32 s32, s31, 1")
    A(f"s_add_u32 s31, s31, {hex(F_Q)}")
    A(f"s_add_u32 s32, s32, {hex(F_KV)}")
    A(f"s_mov_b32 s38, {hex(QSCALE)}")
    A(f"s_mov_b32 s39, {hex(QSCALE)}")
    A("s_lshl_b32 s40, s13, 5")
    A("s_add_u32 s40, s40, s12")
    A("s_lshl_b32 s40, s40, 6")
    A(f"s_add_u32 s40, s40, {hex(F_FL + 16384)}")
    A(f"s_mov_b32 s41, {C_QKV}")
    A("s_mov_b32 s36, 4")
    stamp(A, 1)
    def step(ks, st, par):
        b = SET[st]; c = SET[st ^ 1]; o = par * 32768
        rds = []
        for mat in range(3):
            for e in range(2):
                rds.append(f"ds_read_b64_tr_b16 {vr(b+16+4*mat+2*e,2)}, v6 offset:{o + mat*8192 + ks*4096 + e*512}")
        for mt in range(4):
            rds.append(f"ds_read_b128 {vr(b+4*mt,4)}, v{4+ks} offset:{o + (mt&1)*512 + (mt>>1)*4096}")
        n = 0
        for mat in range(3):
            for mt in range(4):
                d = ACC + 16 * mat + 4 * mt
                x = c + 4 * mt; w = c + 16 + 4 * mat
                if n < len(rds): A(rds[n])
                n += 1
                A(mfma16(d, x, w) if mat == 2 else mfma16(d, w, x))
    A(".p2align 3")
    A("F_gl:")
    for par in range(2):
        A("s_waitcnt lgkmcnt(0)")
        A("s_barrier")
        step(0, 0, par)
        A("s_waitcnt lgkmcnt(0)")
        A("s_sub_u32 s36, s36, 1" if par == 0 else "s_cmp_lg_u32 s36, 0")
        step(1, 1, par)
    for r in (4, 5, 6): A(f"v_xor_b32 v{r}, 0x10000, v{r}")
    A("s_cbranch_scc1 F_gl")
    A("s_waitcnt lgkmcnt(0)")
    c = SET[1]
    for mat in (1, 2, 0):
        for mt in range(4):
            d = ACC + 16 * mat + 4 * mt
            x = c + 4 * mt; w = c + 16 + 4 * mat
            A(mfma16(d, x, w) if mat == 2 else mfma16(d, w, x))
    stamp(A, 2)
    pad(A, "gemmend")
    PK = 64
    def pack(mat, dst):
        for mt in range(4):
            d = ACC + 16 * mat + 4 * mt
            A(f"v_cvt_pk_bf16_f32 v{dst+2*mt}, v{d}, v{d+1}")
            A(f"v_cvt_pk_bf16_f32 v{dst+2*mt+1}, v{d+2}, v{d+3}")
    def swaps(dst):
        for gp in range(2):
            A(f"v_permlane16_swap_b32 v{dst+4*gp}, v{dst+4*gp+2}")
            A(f"v_permlane16_swap_b32 v{dst+4*gp+1}, v{dst+4*gp+3}")
    pack(1, PK)
    pack(2, PK + 8)
    swaps(PK)
    for gp in range(2):
        A(f"buffer_store_dwordx4 {vr(PK+8+4*gp,4)}, v3, s[24:27], s32 offen offset:{gp*2048+1024} sc1")
        A(f"buffer_store_dwordx4 {vr(PK+4*gp,4)}, v7, s[24:27], s32 offen offset:{gp*2048} sc1")
    for r in range(ACC, ACC + 16, 2):
        A(f"v_pk_mul_f32 {vr(r,2)}, {vr(r,2)}, s[38:39]")
    pack(0, PK + 16)
    A("s_nop 0")
    swaps(PK + 16)
    for gp in range(2):
        A(f"buffer_store_dwordx4 {vr(PK+16+4*gp,4)}, v7, s[24:27], s31 offen offset:{gp*1024} sc1")
    stamp(A, 3)
    A("s_barrier")
    A("v_mov_b32 v16, 0x3f803f80")
    for r in range(17, 20): A(f"v_mov_b32 v{r}, v16")
    for r in range(20, 24): A(f"v_mov_b32 v{r}, 0")
    A(f"v_mul_u32_u24 v6, {KVS}, v1")
    A(f"v_add_u32 v6, {L_KV + 2048}, v6")
    A("ds_write_b128 v6, v[16:19]")
    A("ds_write_b128 v6, v[20:23] offset:16")
    A("s_waitcnt lgkmcnt(0)")
    A("v_mov_b32 v8, 0")
    A("v_mov_b32 v9, 1")
    lds_add1(A, 8, 9, C_KV1)

SA, SB, OA, OB, QA, QB = 16, 32, 48, 64, 80, 84
FS = [88, 100]
VIDX, VK, VV0, VV1 = 2, 4, 5, 6
def pv(O, V, S):
    return f"v_smfmac_f32_32x32x32_bf16 {vr(O,16)}, {vr(V,4)}, {vr(S,8)}, v{VIDX}"

def attention(A):
    A("v_mov_b32 v10, s41")
    A("v_lshlrev_b32 v3, 4, v1")
    A("s_and_b32 s30, s11, 3")
    A("s_lshl2_add_u32 s30, s10, s30")
    A("s_lshr_b32 s31, s11, 2")
    A("s_and_b32 s32, s15, 3")
    A("s_lshr_b32 s33, s15, 2")
    A("s_lshl2_add_u32 s34, s31, s32")
    A("s_lshl_b32 s34, s34, 11")
    A("s_lshl_b32 s35, s30, 16")
    A("s_add_u32 s34, s34, s35")
    A(f"s_add_u32 s34, s34, {hex(F_Q)}")
    A(f"s_mul_i32 s35, s33, {32*KVS}")
    A(f"s_add_u32 s35, s35, {L_KV}")
    A("v_and_b32 v7, 31, v1")
    A("v_lshrrev_b32 v11, 5, v1")
    A(f"v_add_u32 v{VK}, s35, v3")
    A("v_lshlrev_b32 v11, 8, v11")
    A("v_lshl_add_u32 v11, v7, 4, v11")
    A("v_add_u32 v11, 1024, v11")
    A("v_and_b32 v12, 27, v7")
    A("v_cmp_eq_u32 vcc, 16, v12")
    A("v_mov_b32 v12, 2064")
    A("v_mov_b32 v13, 2048")
    A("v_cndmask_b32 v12, v12, v13, vcc")
    A("v_cmp_gt_u32 vcc, 16, v7")
    A("v_add_u32 v13, 512, v11")
    A(f"v_mov_b32 v{VIDX}, 0xdddddddd")
    A(f"v_cndmask_b32 v{VV0}, v12, v11, vcc")
    A(f"v_cndmask_b32 v{VV1}, v12, v13, vcc")
    A(f"v_add_u32 v{VV0}, s35, v{VV0}")
    A(f"v_add_u32 v{VV1}, s35, v{VV1}")
    for r in range(SB + 8, SB + 48): A(f"v_mov_b32 v{r}, 0")
    for r in range(FS[1] + 8, FS[1] + 12): A(f"v_mov_b32 v{r}, 0")
    A("s_waitcnt vmcnt(0)")
    sk = lab("SG")
    A("s_mov_b64 exec, 1")
    A("ds_add_rtn_u32 v12, v10, v9")
    A("s_waitcnt lgkmcnt(0)")
    A("v_readfirstlane_b32 s36, v12")
    A("s_nop 0")
    A("s_cmp_eq_u32 s36, 3")
    A(f"s_cbranch_scc0 {sk}")
    A("buffer_store_dword v9, v8, s[24:27], s40 offen sc1")
    A(f"{sk}:")
    A("s_mov_b64 exec, -1")
    A("s_setprio 2")
    lds_wait(A, 8, C_KV1, 8, 12, 36, 37)
    A(f"buffer_load_dwordx4 {vr(QA,4)}, v3, s[24:27], s34 offen sc1")
    A(f"buffer_load_dwordx4 {vr(QB,4)}, v3, s[24:27], s34 offen offset:1024 sc1")
    A(f"ds_read_b128 {vr(FS[0],4)}, v{VK}")
    A(f"ds_read_b128 {vr(FS[0]+4,4)}, v{VV0}")
    A("s_mov_b32 s36, 1")
    A("s_mov_b32 s37, 0")
    A("s_waitcnt vmcnt(0) lgkmcnt(0)")
    stamp(A, 5)
    pad(A, "attn")
    A(mfma32(SA, FS[0], QA, "0"))
    A("s_nop 7")
    A("s_nop 1")
    def E(S, a, b):
        for i in range(a, b): A(f"v_exp_f32 v{S+i}, v{S+i}")
    A(".p2align 3")
    A("F_al:")
    A("s_sub_u32 s36, s36, 1")
    A("s_cmp_lg_u32 s36, 0")
    U = 4
    for t in range(U):
        cur, oth = FS[t & 1], FS[(t & 1) ^ 1]
        E(SA, 0, 2)
        A(pv(OB, oth + 8, SB + 8))
        A(f"ds_read_b128 {vr(cur+8,4)}, v{VV1} offset:{t*KVS}")
        A(f"ds_read_b128 {vr(oth,4)}, v{VK} offset:{(t+1)*KVS}")
        E(SA, 2, 6)
        A(mfma32(SB, cur, QB, "0"))
        A(f"ds_read_b128 {vr(oth+4,4)}, v{VV0} offset:{(t+1)*KVS}")
        if t == U - 1:
            for r in (VK, VV0, VV1): A(f"v_add_u32 v{r}, {U*KVS}, v{r}")
        E(SA, 6, 12)
        A(pv(OA, cur + 4, SA))
        E(SA, 12, 16)
        A("s_waitcnt lgkmcnt(0)")
        E(SB, 0, 1)
        A(pv(OA, cur + 8, SA + 8))
        E(SB, 1, 5)
        A(mfma32(SA, oth, QA, "0"))
        E(SB, 5, 11)
        A(pv(OB, cur + 4, SB))
        A(f"v_exp_f32_e64 v{SB+11}, v{SB+11}")
        E(SB, 12, 16)
    A("s_cbranch_scc1 F_al")
    A("s_add_u32 s37, s37, 1")
    A("s_cmp_eq_u32 s37, 1")
    A("s_cbranch_scc0 F_ev2")
    lds_wait(A, 8, C_KV2, 4, 12, 38, 39)
    A("s_mov_b32 s36, 6")
    A("s_branch F_al")
    A("F_ev2:")
    A("s_cmp_eq_u32 s37, 2")
    A("s_cbranch_scc0 F_aend")
    A("s_setprio 1")
    A("s_mov_b32 s36, 1")
    A("s_cmp_eq_u32 s33, 0")
    A("s_cbranch_scc0 F_al")
    lds_add1(A, 8, 9, C_FREE)
    A("s_branch F_al")
    A("F_aend:")
    A(pv(OB, FS[1] + 8, SB + 8))
    lds_wait(A, 8, C_FREE, 4, 12, 38, 39)
    A("s_lshl_b32 s38, s15, 11")
    A(f"s_add_u32 s38, s38, {L_XCH}")
    A("v_add_u32 v10, s38, v3")
    A("s_lshl_b32 s38, s15, 8")
    A(f"s_add_u32 s38, s38, {L_LX}")
    A("v_lshl_add_u32 v11, v1, 2, s38")
    A("s_lshl_b32 s38, s32, 2")
    A("v_mov_b32 v13, s38")
    A("s_cmp_eq_u32 s33, 0")
    A("s_cbranch_scc1 F_x0")
    A(f"ds_write_b128 v10, {vr(OA,4)}")
    A(f"ds_write_b128 v10, {vr(OA+4,4)} offset:1024")
    A(f"ds_write_b32 v11, v{OA+8}")
    for r in range(9): A(f"v_mov_b32 v{SA+r}, v{OB+r}")
    for r in range(4): A(f"v_mov_b32 v{QA+r}, v{QB+r}")
    A("s_add_u32 s34, s34, 1024")
    A("v_subrev_u32 v10, 8192, v10")
    A("v_subrev_u32 v11, 1024, v11")
    A("s_branch F_x1")
    A("F_x0:")
    A(f"ds_write_b128 v10, {vr(OB,4)}")
    A(f"ds_write_b128 v10, {vr(OB+4,4)} offset:1024")
    A(f"ds_write_b32 v11, v{OB+8}")
    for r in range(9): A(f"v_mov_b32 v{SA+r}, v{OA+r}")
    A("v_add_u32 v10, 8192, v10")
    A("v_add_u32 v11, 1024, v11")
    A("F_x1:")
    lds_add1(A, 13, 9, C_PAIR)
    lds_wait(A, 13, C_PAIR, 2, 12, 38, 39)
    A(f"ds_read_b128 {vr(OA,4)}, v10")
    A(f"ds_read_b128 {vr(OA+4,4)}, v10 offset:1024")
    A(f"ds_read_b32 v{OA+8}, v11")
    A("s_mov_b32 s38, 0x17800000")
    A("s_mov_b32 s39, 0x50000000")
    A("s_lshl_b32 s40, s31, 5")
    A("s_add_u32 s40, s40, s30")
    A("s_lshl_b32 s40, s40, 6")
    A(f"s_add_u32 s40, s40, {hex(F_FL + 3*16384)}")
    A("s_waitcnt lgkmcnt(0)")
    for r in (8, 0, 1, 2, 3, 4, 5, 6, 7): A(f"v_add_f32 v{OA+r}, v{OA+r}, v{SA+r}")
    A("F_fin:")
    A(f"v_rcp_f32 v12, v{OA+8}")
    A(f"v_mov_b32 v7, v{OA+8}")
    for r in range(8): A(f"v_mul_f32 v{OA+r}, v{OA+r}, v12")
    for r in range(8): A(f"v_fma_f32 v7, v{OA+r}, 0, v7")
    A("v_subrev_u32 v7, s38, v7")
    A("v_cmp_gt_u32 vcc, s39, v7")
    for p in range(4): A(f"v_cvt_pk_bf16_f32 v{SA+p}, v{OA+2*p}, v{OA+2*p+1}")
    A("s_cmp_eq_u64 vcc, -1")
    A("s_cbranch_scc0 F_slow")
    A("F_store:")
    pad(A, "ostore")
    A(f"buffer_store_dwordx4 {vr(SA,4)}, v3, s[24:27], s34 offen sc1")
    A("s_waitcnt vmcnt(0)")
    signal_last(A, 8, 9, 12, 36, C_O, 8, 40)
    dump(A, 0, 6)
    A("s_endpgm")
    A("F_slow:")
    A("s_cmp_eq_u32 s37, 9")
    A("s_cbranch_scc1 F_store")
    A("s_mov_b32 s37, 9")
    A("s_lshl_b32 s35, s30, 17")
    A(f"s_add_u32 s35, s35, {hex(F_KV)}")
    A("v_mov_b32 v12, 0xff800000")
    A("s_mov_b32 s36, s35")
    A("s_mov_b32 s41, 64")
    A("F_slow1:")
    A(f"buffer_load_dwordx4 {vr(FS[0],4)}, v3, s[24:27], s36 offen sc1")
    A("s_add_u32 s36, s36, 2048")
    A("s_waitcnt vmcnt(0)")
    A(mfma32(SA, FS[0], QA, "0"))
    A("s_nop 7")
    A("s_nop 3")
    for r in range(0, 16, 2): A(f"v_max3_f32 v12, v12, v{SA+r}, v{SA+r+1}")
    A("s_sub_u32 s41, s41, 1")
    A("s_cmp_lg_u32 s41, 0")
    A("s_cbranch_scc1 F_slow1")
    A("v_mov_b32 v13, v12")
    A("s_nop 1")
    A("v_permlane32_swap_b32 v12, v13")
    A("s_nop 1")
    A("v_max_f32 v14, v12, v13")
    for r in range(16): A(f"v_mov_b32 v{OA+r}, 0")
    for r in range(4, 12): A(f"v_mov_b32 v{FS[0]+r}, 0x3f803f80")
    A("v_and_b32 v10, 15, v1")
    A("v_lshrrev_b32 v11, 5, v1")
    A("v_lshlrev_b32 v11, 8, v11")
    A("v_lshl_add_u32 v10, v10, 4, v11")
    A("s_mov_b32 s41, 64")
    A("F_slow2:")
    A(f"buffer_load_dwordx4 {vr(FS[0],4)}, v3, s[24:27], s35 offen sc1")
    A("s_mov_b32 exec_lo, 0xffff")
    A("s_mov_b32 exec_hi, 0xffff")
    A(f"buffer_load_dwordx4 {vr(FS[0]+4,4)}, v10, s[24:27], s35 offen offset:1024 sc1")
    A(f"buffer_load_dwordx4 {vr(FS[0]+8,4)}, v10, s[24:27], s35 offen offset:1536 sc1")
    A("s_mov_b64 exec, -1")
    A("s_add_u32 s35, s35, 2048")
    A("s_waitcnt vmcnt(0)")
    A(mfma32(SA, FS[0], QA, "0"))
    A("s_nop 7")
    A("s_nop 3")
    for r in range(16): A(f"v_sub_f32 v{SA+r}, v{SA+r}, v14")
    for r in range(16): A(f"v_exp_f32 v{SA+r}, v{SA+r}")
    A("s_nop 1")
    A(pv(OA, FS[0] + 4, SA))
    A(pv(OA, FS[0] + 8, SA + 8))
    A("s_sub_u32 s41, s41, 1")
    A("s_cmp_lg_u32 s41, 0")
    A("s_nop 7")
    A("s_nop 3")
    A("s_cbranch_scc1 F_slow2")
    A("s_branch F_fin")
```

```python
from common import *
import math, struct

def f32hex(x): return hex(struct.unpack("<I", struct.pack("<f", x))[0])
LOG2E = 0x3fb8aa3b
QSCALE = 0x3eb8aa3b

def reg(i): return (i << 21) + ((i + 1) << 12)
F_Q = reg(0)
F_KV = reg(1)
F_UT = reg(3)
F_YA = reg(4)
F_FL = reg(5)
FWS = 12 << 20
HOLES = [0, (1 << 21) + (1 << 12), (3 << 21) + (2 << 12), (4 << 21) + (4 << 12), (5 << 21) + (5 << 12)]

L_CNT = 0
C_QKV, C_KV1, C_KV2, C_CARRY, C_YA, C_FREE, C_O, C_PAIR = 0, 4, 8, 12, 16, 20, 24, 32
L_G = 64
L_CARRY = 320
L_TAB = 640
TABW = 16048
ROW = 272
L_RING = 32768
L_KV = L_TAB + TABW + 9216
KVS = 2080
L_WO = 1024
L_XCH = 66560
L_LX = L_KV + 64 * KVS
L_O = 92160
F_LDS = 163840
SPIN = 200000

class G:
    n = 0
def lab(p):
    G.n += 1
    return f"{p}{G.n}"

def lds_wait(A, addr_v, off, target, tmp_v, tmp_s, cnt_s, sleep=1):
    l = lab("LW"); d = lab("LD")
    A(f"s_mov_b32 s{cnt_s}, 0")
    A(f"{l}:")
    A(f"ds_read_b32 v{tmp_v}, v{addr_v} offset:{off}")
    A("s_waitcnt lgkmcnt(0)")
    A(f"v_readfirstlane_b32 s{tmp_s}, v{tmp_v}")
    A(f"s_add_u32 s{cnt_s}, s{cnt_s}, 1")
    A(f"s_cmp_ge_u32 s{tmp_s}, {target}")
    A(f"s_cbranch_scc1 {d}")
    A(f"s_sleep {sleep}")
    A(f"s_cmp_lt_u32 s{cnt_s}, {hex(SPIN * 8)}")
    A(f"s_cbranch_scc1 {l}")
    A(f"{d}:")

def flag_wait(A, voff, soff, tmp_v, cnt_s, srd_="s[24:27]", sleep=1):
    l = lab("FW"); d = lab("FD")
    A(f"s_mov_b32 s{cnt_s}, 0")
    A(f"{l}:")
    A(f"buffer_load_dword v{tmp_v}, v{voff}, {srd_}, {soff} offen sc1")
    A("s_waitcnt vmcnt(0)")
    A(f"v_cmp_eq_u32 vcc, 1, v{tmp_v}")
    A(f"s_add_u32 s{cnt_s}, s{cnt_s}, 1")
    A("s_cmp_eq_u64 vcc, -1")
    A(f"s_cbranch_scc1 {d}")
    A(f"s_sleep {sleep}")
    A(f"s_cmp_lt_u32 s{cnt_s}, {hex(SPIN)}")
    A(f"s_cbranch_scc1 {l}")
    A(f"{d}:")

def lds_add1(A, zero_v, one_v, off):
    A("s_mov_b64 exec, 1")
    A(f"ds_add_u32 v{zero_v}, v{one_v} offset:{off}")
    A("s_mov_b64 exec, -1")

def signal_last(A, zero_v, one_v, tmp_v, tmp_s, off, n, flag_s):
    sk = lab("SG")
    A("s_mov_b64 exec, 1")
    A(f"ds_add_rtn_u32 v{tmp_v}, v{zero_v}, v{one_v} offset:{off}")
    A("s_waitcnt lgkmcnt(0)")
    A(f"v_readfirstlane_b32 s{tmp_s}, v{tmp_v}")
    A("s_nop 0")
    A(f"s_cmp_eq_u32 s{tmp_s}, {n-1}")
    A(f"s_cbranch_scc0 {sk}")
    A(f"buffer_store_dword v{one_v}, v{zero_v}, s[24:27], s{flag_s} offen sc1")
    A(f"{sk}:")
    A("s_mov_b64 exec, -1")

def mfma16(D, Aop, Bop):
    return f"v_mfma_f32_16x16x32_bf16 {vr(D,4)}, {vr(Aop,4)}, {vr(Bop,4)}, {vr(D,4)}"

def gen_fused(A, name):
    kernel_head(A, name)
    A("F_start:")
    pad_init(A)
    A(f"s_load_dwordx2 s[4:5], s[0:1], {KA['u']}")
    A(f"s_load_dwordx4 s[44:47], s[0:1], {KA['wqkv']}")
    A(f"s_load_dwordx8 s[48:55], s[0:1], {KA['gw']}")
    A("s_cmp_ge_u32 s2, 256")
    A("s_cbranch_scc1 F_done")
    A("v_lshrrev_b32 v2, 6, v0")
    A("v_and_b32 v1, 63, v0")
    A("s_and_b32 s10, s2, 7")
    A("v_readfirstlane_b32 s15, v2")
    A("s_lshr_b32 s11, s2, 3")
    A("s_lshr_b32 s12, s10, 1")
    A("s_lshl_b32 s12, s12, 3")
    A("s_and_b32 s3, s11, 7")
    A("s_add_u32 s12, s12, s3")
    A("s_and_b32 s6, s10, 1")
    A("s_lshr_b32 s7, s11, 3")
    A("s_lshl2_add_u32 s13, s6, s7")
    A("s_lshl1_add_u32 s14, s7, s6")
    A("s_add_u32 s14, s14, s3")
    A("s_and_b32 s14, s14, 7")
    savewave(A)
    A("s_cmp_lt_u32 s15, 8")
    A("s_cbranch_scc1 F_notloader")
    side(A)
    A("F_notloader:")
    A("s_waitcnt lgkmcnt(0)")
    stamp(A, 0)
    A("s_mov_b32 s8, s54")
    A("s_mov_b32 s9, s55")
    srd(A, 24, 54, FWS)
    A("s_cmp_lt_u32 s15, 4")
    A("s_cbranch_scc1 F_gemm")
    A("s_cmp_lt_u32 s15, 6")
    A("s_cbranch_scc1 F_kgen")
    misc(A)
    A("s_branch F_conv")
    A("F_kgen:")
    kgen(A)
    A("F_conv:")
    conv(A)
    A("s_branch F_attn")
    A("F_gemm:")
    gemm(A)
    A("F_attn:")
    attention(A)
    A("F_done:")
    A("s_endpgm")
    A("F_codeend:")

def side(A):
    A("s_sub_u32 s15, s15, 8")
    A("v_lshrrev_b32 v2, 3, v1")
    A("v_bfe_u32 v3, v1, 4, 1")
    A("v_and_b32 v6, 7, v1")
    A("s_and_b32 s30, s15, 1")
    A("s_lshl_b32 s30, s30, 2")
    A("v_xor_b32 v7, v6, v3")
    A("v_xor_b32 v7, s30, v7")
    A("v_lshlrev_b32 v7, 4, v7")
    A("v_lshl_add_u32 v4, v2, 10, v7")
    A("v_xor_b32 v5, 32, v4")
    A("v_lshlrev_b32 v3, 1, v3")
    A("v_xor_b32 v7, v6, v3")
    A("v_mul_u32_u24 v6, 3072, v2")
    A("v_lshl_add_u32 v6, v7, 4, v6")
    A("v_xor_b32 v7, 64, v6")
    A("s_lshl_b32 s30, s12, 16")
    A("s_lshl_b32 s31, s15, 14")
    A("s_add_u32 s30, s30, s31")
    A("s_mul_i32 s31, s15, 49152")
    A("s_lshl_b32 s32, s13, 7")
    A("s_add_u32 s31, s31, s32")
    A("s_lshl_b32 s32, s15, 11")
    A(f"s_add_u32 s32, s32, {L_RING}")
    A("s_mov_b32 s33, 0")
    A("s_waitcnt lgkmcnt(0)")
    stamp(A, 0)
    pad(A, "start")
    srd(A, 16, 4, 2048 * 512 * 2)
    srd(A, 20, 44, 512 * 1536 * 2)
    A("F_ld:")
    A("s_cmp_lt_u32 s33, 3")
    A("s_cbranch_scc1 F_ld1")
    A("s_waitcnt vmcnt(16)")
    A("s_barrier")
    A("F_ld1:")
    A("s_add_u32 s34, s14, s33")
    A("s_and_b32 s34, s34, 7")
    A("s_lshl_b32 s35, s34, 7")
    A("s_add_u32 s35, s35, s30")
    A("s_mul_i32 s36, s34, 196608")
    A("s_add_u32 s36, s36, s31")
    A("s_and_b32 s37, s33, 3")
    A("s_lshl_b32 s37, s37, 15")
    A("s_add_u32 m0, s37, s32")
    A("s_add_u32 s38, s35, 7168")
    A("buffer_load_dwordx4 v4, s[16:19], s35 offen lds")
    A("buffer_load_dwordx4 v5, s[16:19], s38 offen offset:1024 lds")
    for mat in range(3):
        A("s_add_u32 m0, m0, 8192")
        A(f"s_add_u32 s38, s36, {24576 - 1024}")
        A("buffer_load_dwordx4 v6, s[20:23], s36 offen lds")
        A("buffer_load_dwordx4 v7, s[20:23], s38 offen offset:1024 lds")
        if mat < 2: A("s_add_u32 s36, s36, 1024")
    A("s_add_u32 s33, s33, 1")
    A("s_cmp_lt_u32 s33, 8")
    A("s_cbranch_scc1 F_ld")
    A("s_mov_b32 s8, s54")
    A("s_mov_b32 s9, s55")
    srd(A, 24, 54, FWS)
    for n in (16, 8, 0):
        A(f"s_waitcnt vmcnt({n})")
        A("s_barrier")
    stamp(A, 1)
    if PAD[0] == "endmin":
        A("s_not_b32 s58, s56")
        A("v_mov_b32 v2, 0")
        A("v_mov_b32 v3, s58")
        A("s_mov_b64 exec, 1")
        A("global_atomic_umax v2, v3, s[52:53] offset:128")
        A("s_mov_b64 exec, -1")
    A("v_lshlrev_b32 v3, 4, v1")
    A("v_and_b32 v2, 31, v1")
    A("v_lshlrev_b32 v2, 6, v2")
    A("v_mov_b32 v8, 0")
    A("v_mov_b32 v9, 1")
    A("s_lshl_b32 s30, s10, 11")
    A(f"s_add_u32 s30, s30, {hex(F_FL + 16384)}")
    A("s_and_b32 s31, s11, 3")
    A("s_lshl2_add_u32 s31, s10, s31")
    A("s_lshl_b32 s31, s31, 17")
    A(f"s_add_u32 s31, s31, {hex(F_KV)}")
    A("s_lshr_b32 s32, s11, 2")
    A("s_lshl_b32 s32, s32, 3")
    A("s_add_u32 s32, s32, s15")
    A(f"s_mul_i32 s33, s15, {KVS}")
    A(f"s_add_u32 s33, s33, {L_KV}")
    A("s_barrier")
    flag_wait(A, 2, "s30", 10, 34)
    stamp(A, 2)
    order = [0, 32, 4, 36] + [x for p in zip(range(8, 32, 4), range(40, 64, 4)) for x in p]
    for n, s in enumerate(order):
        A(f"s_add_u32 s35, s32, {s}")
        A("s_and_b32 s35, s35, 63")
        A("s_lshl_b32 s35, s35, 11")
        A(f"s_add_u32 m0, s33, {s*KVS}")
        A("s_add_u32 s35, s35, s31")
        A("buffer_load_dwordx4 v3, s[24:27], s35 offen sc1 lds")
        A("buffer_load_dwordx4 v3, s[24:27], s35 offen offset:1024 sc1 lds")
        if n == 7:
            A("s_waitcnt vmcnt(8)")
            lds_add1(A, 8, 9, C_KV1)
    A("s_waitcnt vmcnt(0)")
    lds_add1(A, 8, 9, C_KV2)
    stamp(A, 3)
    outproj(A)

def outproj(A):
    A("s_and_b32 s30, s15, 1")
    A("s_lshr_b32 s31, s15, 1")
    A("v_and_b32 v7, 31, v1")
    A("v_lshrrev_b32 v12, 5, v1")
    A("s_lshl_b32 s32, s12, 6")
    A("s_lshl_b32 s33, s30, 5")
    A("s_add_u32 s32, s32, s33")
    A("s_lshl_b32 s33, s13, 6")
    A("s_lshl_b32 s34, s31, 5")
    A("s_add_u32 s33, s33, s34")
    A("v_lshlrev_b32 v10, 15, v12")
    A("v_lshl_add_u32 v10, v7, 2, v10")
    A("s_lshl_b32 s34, s33, 12")
    A("s_lshl_b32 s35, s32, 2")
    A("s_add_u32 s34, s34, s35")
    A(f"s_add_u32 s34, s34, {hex(F_YA)}")
    srd(A, 16, 46, 512 * 512 * 2)
    srd(A, 20, 50, 2048 * 512 * 2)
    A("v_lshrrev_b32 v4, 3, v1")
    A("v_lshlrev_b32 v4, 10, v4")
    A("v_and_b32 v5, 7, v1")
    A("v_bfe_u32 v6, v1, 4, 1")
    A("v_lshlrev_b32 v6, 2, v6")
    A("v_xor_b32 v5, v5, v6")
    A("v_lshl_add_u32 v4, v5, 4, v4")
    A("s_lshl_b32 s36, s15, 17")
    A("s_lshl_b32 s37, s13, 7")
    A("s_add_u32 s36, s36, s37")
    A("s_lshl_b32 s37, s15, 14")
    A(f"s_add_u32 s37, s37, {L_WO}")
    lds_wait(A, 8, C_FREE, 4, 11, 38, 39, sleep=32)
    lds_wait(A, 8, C_YA, 4, 11, 38, 39, sleep=8)
    A("s_mov_b32 s38, 16")
    A("F_wo:")
    A("s_mov_b32 m0, s37")
    A("s_add_u32 s37, s37, 1024")
    A("buffer_load_dwordx4 v4, s[16:19], s36 offen lds")
    A("s_add_u32 s36, s36, 8192")
    A("s_sub_u32 s38, s38, 1")
    A("s_cmp_lg_u32 s38, 0")
    A("s_cbranch_scc1 F_wo")
    A("s_lshl_b32 s36, s13, 11")
    A(f"s_add_u32 s36, s36, {hex(F_FL + 2*16384)}")
    flag_wait(A, 2, "s36", 11, 38, sleep=8)
    YA = 48
    for c in range(2):
        for p in range(4):
            A(f"s_add_u32 s36, s34, {(8*c + p)*8192}")
            A(f"buffer_load_dword v{YA+4*c+p}, v10, s[24:27], s36 offen sc1")
    A("s_lshl_b32 s36, s30, 7")
    A("v_lshl_add_u32 v11, v7, 2, s36")
    A(f"ds_read_b32 v11, v11 offset:{L_G}")
    A("s_lshl_b32 s36, s30, 10")
    A(f"s_add_u32 s36, s36, {L_O}")
    A("v_add_u32 v4, s36, v3")
    A("v_bfe_u32 v13, v1, 2, 2")
    A("v_lshl_add_u32 v14, v12, 2, v13")
    A("v_lshlrev_b32 v14, 7, v14")
    A("v_lshrrev_b32 v13, 1, v13")
    A("v_xor_b32 v13, s31, v13")
    A("v_lshl_add_u32 v14, v13, 6, v14")
    A("v_and_b32 v13, 16, v1")
    A("v_lshl_add_u32 v14, v13, 1, v14")
    A("v_and_b32 v13, 1, v1")
    A("v_lshl_add_u32 v14, v13, 4, v14")
    A("v_and_b32 v13, 2, v1")
    A("v_lshl_add_u32 v14, v13, 2, v14")
    A(f"v_add_u32 v5, {L_WO}, v14")
    A("v_lshlrev_b32 v6, 10, v7")
    A("v_lshl_add_u32 v6, v12, 4, v6")
    A("s_lshl_b32 s32, s32, 10")
    A("s_lshl_b32 s33, s33, 1")
    A("s_add_u32 s32, s32, s33")
    AC = 16; GA = 32
    for r in range(AC, AC + 16): A(f"v_mov_b32 v{r}, 0")
    A("s_waitcnt vmcnt(0) lgkmcnt(0)")
    for q in range(8):
        A(f"v_lshlrev_b32 v{GA+2*q}, 16, v{YA+q}")
        A(f"v_and_b32 v{GA+2*q+1}, 0xffff0000, v{YA+q}")
    for r in range(GA, GA + 16): A(f"v_mul_f32 v{r}, v11, v{r}")
    A("v_sub_f32 v11, 1.0, v11")
    A("v_cvt_pk_bf16_f32 v11, v11, v11")
    A("v_and_b32 v11, 0xffff0000, v11")
    A("s_lshl_b32 s34, s15, 17")
    A("s_lshl_b32 s35, s12, 11")
    A("s_add_u32 s34, s34, s35")
    A(f"s_add_u32 s34, s34, {hex(F_Q)}")
    A("s_lshl_b32 s35, s15, 12")
    A(f"s_add_u32 s35, s35, {L_O}")
    A("s_lshr_b32 s36, s12, 2")
    A("s_lshl_b32 s36, s36, 11")
    A(f"s_add_u32 s36, s36, {hex(F_FL + 3*16384)}")
    stamp(A, 4)
    A("s_barrier")
    A("s_setprio 3")
    flag_wait(A, 2, "s36", 13, 38)
    stamp(A, 5)
    for c in range(4):
        for hh in range(2):
            A(f"s_add_u32 m0, s35, {c*16384 + hh*2048}")
            A(f"s_add_u32 s37, s34, {(8*c + hh)*65536}")
            A("buffer_load_dwordx4 v3, s[24:27], s37 offen sc1 lds")
            A("buffer_load_dwordx4 v3, s[24:27], s37 offen offset:1024 sc1 lds")
    F = 56
    for c in range(4):
        for ks in range(8):
            b = F + 8 * ks
            A(f"ds_read_b64_tr_b16 {vr(b+4,2)}, v5 offset:{c*16384 + ks*2048}")
            A(f"ds_read_b64_tr_b16 {vr(b+6,2)}, v5 offset:{c*16384 + ks*2048+1024}")
        A(f"s_waitcnt vmcnt({12 - 4*c})")
        A("s_barrier")
        for ks in range(8):
            A(f"ds_read_b128 {vr(F+8*ks,4)}, v4 offset:{c*16384 + ks*2048}")
        for ks in range(8):
            A(f"s_waitcnt lgkmcnt({7-ks})")
            A(mfma32(AC, F + 8 * ks + 4, F + 8 * ks))
    A("s_nop 7")
    A("s_nop 3")
    for r in range(16): A(f"v_fma_f32 v{AC+r}, v{AC+r}, v11, v{GA+r}")
    for p in range(8): A(f"v_cvt_pk_bf16_f32 v{GA+p}, v{AC+2*p}, v{AC+2*p+1}")
    A(f"buffer_store_dwordx4 {vr(GA,4)}, v6, s[20:23], s32 offen")
    A(f"buffer_store_dwordx4 {vr(GA+4,4)}, v6, s[20:23], s32 offen offset:32")
    pad(A, "end")
    if PAD[0] == "endmin":
        A("v_mov_b32 v2, 0")
        A("global_load_dword v3, v2, s[52:53] offset:128 sc1")
        A("s_waitcnt vmcnt(0)")
        A("v_readfirstlane_b32 s56, v3")
        A("s_nop 3")
        A("s_not_b32 s56, s56")
        pad(A, "endmin")
    dump(A, 0, 6)
    A("s_endpgm")

def misc(A):
    A("s_sub_u32 s16, s15, 6")
    srd(A, 36, 52, 256)
    srd(A, 40, 48, 1024)
    A("v_mov_b32 v8, 0")
    A("v_mov_b32 v9, 1")
    A("v_and_b32 v2, 7, v1")
    A("v_bfe_u32 v3, v1, 4, 1")
    A("v_xor_b32 v2, v2, v3")
    A("v_lshlrev_b32 v2, 4, v2")
    A("s_cmp_eq_u32 s16, 0")
    A("s_cbranch_scc1 F_mg")
    A("s_cmp_lt_u32 s2, 16")
    A("s_cbranch_scc0 F_mg")
    A("v_lshlrev_b32 v3, 6, v1")
    A("s_lshl_b32 s30, s2, 12")
    A(f"s_add_u32 s30, s30, {hex(F_FL)}")
    A("buffer_store_dword v8, v3, s[24:27], s30 offen sc1")
    A("F_mg:")
    GW = 32
    for i in range(8):
        A(f"s_add_u32 s30, s14, {i}")
        A("s_and_b32 s30, s30, 7")
        A("s_lshl_b32 s30, s30, 7")
        A(f"buffer_load_dwordx4 {vr(GW+4*i,4)}, v2, s[40:43], s30 offen")
    A("s_cmp_eq_u32 s16, 0")
    A("s_cbranch_scc1 F_m0")
    A("s_lshl_b32 s30, s2, 2")
    A("s_waitcnt vmcnt(0)")
    A("s_cmp_lt_u32 s2, 16")
    A("s_cbranch_scc0 F_m1")
    A("s_mov_b64 exec, 1")
    A("buffer_store_dword v9, v8, s[36:39], s30 offen sc1")
    A("s_mov_b64 exec, -1")
    A("s_branch F_m1")
    A("F_m0:")
    A("v_lshlrev_b32 v2, 4, v1")
    A("v_cmp_gt_u32 vcc, 40, v1")
    for r in range(100, 104): A(f"v_mov_b32 v{r}, 0")
    A("s_and_saveexec_b64 s[30:31], vcc")
    A("ds_write_b128 v2, v[100:103]")
    A("s_mov_b64 exec, s[30:31]")
    A("s_getpc_b64 s[30:31]")
    A("F_pc:")
    A("s_lshl_b32 s32, s11, 10")
    A("s_min_u32 s32, s32, F_codeend - F_start - 1024")
    A("s_sub_u32 s30, s30, F_pc - F_start")
    A("s_subb_u32 s31, s31, 0")
    A("v_add_u32 v2, s32, v2")
    A("global_load_dwordx4 v[12:15], v2, s[30:31]")
    for k, h in enumerate(HOLES):
        A(f"s_mov_b32 s32, {hex(h)}")
        A(f"buffer_load_dword v{16+k}, v8, s[24:27], s32 offen")
    A("global_load_dword v22, v8, s[46:47]")
    A("global_load_dword v23, v8, s[50:51]")
    A("F_m1:")
    A("s_lshl_b32 s30, s16, 12")
    A(f"s_add_u32 s30, s30, {L_RING}")
    A("v_lshlrev_b32 v24, 4, v1")
    A("v_add_u32 v24, s30, v24")
    for q in range(1, 4):
        A(f"v_xor_b32 v{24+q}, {q*1024 + q*32}, v24")
    A("v_lshrrev_b32 v3, 4, v1")
    A("v_bfe_u32 v4, v1, 2, 2")
    A("v_lshl_add_u32 v5, v4, 2, v3")
    A("v_and_b32 v4, 2, v4")
    A("v_lshrrev_b32 v6, 1, v3")
    A("v_or_b32 v4, v4, v6")
    A("v_bfe_u32 v6, v1, 1, 1")
    A("s_lshl_b32 s30, s16, 2")
    A("v_or_b32 v6, s30, v6")
    A("v_xor_b32 v6, v6, v4")
    A("v_lshlrev_b32 v6, 4, v6")
    A("v_lshl_add_u32 v6, v5, 7, v6")
    A("v_and_b32 v4, 1, v1")
    A("v_lshl_add_u32 v6, v4, 3, v6")
    A(f"v_add_u32 v28, {L_RING}, v6")
    A("v_xor_b32 v29, 64 + 2048, v28")
    A("v_xor_b32 v30, 32, v28")
    A("v_xor_b32 v31, 32, v29")
    A("v_and_b32 v4, 15, v1")
    A("v_lshlrev_b32 v4, 12, v4")
    A("v_lshl_add_u32 v7, v3, 4, v4")
    A("s_lshl_b32 s31, s14, 18")
    A("s_lshl_b32 s32, s16, 17")
    A("s_add_u32 s31, s31, s32")
    A("s_lshl_b32 s32, s12, 7")
    A("s_add_u32 s31, s31, s32")
    A(f"s_add_u32 s31, s31, {hex(F_UT)}")
    A("s_add_u32 s32, s31, 0x10000")
    A("s_lshl_b32 s33, s14, 5")
    A("s_add_u32 s33, s33, s12")
    A("s_lshl_b32 s33, s33, 6")
    A(f"s_add_u32 s33, s33, {hex(F_FL)}")
    A("v_and_b32 v2, 15, v1")
    A("v_lshlrev_b32 v2, 2, v2")
    GA = 64
    for q in range(4): A(f"v_mov_b32 v{GA+q}, 0")
    X = 68
    UT = 84
    A("s_waitcnt lgkmcnt(0)")
    for i in range(8):
        A("s_barrier")
        for q in range(4):
            A(f"ds_read_b128 {vr(X+4*q,4)}, v{24+q} offset:{(i&1)*32768}")
        if i == 0:
            for cg in range(2):
                for w in range(2):
                    for eh in range(2):
                        A(f"ds_read_b64_tr_b16 {vr(UT+8*cg+4*w+2*eh,2)}, v{28+2*cg+eh} offset:{w*4096}")
        if i == 2:
            A("s_cmp_eq_u32 s16, 0")
            A("s_cbranch_scc0 F_m2")
            A("s_mov_b64 exec, 1")
            A("buffer_store_dword v9, v8, s[24:27], s33 offen sc1")
            A("s_mov_b64 exec, -1")
            A("F_m2:")
        A("s_waitcnt vmcnt(8) lgkmcnt(0)" if i == 0 else "s_waitcnt lgkmcnt(0)")
        if i == 0:
            for cg in range(2):
                for w in range(2):
                    A(f"buffer_store_dwordx4 {vr(UT+8*cg+4*w,4)}, v7, s[24:27], s{31+cg} offen offset:{w*64} sc1")
        for p in range(4):
            for q in range(4):
                A(f"v_dot2_f32_bf16 v{GA+q}, v{X+4*q+p}, v{GW+4*i+p}, v{GA+q}")
        if i & 1:
            for q in range(4): A(f"v_xor_b32 v{24+q}, 0x10000, v{24+q}")
        if i == 1:
            flag_wait(A, 2, "0", 104, 34, srd_="s[36:39]", sleep=2)
    for m in ("quad_perm:[1,0,3,2]", "quad_perm:[2,3,0,1]", "row_half_mirror"):
        for q in range(4):
            A(f"v_add_f32_dpp v{GA+q}, v{GA+q}, v{GA+q} {m} row_mask:0xf bank_mask:0xf")
    for q in range(4): A(f"v_cvt_pk_bf16_f32 v{GA+q}, v{GA+q}, v{GA+q}")
    for q in range(4): A(f"v_and_b32 v{GA+q}, 0xffff0000, v{GA+q}")
    for q in range(4): A(f"v_mul_f32 v{GA+q}, {hex(LOG2E ^ 0x80000000)}, v{GA+q}")
    for q in range(4): A(f"v_exp_f32 v{GA+q}, v{GA+q}")
    for q in range(4): A(f"v_add_f32 v{GA+q}, 1.0, v{GA+q}")
    for q in range(4): A(f"v_rcp_f32 v{GA+q}, v{GA+q}")
    A("v_lshrrev_b32 v2, 3, v1")
    A("s_lshl_b32 s30, s16, 7")
    A("v_lshl_add_u32 v2, v2, 2, s30")
    for q in range(4): A(f"v_cvt_pk_bf16_f32 v{GA+q}, v{GA+q}, v{GA+q}")
    for q in range(4): A(f"v_and_b32 v{GA+q}, 0xffff0000, v{GA+q}")
    for q in range(4): A(f"ds_write_b32 v2, v{GA+q} offset:{L_G + 32*q}")

def cmul(A, R, X, E, T):
    A(f"v_pk_mul_f32 {vr(T,2)}, {vr(X,2)}, {vr(E,2)} op_sel:[0,0] op_sel_hi:[1,0]")
    A(f"v_pk_fma_f32 {vr(R,2)}, {vr(X,2)}, {vr(E,2)}, {vr(T,2)} op_sel:[1,1,0] op_sel_hi:[0,1,1] neg_lo:[1,0,0]")
def cmul2(A, a, b):
    for (R, X, E, T) in (a, b):
        A(f"v_pk_mul_f32 {vr(T,2)}, {vr(X,2)}, {vr(E,2)} op_sel:[0,0] op_sel_hi:[1,0]")
    for (R, X, E, T) in (a, b):
        A(f"v_pk_fma_f32 {vr(R,2)}, {vr(X,2)}, {vr(E,2)}, {vr(T,2)} op_sel:[1,1,0] op_sel_hi:[0,1,1] neg_lo:[1,0,0]")

def kgen(A):
    A(f"s_load_dwordx16 s[28:43], s[0:1], {KA['Are']}")
    A("s_sub_u32 s16, s15, 4")
    A("s_lshl1_add_u32 s17, s2, s16")
    A("s_lshl_b32 s18, s17, 8")
    A("v_lshlrev_b32 v2, 2, v1")
    A("v_add_u32 v2, s18, v2")
    A("s_lshl_b32 s18, s17, 1")
    A("v_mov_b32 v3, s18")
    A("s_waitcnt lgkmcnt(0)")
    P = 4
    for k in range(6):
        A(f"global_load_dword v{P+k}, v2, s[{28+2*k}:{29+2*k}]")
    A("global_load_ushort v10, v3, s[40:41]")
    A("global_load_ushort v11, v3, s[42:43]")
    A(f"s_mul_i32 s19, s16, {TABW}")
    A(f"s_add_u32 s19, s19, {L_TAB}")
    XE = 32 * ROW
    A("v_and_b32 v16, 31, v1")
    A("v_lshrrev_b32 v17, 5, v1")
    A("v_lshlrev_b32 v17, 4, v17")
    A(f"v_mul_u32_u24 v14, {ROW}, v16")
    A("v_add3_u32 v14, v14, v17, s19")
    A("v_bfe_u32 v18, v1, 2, 1")
    A("v_bfe_u32 v19, v1, 4, 1")
    A("v_lshl_add_u32 v18, v19, 1, v18")
    A("v_and_b32 v19, 3, v1")
    A("v_bfe_u32 v20, v1, 3, 1")
    A("v_lshl_add_u32 v19, v20, 2, v19")
    A("v_mov_b32 v20, 0x22111000")
    A("v_mov_b32 v21, 0x43222100")
    A("v_mov_b32 v22, 0x76543210")
    A("v_cmp_eq_u32 vcc, 1, v18")
    A("v_lshlrev_b32 v23, 2, v19")
    A("v_lshlrev_b32 v24, 3, v18")
    A("v_cndmask_b32 v20, v20, v21, vcc")
    A("v_cmp_eq_u32 vcc, 0, v18")
    A("s_mov_b32 s20, 0x100d0800")
    A("v_bfe_u32 v24, s20, v24, 8")
    A("v_cndmask_b32 v20, v20, v22, vcc")
    A("v_bfe_u32 v20, v20, v23, 4")
    A("v_add_u32 v20, v20, v24")
    A(f"s_add_u32 s20, s19, {XE}")
    A(f"v_mul_u32_u24 v12, {ROW}, v20")
    A("v_add3_u32 v12, v12, v17, s20")
    A("v_cmp_lt_u32 vcc, 4, v19")
    A("v_lshlrev_b32 v18, 1, v18")
    A("v_add_u32 v18, 19, v18")
    A("v_addc_co_u32 v18, vcc, 0, v18, vcc")
    A(f"v_mul_u32_u24 v13, {ROW}, v18")
    A("v_add3_u32 v13, v13, v17, s20")
    AC = 64
    for r in range(AC, AC + 32): A(f"v_mov_b32 v{r}, 0")
    A("s_mov_b32 m0, s19")
    A("s_waitcnt vmcnt(0)")
    stamp(A, 1)
    A("v_lshlrev_b32 v10, 16, v10")
    A(f"v_mul_f32 v10, {hex(LOG2E)}, v10")
    A("v_exp_f32 v10, v10")
    A("v_lshlrev_b32 v11, 16, v11")
    A("v_cvt_pk_bf16_f32 v10, v10, v10")
    A("v_and_b32 v10, 0xffff0000, v10")
    A("v_cmp_eq_u32 vcc, 0, v1")
    A("s_mov_b32 s21, 2")
    A("s_nop 0")
    A(f"v_cndmask_b32 v{AC}, v{AC}, v11, vcc")
    A("F_kloop:")
    U = 16
    for k in range(6):
        A(f"v_and_b32 v{U+k}, 0xffff0000, v{P+k}")
        A(f"v_lshlrev_b32 v{P+k}, 16, v{P+k}")
    for k in range(4):
        A(f"v_mul_f32 v{U+k}, v10, v{U+k}")
    W0 = 22; T0 = 24; T1 = 26
    cmul(A, W0, U + 4, U + 2, T0)
    E1 = 28; E2 = 30; E4 = 32; E8 = 34; E16 = 36; E256 = 38
    for n, (k, E) in enumerate(((1, E1), (8, E8), (256, E256))):
        A(f"v_mul_f32 v{40+n}, {f32hex(k*math.log2(math.e))}, v{U}")
        A(f"v_mul_f32 v{43+n}, {f32hex(k/(2*math.pi))}, v{U+1}")
    for n in range(3):
        A(f"v_exp_f32 v{40+n}, v{40+n}")
        A(f"v_fract_f32 v{43+n}, v{43+n}")
    for n, E in enumerate((E1, E8, E256)):
        A(f"v_cos_f32 v{E}, v{43+n}")
        A(f"v_sin_f32 v{E+1}, v{43+n}")
    for n, E in enumerate((E1, E8, E256)):
        A(f"v_mul_f32 v{E}, v{40+n}, v{E}")
        A(f"v_mul_f32 v{E+1}, v{40+n}, v{E+1}")
    cmul2(A, (E2, E1, E1, T0), (E16, E8, E8, T1))
    YA_, YB_ = 42, 44
    C0, C1 = 46, 47
    A(f"v_mov_b32 v{C0}, 0x00003f80")
    A(f"v_cvt_pk_bf16_f32 v{C1}, v{E8}, v{E8+1}")
    A(f"ds_write_addtid_b32 v{C0} offset:0")
    A(f"ds_write_addtid_b32 v{C1} offset:{ROW}")
    cmul2(A, (E4, E2, E2, T0), (YB_, E8, E16, T1))
    A(f"v_cvt_pk_bf16_f32 v{C0+2}, v{E16}, v{E16+1}")
    A(f"v_cvt_pk_bf16_f32 v{C1+2}, v{YB_}, v{YB_+1}")
    A(f"ds_write_addtid_b32 v{C0+2} offset:{2*ROW}")
    A(f"ds_write_addtid_b32 v{C1+2} offset:{3*ROW}")
    for j in range(4, 32, 2):
        if j in (8, 28): A("s_barrier")
        src = E16 if j == 4 else YA_
        cmul2(A, (YA_, src, E16, T0), (YB_, YB_, E16, T1))
        o = 2 * ((j >> 1) & 1)
        A(f"v_cvt_pk_bf16_f32 v{C0+o}, v{YA_}, v{YA_+1}")
        A(f"v_cvt_pk_bf16_f32 v{C1+o}, v{YB_}, v{YB_+1}")
        A(f"ds_write_addtid_b32 v{C0+o} offset:{j*ROW}")
        A(f"ds_write_addtid_b32 v{C1+o} offset:{(j+1)*ROW}")
    cnt = [0]
    def put(rg, entry):
        c = 46 + (cnt[0] & 3); cnt[0] += 1
        A(f"v_cvt_pk_bf16_f32 v{c}, v{rg}, -v{rg+1}")
        A(f"ds_write_addtid_b32 v{c} offset:{XE + entry*ROW}")
    PA = 42
    put(W0, 0)
    bases = {1: 8, 2: 13, 3: 16, 4: 19, 5: 21, 6: 23, 7: 25}
    BK = [52, 54, 56, 58, 60, 62, 44]
    for s in range(1, 8):
        cmul2(A, (PA, W0 if s == 1 else PA, E1, T0), (BK[s-1], W0 if s == 1 else BK[s-2], E256, T1))
        put(PA, s); put(BK[s-1], bases[s])
    A("s_barrier")
    seq_a = [(BK[0], E2, 9), (BK[0], E2, 10), (BK[0], E2, 11), (BK[0], E2, 12), (BK[3], E8, 20), (BK[5], E8, 24)]
    seq_b = [(BK[1], E4, 14), (BK[1], E4, 15), (BK[2], E4, 17), (BK[2], E4, 18), (BK[4], E8, 22), (BK[6], E8, 26)]
    for (ra, ea, na), (rb, eb, nb) in zip(seq_a, seq_b):
        cmul2(A, (ra, ra, ea, T0), (rb, rb, eb, T1))
        put(ra, na); put(rb, nb)
    A("s_waitcnt lgkmcnt(0)")
    F = [16, 28]
    def rd(ks, st):
        A(f"ds_read_b128 {vr(F[st],4)}, v12 offset:{ks*32}")
        A(f"ds_read_b128 {vr(F[st]+8,4)}, v14 offset:{ks*32}")
        A(f"ds_read_b128 {vr(F[st]+4,4)}, v13 offset:{ks*32}")
    rd(0, 0)
    for ks in range(8):
        st = ks & 1
        if ks < 7:
            rd(ks + 1, st ^ 1)
            A("s_waitcnt lgkmcnt(3)")
        else:
            A("s_waitcnt lgkmcnt(0)")
        A(mfma32(AC, F[st], F[st] + 8))
        A(mfma32(AC + 16, F[st] + 4, F[st] + 8))
        if ks == 3: A("s_barrier")
    A("s_sub_u32 s21, s21, 1")
    A("s_cmp_lg_u32 s21, 0")
    A("s_cbranch_scc1 F_kloop")
    stamp(A, 2)
    A("v_and_b32 v2, 31, v1")
    A("v_lshlrev_b32 v3, 6, v2")
    A("s_lshr_b32 s20, s2, 5")
    A("s_lshl_b32 s20, s20, 11")
    A(f"s_add_u32 s20, s20, {hex(F_FL)}")
    flag_wait(A, 3, "s20", 4, 21)
    A("v_lshlrev_b32 v3, 4, v1")
    A("s_lshl_b32 s20, s17, 12")
    A(f"s_add_u32 s20, s20, {hex(F_UT)}")
    A("s_add_u32 m0, s19, 512")
    A("v_and_b32 v4, 1, v1")
    for q in range(4):
        A(f"buffer_load_dwordx4 v3, s[24:27], s20 offen offset:{q*1024} sc1 lds")
    A("v_cmp_eq_u32 vcc, 1, v4")
    A("v_add_u32 v3, s19, v3")
    for r in range(4): A(f"v_mov_b32 v{16+r}, 0")
    A(f"v_cndmask_b32 v{AC+16+4}, v{AC+16+4}, v{AC+16+5}, vcc")
    A(f"v_cndmask_b32 v{AC+16+12}, v{AC+16+12}, v{AC+16+13}, vcc")
    A("v_lshrrev_b32 v4, 5, v1")
    A("v_lshl_add_u32 v4, v4, 12, v3")
    A("ds_write_b128 v4, v[16:19]")
    for q in range(4):
        a = AC + 8 * q
        for p in range(4):
            A(f"v_cvt_pk_bf16_f32 v{a+p}, v{a+2*p}, v{a+2*p+1}")
        A(f"ds_write_b128 v3, {vr(a,4)} offset:{5120 + q*1024}")
    A("s_waitcnt vmcnt(0)")

def conv(A):
    A("s_sub_u32 s16, s15, 4")
    AC = 64
    UB = L_TAB + 512
    KB = L_TAB + 5120
    A("v_and_b32 v7, 31, v1")
    A("v_lshrrev_b32 v8, 5, v1")
    A("v_lshl_add_u32 v4, v8, 2, v7")
    A("v_lshlrev_b32 v4, 4, v4")
    A("s_lshl_b32 s30, s16, 9")
    A(f"s_add_u32 s31, s30, {UB - 64 - 512}")
    A("v_add_u32 v5, s31, v4")
    A(f"s_sub_u32 s31, {UB - 64 - 512 + 7*512}, s30")
    A("v_add_u32 v4, s31, v4")
    A("v_and_b32 v6, 16, v1")
    A("v_lshlrev_b32 v6, 1, v6")
    A("v_and_b32 v9, 3, v1")
    A("v_lshl_add_u32 v6, v9, 3, v6")
    A("v_bfe_u32 v9, v1, 2, 2")
    A("v_lshl_add_u32 v9, v8, 3, v9")
    A("v_lshlrev_b32 v9, 3, v9")
    A("v_sub_u32 v6, v6, v9")
    A(f"v_add_u32 v6, {KB + 32}, v6")
    A("s_waitcnt lgkmcnt(0)")
    for r in range(AC, AC + 64): A(f"v_mov_b32 v{r}, 0")
    A("s_add_u32 s30, s16, 1")
    A("s_setprio 3")
    stamp(A, 3)
    A("s_barrier")
    SETS = [16, 40]
    def rd(nn, st, both):
        b = SETS[st]
        for ch in range(2):
            A(f"ds_read_b64_tr_b16 {vr(b+4*ch,2)}, v6 offset:{nn*128 + 32 + ch*TABW}")
            A(f"ds_read_b64_tr_b16 {vr(b+4*ch+2,2)}, v6 offset:{nn*128 + ch*TABW}")
            A(f"ds_read_b128 {vr(b+8+4*ch,4)}, v4 offset:{(4-nn)*128 + ch*TABW}")
        if both:
            for ch in range(2):
                A(f"ds_read_b128 {vr(b+16+4*ch,4)}, v5 offset:{(4-nn)*128 + ch*TABW}")
    def mm(st, both):
        b = SETS[st]
        for ch in range(2):
            A(mfma32(AC + 32 * ch, b + 8 + 4 * ch, b + 4 * ch))
        if both:
            for ch in range(2):
                A(mfma32(AC + 32 * ch + 16, b + 16 + 4 * ch, b + 4 * ch))
    rd(0, 0, True)
    A("F_c1:")
    A("s_sub_u32 s30, s30, 1")
    A("s_cmp_lg_u32 s30, 0")
    for nn in range(4):
        rd(nn + 1, (nn + 1) & 1, True)
        A("s_waitcnt lgkmcnt(8)")
        mm(nn & 1, True)
    A("v_add_u32 v6, 512, v6")
    A("v_subrev_u32 v4, 512, v4")
    A("v_subrev_u32 v5, 512, v5")
    A("s_cbranch_scc1 F_c1")
    A("s_lshl_b32 s30, s16, 1")
    A("s_sub_u32 s30, 7, s30")
    A("F_c2:")
    A("s_sub_u32 s30, s30, 1")
    A("s_cmp_lg_u32 s30, 0")
    for nn in range(4):
        rd(nn + 1, (nn + 1) & 1, False)
        A("s_waitcnt lgkmcnt(6)")
        mm(nn & 1, False)
    A("v_add_u32 v6, 512, v6")
    A("v_subrev_u32 v4, 512, v4")
    A("s_cbranch_scc1 F_c2")
    A("s_waitcnt lgkmcnt(0)")
    A("s_nop 7")
    T = 16
    def lvl(dst, src, add):
        for k in range(4):
            A(f"v_add_f32_dpp v{dst(k,0)}, v{src(k,0)}, v{add(k,0)} wave_shr:1 row_mask:0xf bank_mask:0xf bound_ctrl:0")
        for g in range(1, 4):
            for k in range(4):
                A(f"v_add_f32_dpp v{dst(k,g)}, v{src(k,g-1)}, v{add(k,g)} wave_ror:1 row_mask:0x1 bank_mask:0x1")
            for k in range(4):
                A(f"v_add_f32_dpp v{dst(k,g)}, v{src(k,g)}, v{add(k,g)} wave_shr:1 row_mask:0xf bank_mask:0xf")
    Z = lambda rho: (lambda k, g: AC + 16 * k + 4 * g + rho)
    TT = lambda k, g: T + 4 * k + g
    lvl(TT, Z(3), Z(2))
    lvl(Z(2), TT, Z(1))
    A("s_lshl_b32 s30, s16, 5")
    A(f"s_add_u32 s31, s30, {L_CARRY}")
    A(f"s_sub_u32 s32, {L_CARRY + 7*32}, s30")
    A("v_mov_b32 v4, s32")
    A("v_mov_b32 v5, s31")
    A("v_mov_b32 v8, 0")
    A("v_mov_b32 v9, 1")
    A("s_mov_b32 exec_lo, 0")
    A("s_mov_b32 exec_hi, 0x80000000")
    for k in range(4):
        ch, lo = k >> 1, k & 1
        o = (32 + 16 * ch) // 4
        A(f"ds_write2_b32 v{4+lo}, v{Z(2)(k,3)}, v{TT(k,3)} offset0:{o} offset1:{o+1}")
        A(f"ds_write_b32 v{4+lo}, v{Z(3)(k,3)} offset:{4*o+8}")
    A(f"ds_add_u32 v8, v9 offset:{C_CARRY}")
    A("s_mov_b64 exec, -1")
    lvl(Z(1), Z(2), Z(0))
    A("v_min_u32 v7, 3, v1")
    A("v_lshl_add_u32 v4, v7, 2, v4")
    A("v_lshl_add_u32 v5, v7, 2, v5")
    lds_wait(A, 8, C_CARRY, 4, 10, 33, 34)
    for k in range(4):
        ch, lo = k >> 1, k & 1
        A(f"ds_read_b32 v{32+k}, v{4+lo} offset:{16*ch}")
    A("v_lshlrev_b32 v3, 2, v1")
    A("s_lshl_b32 s34, s2, 13")
    A(f"s_add_u32 s34, s34, {hex(F_YA)}")
    A("s_lshl_b32 s30, s16, 10")
    A("s_add_u32 s35, s34, s30")
    A("s_add_u32 s34, s34, 7168")
    A("s_sub_u32 s34, s34, s30")
    A("s_waitcnt lgkmcnt(0)")
    for k in range(4):
        A(f"v_add_f32 v{Z(1)(k,0)}, v{Z(1)(k,0)}, v{32+k}")
    for lo in range(2):
        for g in range(4):
            A(f"v_cvt_pk_bf16_f32 v{40+4*lo+g}, v{Z(1)(lo,g)}, v{Z(1)(2+lo,g)}")
            A(f"buffer_store_dword v{40+4*lo+g}, v3, s[24:27], s{34+lo} offen offset:{g*256} sc1")
    A("s_lshl_b32 s40, s2, 6")
    A(f"s_add_u32 s40, s40, {hex(F_FL + 2*16384)}")
    A(f"s_mov_b32 s41, {C_YA}")
    stamp(A, 4)

def gemm(A):
    ACC = 16
    SET = [64, 92]
    A("v_and_b32 v2, 15, v1")
    A("v_lshrrev_b32 v3, 4, v1")
    A("v_lshrrev_b32 v7, 2, v2")
    A("v_and_b32 v8, 3, v1")
    A("v_lshl_add_u32 v9, v7, 3, v8")
    A("v_lshrrev_b32 v10, 1, v8")
    A("v_lshl_or_b32 v10, v7, 1, v10")
    A("v_xor_b32 v10, v10, v3")
    A("v_lshlrev_b32 v10, 4, v10")
    A("v_lshl_add_u32 v4, v9, 7, v10")
    A(f"v_add_u32 v4, {L_RING}, v4")
    A("v_xor_b32 v5, 64, v4")
    A("v_lshl_add_u32 v10, v3, 3, v7")
    A("v_lshlrev_b32 v10, 7, v10")
    A("v_lshrrev_b32 v11, 1, v7")
    A("v_and_b32 v12, 1, v3")
    A("v_lshl_or_b32 v11, v12, 1, v11")
    A("v_xor_b32 v11, s15, v11")
    A("v_lshl_add_u32 v10, v11, 5, v10")
    A("v_lshl_add_u32 v10, v8, 3, v10")
    A(f"v_add_u32 v6, {L_RING + 8192}, v10")
    A("v_lshl_add_u32 v9, v12, 2, v9")
    A("v_and_b32 v10, 32, v1")
    A("v_add_lshl_u32 v7, v9, v10, 4")
    A("v_lshlrev_b32 v3, 4, v1")
    for r in range(ACC, ACC + 48): A(f"v_mov_b32 v{r}, 0")
    for r in range(SET[1], SET[1] + 28): A(f"v_mov_b32 v{r}, 0")
    A("s_lshl2_add_u32 s30, s13, s15")
    A("s_lshl_b32 s31, s30, 16")
    A("s_lshl_b32 s32, s12, 11")
    A("s_add_u32 s31, s31, s32")
    A("s_lshl_b32 s32, s31, 1")
    A(f"s_add_u32 s31, s31, {hex(F_Q)}")
    A(f"s_add_u32 s32, s32, {hex(F_KV)}")
    A(f"s_mov_b32 s38, {hex(QSCALE)}")
    A(f"s_mov_b32 s39, {hex(QSCALE)}")
    A("s_lshl_b32 s40, s13, 5")
    A("s_add_u32 s40, s40, s12")
    A("s_lshl_b32 s40, s40, 6")
    A(f"s_add_u32 s40, s40, {hex(F_FL + 16384)}")
    A(f"s_mov_b32 s41, {C_QKV}")
    A("s_mov_b32 s36, 4")
    stamp(A, 1)
    def step(ks, st, par):
        b = SET[st]; c = SET[st ^ 1]; o = par * 32768
        rds = []
        for mat in range(3):
            for e in range(2):
                rds.append(f"ds_read_b64_tr_b16 {vr(b+16+4*mat+2*e,2)}, v6 offset:{o + mat*8192 + ks*4096 + e*512}")
        for mt in range(4):
            rds.append(f"ds_read_b128 {vr(b+4*mt,4)}, v{4+ks} offset:{o + (mt&1)*512 + (mt>>1)*4096}")
        n = 0
        for mat in range(3):
            for mt in range(4):
                d = ACC + 16 * mat + 4 * mt
                x = c + 4 * mt; w = c + 16 + 4 * mat
                if n < len(rds): A(rds[n])
                n += 1
                A(mfma16(d, x, w) if mat == 2 else mfma16(d, w, x))
    A(".p2align 3")
    A("F_gl:")
    for par in range(2):
        A("s_waitcnt lgkmcnt(0)")
        A("s_barrier")
        step(0, 0, par)
        A("s_waitcnt lgkmcnt(0)")
        A("s_sub_u32 s36, s36, 1" if par == 0 else "s_cmp_lg_u32 s36, 0")
        step(1, 1, par)
    for r in (4, 5, 6): A(f"v_xor_b32 v{r}, 0x10000, v{r}")
    A("s_cbranch_scc1 F_gl")
    A("s_waitcnt lgkmcnt(0)")
    c = SET[1]
    for mat in (1, 2, 0):
        for mt in range(4):
            d = ACC + 16 * mat + 4 * mt
            x = c + 4 * mt; w = c + 16 + 4 * mat
            A(mfma16(d, x, w) if mat == 2 else mfma16(d, w, x))
    stamp(A, 2)
    pad(A, "gemmend")
    PK = 64
    def pack(mat, dst):
        for mt in range(4):
            d = ACC + 16 * mat + 4 * mt
            A(f"v_cvt_pk_bf16_f32 v{dst+2*mt}, v{d}, v{d+1}")
            A(f"v_cvt_pk_bf16_f32 v{dst+2*mt+1}, v{d+2}, v{d+3}")
    def swaps(dst):
        for gp in range(2):
            A(f"v_permlane16_swap_b32 v{dst+4*gp}, v{dst+4*gp+2}")
            A(f"v_permlane16_swap_b32 v{dst+4*gp+1}, v{dst+4*gp+3}")
    pack(1, PK)
    pack(2, PK + 8)
    swaps(PK)
    for gp in range(2):
        A(f"buffer_store_dwordx4 {vr(PK+8+4*gp,4)}, v3, s[24:27], s32 offen offset:{gp*2048+1024} sc1")
        A(f"buffer_store_dwordx4 {vr(PK+4*gp,4)}, v7, s[24:27], s32 offen offset:{gp*2048} sc1")
    for r in range(ACC, ACC + 16, 2):
        A(f"v_pk_mul_f32 {vr(r,2)}, {vr(r,2)}, s[38:39]")
    pack(0, PK + 16)
    A("s_nop 0")
    swaps(PK + 16)
    for gp in range(2):
        A(f"buffer_store_dwordx4 {vr(PK+16+4*gp,4)}, v7, s[24:27], s31 offen offset:{gp*1024} sc1")
    stamp(A, 3)
    A("s_barrier")
    A("v_mov_b32 v16, 0x3f803f80")
    for r in range(17, 20): A(f"v_mov_b32 v{r}, v16")
    for r in range(20, 24): A(f"v_mov_b32 v{r}, 0")
    A(f"v_mul_u32_u24 v6, {KVS}, v1")
    A(f"v_add_u32 v6, {L_KV + 2048}, v6")
    A("ds_write_b128 v6, v[16:19]")
    A("ds_write_b128 v6, v[20:23] offset:16")
    A("s_waitcnt lgkmcnt(0)")
    A("v_mov_b32 v8, 0")
    A("v_mov_b32 v9, 1")
    lds_add1(A, 8, 9, C_KV1)

SA, SB, OA, OB, QA, QB = 16, 32, 48, 64, 80, 84
FS = [88, 100]
VIDX, VK, VV0, VV1 = 2, 4, 5, 6
def pv(O, V, S):
    return f"v_smfmac_f32_32x32x32_bf16 {vr(O,16)}, {vr(V,4)}, {vr(S,8)}, v{VIDX}"

def attention(A):
    A("v_mov_b32 v10, s41")
    A("v_lshlrev_b32 v3, 4, v1")
    A("s_and_b32 s30, s11, 3")
    A("s_lshl2_add_u32 s30, s10, s30")
    A("s_lshr_b32 s31, s11, 2")
    A("s_and_b32 s32, s15, 3")
    A("s_lshr_b32 s33, s15, 2")
    A("s_lshl2_add_u32 s34, s31, s32")
    A("s_lshl_b32 s34, s34, 11")
    A("s_lshl_b32 s35, s30, 16")
    A("s_add_u32 s34, s34, s35")
    A(f"s_add_u32 s34, s34, {hex(F_Q)}")
    A(f"s_mul_i32 s35, s33, {32*KVS}")
    A(f"s_add_u32 s35, s35, {L_KV}")
    A("v_and_b32 v7, 31, v1")
    A("v_lshrrev_b32 v11, 5, v1")
    A(f"v_add_u32 v{VK}, s35, v3")
    A("v_lshlrev_b32 v11, 8, v11")
    A("v_lshl_add_u32 v11, v7, 4, v11")
    A("v_add_u32 v11, 1024, v11")
    A("v_and_b32 v12, 27, v7")
    A("v_cmp_eq_u32 vcc, 16, v12")
    A("v_mov_b32 v12, 2064")
    A("v_mov_b32 v13, 2048")
    A("v_cndmask_b32 v12, v12, v13, vcc")
    A("v_cmp_gt_u32 vcc, 16, v7")
    A("v_add_u32 v13, 512, v11")
    A(f"v_mov_b32 v{VIDX}, 0xdddddddd")
    A(f"v_cndmask_b32 v{VV0}, v12, v11, vcc")
    A(f"v_cndmask_b32 v{VV1}, v12, v13, vcc")
    A(f"v_add_u32 v{VV0}, s35, v{VV0}")
    A(f"v_add_u32 v{VV1}, s35, v{VV1}")
    for r in range(SB + 8, SB + 48): A(f"v_mov_b32 v{r}, 0")
    for r in range(FS[1] + 8, FS[1] + 12): A(f"v_mov_b32 v{r}, 0")
    A("s_waitcnt vmcnt(0)")
    sk = lab("SG")
    A("s_mov_b64 exec, 1")
    A("ds_add_rtn_u32 v12, v10, v9")
    A("s_waitcnt lgkmcnt(0)")
    A("v_readfirstlane_b32 s36, v12")
    A("s_nop 0")
    A("s_cmp_eq_u32 s36, 3")
    A(f"s_cbranch_scc0 {sk}")
    A("buffer_store_dword v9, v8, s[24:27], s40 offen sc1")
    A(f"{sk}:")
    A("s_mov_b64 exec, -1")
    A("s_setprio 2")
    lds_wait(A, 8, C_KV1, 8, 12, 36, 37)
    A(f"buffer_load_dwordx4 {vr(QA,4)}, v3, s[24:27], s34 offen sc1")
    A(f"buffer_load_dwordx4 {vr(QB,4)}, v3, s[24:27], s34 offen offset:1024 sc1")
    A(f"ds_read_b128 {vr(FS[0],4)}, v{VK}")
    A(f"ds_read_b128 {vr(FS[0]+4,4)}, v{VV0}")
    A("s_mov_b32 s36, 1")
    A("s_mov_b32 s37, 0")
    A("s_waitcnt vmcnt(0) lgkmcnt(0)")
    stamp(A, 5)
    pad(A, "attn")
    A(mfma32(SA, FS[0], QA, "0"))
    A("s_nop 7")
    A("s_nop 1")
    def E(S, a, b):
        for i in range(a, b): A(f"v_exp_f32 v{S+i}, v{S+i}")
    A(".p2align 3")
    A("F_al:")
    A("s_sub_u32 s36, s36, 1")
    A("s_cmp_lg_u32 s36, 0")
    U = 4
    for t in range(U):
        cur, oth = FS[t & 1], FS[(t & 1) ^ 1]
        E(SA, 0, 2)
        A(pv(OB, oth + 8, SB + 8))
        A(f"ds_read_b128 {vr(cur+8,4)}, v{VV1} offset:{t*KVS}")
        A(f"ds_read_b128 {vr(oth,4)}, v{VK} offset:{(t+1)*KVS}")
        E(SA, 2, 6)
        A(mfma32(SB, cur, QB, "0"))
        A(f"ds_read_b128 {vr(oth+4,4)}, v{VV0} offset:{(t+1)*KVS}")
        if t == U - 1:
            for r in (VK, VV0, VV1): A(f"v_add_u32 v{r}, {U*KVS}, v{r}")
        E(SA, 6, 12)
        A(pv(OA, cur + 4, SA))
        E(SA, 12, 16)
        A("s_waitcnt lgkmcnt(0)")
        E(SB, 0, 1)
        A(pv(OA, cur + 8, SA + 8))
        E(SB, 1, 5)
        A(mfma32(SA, oth, QA, "0"))
        E(SB, 5, 11)
        A(pv(OB, cur + 4, SB))
        A(f"v_exp_f32_e64 v{SB+11}, v{SB+11}")
        E(SB, 12, 16)
    A("s_cbranch_scc1 F_al")
    A("s_add_u32 s37, s37, 1")
    A("s_cmp_eq_u32 s37, 1")
    A("s_cbranch_scc0 F_ev2")
    lds_wait(A, 8, C_KV2, 4, 12, 38, 39)
    A("s_mov_b32 s36, 6")
    A("s_branch F_al")
    A("F_ev2:")
    A("s_cmp_eq_u32 s37, 2")
    A("s_cbranch_scc0 F_aend")
    A("s_setprio 1")
    A("s_mov_b32 s36, 1")
    A("s_cmp_eq_u32 s33, 0")
    A("s_cbranch_scc0 F_al")
    lds_add1(A, 8, 9, C_FREE)
    A("s_branch F_al")
    A("F_aend:")
    A(pv(OB, FS[1] + 8, SB + 8))
    lds_wait(A, 8, C_FREE, 4, 12, 38, 39)
    A("s_lshl_b32 s38, s15, 11")
    A(f"s_add_u32 s38, s38, {L_XCH}")
    A("v_add_u32 v10, s38, v3")
    A("s_lshl_b32 s38, s15, 8")
    A(f"s_add_u32 s38, s38, {L_LX}")
    A("v_lshl_add_u32 v11, v1, 2, s38")
    A("s_lshl_b32 s38, s32, 2")
    A("v_mov_b32 v13, s38")
    A("s_cmp_eq_u32 s33, 0")
    A("s_cbranch_scc1 F_x0")
    A(f"ds_write_b128 v10, {vr(OA,4)}")
    A(f"ds_write_b128 v10, {vr(OA+4,4)} offset:1024")
    A(f"ds_write_b32 v11, v{OA+8}")
    for r in range(9): A(f"v_mov_b32 v{SA+r}, v{OB+r}")
    for r in range(4): A(f"v_mov_b32 v{QA+r}, v{QB+r}")
    A("s_add_u32 s34, s34, 1024")
    A("v_subrev_u32 v10, 8192, v10")
    A("v_subrev_u32 v11, 1024, v11")
    A("s_branch F_x1")
    A("F_x0:")
    A(f"ds_write_b128 v10, {vr(OB,4)}")
    A(f"ds_write_b128 v10, {vr(OB+4,4)} offset:1024")
    A(f"ds_write_b32 v11, v{OB+8}")
    for r in range(9): A(f"v_mov_b32 v{SA+r}, v{OA+r}")
    A("v_add_u32 v10, 8192, v10")
    A("v_add_u32 v11, 1024, v11")
    A("F_x1:")
    lds_add1(A, 13, 9, C_PAIR)
    lds_wait(A, 13, C_PAIR, 2, 12, 38, 39)
    A(f"ds_read_b128 {vr(OA,4)}, v10")
    A(f"ds_read_b128 {vr(OA+4,4)}, v10 offset:1024")
    A(f"ds_read_b32 v{OA+8}, v11")
    A("s_mov_b32 s38, 0x17800000")
    A("s_mov_b32 s39, 0x50000000")
    A("s_lshl_b32 s40, s31, 5")
    A("s_add_u32 s40, s40, s30")
    A("s_lshl_b32 s40, s40, 6")
    A(f"s_add_u32 s40, s40, {hex(F_FL + 3*16384)}")
    A("s_waitcnt lgkmcnt(0)")
    for r in (8, 0, 1, 2, 3, 4, 5, 6, 7): A(f"v_add_f32 v{OA+r}, v{OA+r}, v{SA+r}")
    A("F_fin:")
    A(f"v_rcp_f32 v12, v{OA+8}")
    A(f"v_mov_b32 v7, v{OA+8}")
    for r in range(8): A(f"v_mul_f32 v{OA+r}, v{OA+r}, v12")
    for r in range(8): A(f"v_fma_f32 v7, v{OA+r}, 0, v7")
    A("v_subrev_u32 v7, s38, v7")
    A("v_cmp_gt_u32 vcc, s39, v7")
    for p in range(4): A(f"v_cvt_pk_bf16_f32 v{SA+p}, v{OA+2*p}, v{OA+2*p+1}")
    A("s_cmp_eq_u64 vcc, -1")
    A("s_cbranch_scc0 F_slow")
    A("F_store:")
    pad(A, "ostore")
    A(f"buffer_store_dwordx4 {vr(SA,4)}, v3, s[24:27], s34 offen sc1")
    A("s_waitcnt vmcnt(0)")
    signal_last(A, 8, 9, 12, 36, C_O, 8, 40)
    dump(A, 0, 6)
    A("s_endpgm")
    A("F_slow:")
    A("s_cmp_eq_u32 s37, 9")
    A("s_cbranch_scc1 F_store")
    A("s_mov_b32 s37, 9")
    A("s_lshl_b32 s35, s30, 17")
    A(f"s_add_u32 s35, s35, {hex(F_KV)}")
    A("v_mov_b32 v12, 0xff800000")
    A("s_mov_b32 s36, s35")
    A("s_mov_b32 s41, 64")
    A("F_slow1:")
    A(f"buffer_load_dwordx4 {vr(FS[0],4)}, v3, s[24:27], s36 offen sc1")
    A("s_add_u32 s36, s36, 2048")
    A("s_waitcnt vmcnt(0)")
    A(mfma32(SA, FS[0], QA, "0"))
    A("s_nop 7")
    A("s_nop 3")
    for r in range(0, 16, 2): A(f"v_max3_f32 v12, v12, v{SA+r}, v{SA+r+1}")
    A("s_sub_u32 s41, s41, 1")
    A("s_cmp_lg_u32 s41, 0")
    A("s_cbranch_scc1 F_slow1")
    A("v_mov_b32 v13, v12")
    A("s_nop 1")
    A("v_permlane32_swap_b32 v12, v13")
    A("s_nop 1")
    A("v_max_f32 v14, v12, v13")
    for r in range(16): A(f"v_mov_b32 v{OA+r}, 0")
    for r in range(4, 12): A(f"v_mov_b32 v{FS[0]+r}, 0x3f803f80")
    A("v_and_b32 v10, 15, v1")
    A("v_lshrrev_b32 v11, 5, v1")
    A("v_lshlrev_b32 v11, 8, v11")
    A("v_lshl_add_u32 v10, v10, 4, v11")
    A("s_mov_b32 s41, 64")
    A("F_slow2:")
    A(f"buffer_load_dwordx4 {vr(FS[0],4)}, v3, s[24:27], s35 offen sc1")
    A("s_mov_b32 exec_lo, 0xffff")
    A("s_mov_b32 exec_hi, 0xffff")
    A(f"buffer_load_dwordx4 {vr(FS[0]+4,4)}, v10, s[24:27], s35 offen offset:1024 sc1")
    A(f"buffer_load_dwordx4 {vr(FS[0]+8,4)}, v10, s[24:27], s35 offen offset:1536 sc1")
    A("s_mov_b64 exec, -1")
    A("s_add_u32 s35, s35, 2048")
    A("s_waitcnt vmcnt(0)")
    A(mfma32(SA, FS[0], QA, "0"))
    A("s_nop 7")
    A("s_nop 3")
    for r in range(16): A(f"v_sub_f32 v{SA+r}, v{SA+r}, v14")
    for r in range(16): A(f"v_exp_f32 v{SA+r}, v{SA+r}")
    A("s_nop 1")
    A(pv(OA, FS[0] + 4, SA))
    A(pv(OA, FS[0] + 8, SA + 8))
    A("s_sub_u32 s41, s41, 1")
    A("s_cmp_lg_u32 s41, 0")
    A("s_nop 7")
    A("s_nop 3")
    A("s_cbranch_scc1 F_slow2")
    A("s_branch F_fin")
```

```python
NAME = "gated_mix__ssm_conv_s4__softmax_full_mha__prompt"

WS_QKV = 0
WS_Q = 0
WS_K = 2 << 20
WS_V = 4 << 20
WS_UT = 6 << 20
WS_KX = 8 << 20
WS_O = 10 << 20
WS_YA = 12 << 20
WS_G = 14 << 20
WS_SIZE = 16 << 20

KA = dict(u=0, Are=8, Aim=16, Bre=24, Bim=32, Cre=40, Cim=48, logdt=56, Dskip=64, x=72, wqkv=80, wo=88, gw=96, out=104, dbg=112, ws=120)

class Asm:
    def __init__(self):
        self.l = []
    def __call__(self, s):
        for t in s.split("\n"):
            t = t.strip()
            if t: self.l.append(t if t.endswith(":") or t.startswith(".") else "  " + t)
    def text(self):
        return "\n".join(self.l) + "\n"

def vr(a, n):
    return f"v[{a}:{a+n-1}]" if n > 1 else f"v{a}"
def sr(a, n):
    return f"s[{a}:{a+n-1}]" if n > 1 else f"s{a}"

def srd(A, d, base, nbytes):
    A(f"s_mov_b32 s{d}, s{base}")
    A(f"s_mov_b32 s{d+1}, s{base+1}")
    A(f"s_mov_b32 s{d+2}, {hex(nbytes)}")
    A(f"s_mov_b32 s{d+3}, 0x20000")

def kernel_head(A, name):
    A(f".globl {name}")
    A(".p2align 8")
    A(f".type {name},@function")
    A(f"{name}:")

def kernel_desc(A, name, vgpr, sgpr=96):
    acc = (vgpr + 3) // 4 * 4
    A(".p2align 6")
    A(f".amdhsa_kernel {name}")
    for t in (f".amdhsa_next_free_vgpr {vgpr}", f".amdhsa_next_free_sgpr {sgpr}", f".amdhsa_accum_offset {acc}",
              ".amdhsa_group_segment_fixed_size 0", ".amdhsa_kernarg_size 128", ".amdhsa_user_sgpr_count 2",
              ".amdhsa_user_sgpr_kernarg_segment_ptr 1", ".amdhsa_system_sgpr_workgroup_id_x 1",
              ".amdhsa_float_denorm_mode_32 3"):
        A.l.append("  " + t)
    A(".end_amdhsa_kernel")

def mfma32(D, Aop, Bop, C=None):
    c = vr(D, 16) if C is None else (C if isinstance(C, str) else vr(C, 16))
    return f"v_mfma_f32_32x32x16_bf16 {vr(D,16)}, {vr(Aop,4)}, {vr(Bop,4)}, {c}"

def swap23(A, dst, src, t0, t1):
    A(f"v_and_b32 v{dst}, 0x13, v{src}")
    A(f"v_and_b32 v{t0}, 4, v{src}")
    A(f"v_and_b32 v{t1}, 8, v{src}")
    A(f"v_lshl_or_b32 v{dst}, v{t0}, 1, v{dst}")
    A(f"v_lshrrev_b32 v{t1}, 1, v{t1}")
    A(f"v_or_b32 v{dst}, v{dst}, v{t1}")

STAMPS = [False]
WS_ST = 32 << 20
NAMES = {}
def tick(A, name):
    if not STAMPS[0]: return
    i = NAMES.setdefault(name, len(NAMES) + 1)
    A("s_cselect_b32 s70, 1, 0")
    A("s_memtime s[64:65]")
    A("s_memrealtime s[66:67]")
    A("s_waitcnt lgkmcnt(0)")
    A("s_and_b32 s66, s66, 0xffffff")
    A(f"s_or_b32 s66, s66, {hex(i << 24)}")
    A("s_mov_b32 s71, m0")
    A("s_mov_b32 m0, s68")
    A("v_writelane_b32 v15, s64, m0")
    A("s_add_u32 m0, s68, 1")
    A("s_add_u32 s68, s68, 2")
    A("v_writelane_b32 v15, s66, m0")
    A("s_mov_b32 m0, s71")
    A("s_cmp_lg_u32 s70, 0")
def stamp(A, idx): pass
def dump(A, kidx=0, n=0, wave_sgpr="s63", nowait=False):
    if not STAMPS[0]: return
    if not nowait: A("s_waitcnt vmcnt(0)")
    tick(A, "end")
    A("s_lshl_b32 s60, s2, 4")
    A(f"s_add_u32 s60, s60, {wave_sgpr}")
    A("s_lshl_b32 s60, s60, 8")
    A(f"s_add_u32 s60, s60, {hex(WS_ST)}")
    A("v_lshl_add_u32 v0, v1, 2, s60")
    A("global_store_dword v0, v15, s[8:9]")
def savewave(A):
    if STAMPS[0]:
        A("s_mov_b32 s63, s15")
        A("s_mov_b32 s68, 0")
        A("v_mov_b32 v15, 0")
def bar(A, name="bar"):
    import os
    if os.environ.get("BARTICK"): tick(A, name + "<")
    A("s_barrier")

PAD = [None, 0]
def pad_init(A):
    if PAD[0] is not None: A("s_memrealtime s[56:57]")
def pad(A, point):
    if PAD[0] != point: return
    import random
    l = "PD%d" % random.randrange(1 << 30)
    A(f"{l}:")
    A("s_memrealtime s[58:59]")
    A("s_waitcnt lgkmcnt(0)")
    A("s_sub_u32 s58, s58, s56")
    A(f"s_cmp_lt_u32 s58, {PAD[1]}")
    A(f"s_cbranch_scc1 {l}")
```

```python
from common import *
import math, struct

def f32hex(x): return hex(struct.unpack("<I", struct.pack("<f", x))[0])
LOG2E = 0x3fb8aa3b
QSCALE = 0x3eb8aa3b

def reg(i): return (i << 21) + ((i + 1) << 12)
F_Q = reg(0)
F_KV = reg(1)
F_UT = reg(3)
F_YA = reg(4)
F_FL = reg(5)
NCLR = 28
F_YC = F_FL + (128 << 10)
FWS = 12 << 20
HOLES = [0, (1 << 21) + (1 << 12), (3 << 21) + (2 << 12), (4 << 21) + (4 << 12), (5 << 21) + (5 << 12)]

L_CNT = 0
C_QKV, C_KV1, C_KV2, C_CARRY, C_YA, C_FREE, C_O, C_RING, C_PAIR, C_F1, C_CIN, C_YA2 = 0, 4, 8, 12, 16, 20, 24, 28, 32, 48, 52, 56
C_FULL, C_FR, C_KX, C_ANN, C_UT, C_ISS, C_TAB, C_CAR2 = 64, 96, 60, 28, 672, 676, 680, 688
L_G = 128
L_S1, L_S2, L_S3, L_SU = 384, 400, 416, 432
C_WO = 448
C_ST = 452
L_TAB = 768
TABW = 9216
L_U = L_TAB + 1024
L_KXA = L_TAB + 9216 + 512
ROW = 272
L_RING = 32768
L_Q = L_TAB + 2 * TABW
L_KV = L_Q + 8192
KVS = 2080
L_WO = 1024
L_XCH = 66560
L_LX = L_KV + 64 * KVS
L_O = 98304
F_LDS = 163840
SPIN = 200000
import os
OPT = dict(kv.split('=') for kv in os.environ.get('FOPT', '').split(',') if kv)
NPF = int(OPT.get('npf', 5 if not STAMPS[0] else 7))

class G:
    n = 0
def lab(p):
    G.n += 1
    return f"{p}{G.n}"

def lds_wait(A, addr_v, off, target, tmp_v, tmp_s, cnt_s, sleep=1, pre=False):
    l = lab("LW"); d = lab("LD")
    if pre:
        A(f"v_readfirstlane_b32 s{tmp_s}, v{tmp_v}")
        A(f"s_mov_b32 s{cnt_s}, 0")
        A(f"s_cmp_ge_u32 s{tmp_s}, {target}")
        A(f"s_cbranch_scc1 {d}")
    else:
        A(f"s_mov_b32 s{cnt_s}, 0")
    A(f"{l}:")
    A(f"ds_read_b32 v{tmp_v}, v{addr_v} offset:{off}")
    A("s_waitcnt lgkmcnt(0)")
    A(f"v_readfirstlane_b32 s{tmp_s}, v{tmp_v}")
    A(f"s_add_u32 s{cnt_s}, s{cnt_s}, 1")
    A(f"s_cmp_ge_u32 s{tmp_s}, {target}")
    A(f"s_cbranch_scc1 {d}")
    if sleep: A(f"s_sleep {sleep}")
    A(f"s_cmp_lt_u32 s{cnt_s}, {hex(SPIN * 8)}")
    A(f"s_cbranch_scc1 {l}")
    A(f"{d}:")

def flag_wait(A, voff, soff, tmp_v, cnt_s, srd_="s[24:27]", sleep=1):
    l = lab("FW"); d = lab("FD")
    A(f"s_mov_b32 s{cnt_s}, 0")
    A(f"{l}:")
    A(f"buffer_load_dword v{tmp_v}, v{voff}, {srd_}, {soff} offen sc1")
    A("s_waitcnt vmcnt(0)")
    A(f"v_cmp_eq_u32 vcc, 1, v{tmp_v}")
    A(f"s_add_u32 s{cnt_s}, s{cnt_s}, 1")
    A("s_cmp_eq_u64 vcc, -1")
    A(f"s_cbranch_scc1 {d}")
    A(f"s_sleep {sleep}")
    A(f"s_cmp_lt_u32 s{cnt_s}, {hex(SPIN)}")
    A(f"s_cbranch_scc1 {l}")
    A(f"{d}:")

def mark_wait(A, zero_v, off, tmp4, tmp_s, cnt_s, sleep=0):
    l = lab("MW"); d = lab("MD")
    A(f"s_mov_b32 s{cnt_s}, 0")
    A(f"{l}:")
    A(f"ds_read_b128 {vr(tmp4,4)}, v{zero_v} offset:{off}")
    A("s_waitcnt lgkmcnt(0)")
    A(f"v_min3_u32 v{tmp4}, v{tmp4}, v{tmp4+1}, v{tmp4+2}")
    A(f"v_min_u32 v{tmp4}, v{tmp4}, v{tmp4+3}")
    A(f"s_add_u32 s{cnt_s}, s{cnt_s}, 1")
    A(f"v_readfirstlane_b32 s{tmp_s}, v{tmp4}")
    A("s_nop 0")
    A(f"s_cmp_lg_u32 s{tmp_s}, 0")
    A(f"s_cbranch_scc1 {d}")
    if sleep: A(f"s_sleep {sleep}")
    A(f"s_cmp_lt_u32 s{cnt_s}, {hex(SPIN * 8)}")
    A(f"s_cbranch_scc1 {l}")
    A(f"{d}:")

def mark(A, off, lw4_s, zero_v, src_s):
    A(f"s_add_u32 m0, s{lw4_s}, {off}")
    A("s_mov_b64 exec, 1")
    A(f"buffer_load_dword v{zero_v}, s[24:27], s{src_s} offen sc1 lds")
    A("s_mov_b64 exec, -1")

def lds_add1(A, zero_v, one_v, off):
    A("s_mov_b64 exec, 1")
    A(f"ds_add_u32 v{zero_v}, v{one_v} offset:{off}")
    A("s_mov_b64 exec, -1")

def signal_last(A, zero_v, one_v, tmp_v, tmp_s, off, n, flag_s):
    sk = lab("SG")
    A("s_mov_b64 exec, 1")
    A(f"ds_add_rtn_u32 v{tmp_v}, v{zero_v}, v{one_v} offset:{off}")
    A("s_waitcnt lgkmcnt(0)")
    A(f"v_readfirstlane_b32 s{tmp_s}, v{tmp_v}")
    A("s_nop 0")
    A(f"s_cmp_eq_u32 s{tmp_s}, {n-1}")
    A(f"s_cbranch_scc0 {sk}")
    A(f"buffer_store_dword v{one_v}, v{zero_v}, s[24:27], s{flag_s} offen sc1")
    A(f"{sk}:")
    A("s_mov_b64 exec, -1")

def mfma16(D, Aop, Bop):
    return f"v_mfma_f32_16x16x32_bf16 {vr(D,4)}, {vr(Aop,4)}, {vr(Bop,4)}, {vr(D,4)}"

def gen_fused(A, name):
    kernel_head(A, name)
    A("F_start:")
    pad_init(A)
    npf = int(OPT.get('npf', 6 if STAMPS[0] else 5))
    A("s_load_dwordx16 s[72:87], s[0:1], 0")
    A("s_load_dwordx16 s[40:55], s[0:1], 64")
    A("v_lshrrev_b32 v2, 6, v0")
    A("s_cmp_ge_u32 s2, 256")
    A("v_readfirstlane_b32 s15, v2")
    A("s_cbranch_scc1 F_done")
    A("v_and_b32 v1, 63, v0")
    A("s_sub_u32 s15, s15, 1")
    A("s_cbranch_scc0 F_role")
    A(f"s_cmp_lt_u32 s2, {8*npf}")
    A("s_cbranch_scc0 F_pf1")
    A("s_getpc_b64 s[30:31]")
    A("s_lshr_b32 s32, s2, 3")
    A("s_lshl_b32 s32, s32, 12")
    A("v_lshl_add_u32 v2, v1, 6, s32")
    A("global_load_dword v3, v2, s[30:31]")
    A("F_pf1:")
    A("v_lshlrev_b32 v2, 4, v1")
    for r in range(4, 8): A(f"v_mov_b32 v{r}, 0")
    A("s_mov_b32 exec_hi, 0xfff")
    A("ds_write_b128 v2, v[4:7]")
    A("s_mov_b32 exec_hi, -1")
    A("v_lshlrev_b32 v2, 6, v1")
    A("s_lshl_b32 s33, s2, 12")
    A(f"s_add_u32 s33, s33, {hex(F_FL)}")
    A("v_add_u32 v2, s33, v2")
    A(f"s_cmp_lt_u32 s2, {NCLR}")
    A("s_waitcnt lgkmcnt(0)")
    A("s_cbranch_scc0 F_pf2")
    A("global_store_dword v2, v4, s[54:55] sc1")
    A("s_lshl_b32 s33, s2, 2")
    A("v_mov_b32 v2, s33")
    A("v_mov_b32 v5, 1")
    A("s_mov_b64 exec, 1")
    A("s_waitcnt vmcnt(0)")
    A("global_store_dword v2, v5, s[52:53] sc1")
    A("F_pf2:")
    for k, h in enumerate(HOLES):
        A(f"s_mov_b32 s32, {hex(h)}")
        A(f"s_load_dword s{16+k}, s[54:55], s32")
    A("s_load_dword s21, s[46:47], 0")
    A("s_load_dword s22, s[50:51], 0")
    A("s_endpgm")
    A("F_role:")
    A("s_and_b32 s10, s2, 7")
    A("s_lshr_b32 s11, s2, 3")
    A("s_lshr_b32 s12, s10, 1")
    A("s_lshl_b32 s12, s12, 3")
    A("s_and_b32 s3, s11, 7")
    A("s_add_u32 s12, s12, s3")
    A("s_and_b32 s6, s10, 1")
    A("s_lshr_b32 s7, s11, 3")
    A("s_lshl2_add_u32 s13, s6, s7" if OPT.get("hgmap", "0") == "0" else "s_lshl1_add_u32 s13, s7, s6")
    A("s_lshl1_add_u32 s14, s7, s6")
    A("s_add_u32 s14, s14, s3")
    A("s_and_b32 s14, s14, 7")
    savewave(A)
    A("s_bitcmp1_b32 0xf0, s15")
    A("s_cbranch_scc0 F_notkgen")
    A("s_and_b32 s16, s15, 1")
    A("s_lshl1_add_u32 s17, s2, s16")
    A("s_lshl_b32 s18, s17, 8")
    A("v_lshl_add_u32 v2, v1, 2, s18")
    A("s_lshl_b32 s18, s17, 1")
    A("v_mov_b32 v3, s18")
    A("s_waitcnt lgkmcnt(0)")
    for k in range(6):
        A(f"global_load_dword v{4+k}, v2, s[{74+2*k}:{75+2*k}]")
    A("global_load_ushort v10, v3, s[86:87]")
    A("global_load_ushort v11, v3, s[40:41]")
    A("s_branch F_notloader")
    A("F_notkgen:")
    A("s_bitcmp1_b32 0xf00, s15")
    A("s_cbranch_scc1 F_side")
    A("s_cmp_lt_u32 s15, 13")
    A("s_cbranch_scc1 F_notloader")
    A("v_and_b32 v2, 15, v1")
    A("v_and_b32 v3, 48, v1")
    A("v_lshl_add_u32 v2, v2, 6, v3")
    A("s_waitcnt lgkmcnt(0)")
    A("global_load_dwordx4 v[64:67], v2, s[48:49]")
    A("s_branch F_notloader")
    A("F_side:")
    side(A)
    A("F_notloader:")
    A("s_waitcnt lgkmcnt(0)")
    tick(A, "start")
    A("s_mov_b32 s8, s54")
    A("s_mov_b32 s9, s55")
    srd(A, 24, 54, FWS)
    A("s_cmp_lt_u32 s15, 4")
    A("s_cbranch_scc1 F_gemm")
    A("s_cmp_lt_u32 s15, 8")
    A("s_cbranch_scc1 F_kgen")
    misc(A)
    A("F_kgen:")
    kgen(A)
    A("s_branch F_conv")
    A("F_gemm:")
    gemm(A)
    A("F_conv:")
    conv(A)
    attention(A)
    A("F_done:")
    A("s_endpgm")
    A("F_codeend:")
    A(f".fill (({npf}*4096 + 256 - (F_codeend - F_start)) >> 2), 4, 0xbf810000")

def side(A):
    A("s_sub_u32 s15, s15, 8")
    A("v_lshrrev_b32 v2, 3, v1")
    A("v_bfe_u32 v3, v1, 4, 1")
    A("v_and_b32 v6, 7, v1")
    A("s_and_b32 s30, s15, 1")
    A("s_lshl_b32 s30, s30, 2")
    A("v_xor_b32 v7, v6, v3")
    A("v_xor_b32 v7, s30, v7")
    A("v_lshlrev_b32 v7, 4, v7")
    A("v_lshl_add_u32 v4, v2, 10, v7")
    A("v_xor_b32 v5, 32, v4")
    A("v_lshlrev_b32 v3, 1, v3")
    A("v_xor_b32 v7, v6, v3")
    A("v_mul_u32_u24 v6, 3072, v2")
    A("v_lshl_add_u32 v6, v7, 4, v6")
    A("v_xor_b32 v7, 64, v6")
    A("s_lshl_b32 s30, s12, 16")
    A("s_lshl_b32 s31, s15, 14")
    A("s_add_u32 s30, s30, s31")
    A("s_mul_i32 s31, s15, 49152")
    A("s_lshl_b32 s32, s13, 7")
    A("s_add_u32 s31, s31, s32")
    A("s_lshl_b32 s32, s15, 11")
    A(f"s_add_u32 s32, s32, {L_RING}")
    A("s_mov_b32 s33, 0")
    A("s_waitcnt lgkmcnt(0)")
    tick(A, "start")
    pad(A, "start")
    srd(A, 16, 72, 2048 * 512 * 2)
    srd(A, 20, 44, 512 * 1536 * 2)
    A("s_setprio 3")
    thr = int(OPT.get("thr", 63))
    GW = 64; GM = 68; X = 76; GA = 84; XA = 88
    def issue():
        A("s_add_u32 s34, s14, s33")
        A("s_and_b32 s34, s34, 7")
        A("s_lshl_b32 s35, s34, 7")
        A("s_add_u32 s35, s35, s30")
        A("s_mul_i32 s36, s34, 196608")
        A("s_add_u32 s36, s36, s31")
        A("s_and_b32 s37, s33, 3")
        A("s_lshl_b32 s37, s37, 15")
        A("s_add_u32 m0, s37, s32")
        A("s_add_u32 s38, s35, 7168")
        if thr < 63: A(f"s_waitcnt vmcnt({thr})")
        A("buffer_load_dwordx4 v4, s[16:19], s35 offen lds")
        A("buffer_load_dwordx4 v5, s[16:19], s38 offen offset:1024 lds")
        for mat in range(3):
            A("s_add_u32 m0, m0, 8192")
            A(f"s_add_u32 s38, s36, {24576 - 1024}")
            if thr < 63: A(f"s_waitcnt vmcnt({thr})")
            A("buffer_load_dwordx4 v6, s[20:23], s36 offen lds")
            A("buffer_load_dwordx4 v7, s[20:23], s38 offen offset:1024 lds")
            if mat < 2: A("s_add_u32 s36, s36, 1024")
    A("F_ld:")
    A("s_cmp_lt_u32 s33, 3")
    A("s_cbranch_scc1 F_ld1")
    A("s_waitcnt vmcnt(16)")
    bar(A)
    A("F_ld1:")
    issue()
    A("s_add_u32 s33, s33, 1")
    A("s_cmp_lt_u32 s33, 8")
    A("s_cbranch_scc1 F_ld")
    A("s_mov_b32 s8, s54")
    A("s_mov_b32 s9, s55")
    srd(A, 24, 54, FWS)
    for n in (16, 8, 0):
        A(f"s_waitcnt vmcnt({n})")
        bar(A)
    tick(A, "ld_done")
    if PAD[0] == "endmin":
        A("s_not_b32 s58, s56")
        A("v_mov_b32 v2, 0")
        A("v_mov_b32 v3, s58")
        A("s_mov_b64 exec, 1")
        A("global_atomic_umax v2, v3, s[52:53] offset:128")
        A("s_mov_b64 exec, -1")
    A("v_lshlrev_b32 v3, 4, v1")
    A("v_and_b32 v2, 31, v1")
    A("v_lshlrev_b32 v2, 6, v2")
    A("v_lshrrev_b32 v4, 2, v1")
    A("v_lshrrev_b32 v5, 4, v1")
    A("v_xor_b32 v4, v4, v5")
    A("v_and_b32 v4, 1, v4")
    A("v_lshlrev_b32 v4, 4, v4")
    A("v_and_b32 v5, 3, v1")
    A("v_lshl_add_u32 v4, v5, 5, v4")
    A("v_lshrrev_b32 v5, 3, v1")
    A("v_lshl_add_u32 v4, v5, 7, v4")
    A("v_mov_b32 v8, 0")
    A("v_mov_b32 v9, 1")
    A("s_lshl_b32 s29, s15, 2")
    A("s_lshr_b32 s30, s2, 5")
    A("s_lshl_b32 s30, s30, 11")
    A(f"s_add_u32 s30, s30, {hex(F_FL)}")
    A("s_lshl_b32 s31, s15, 11")
    A("s_lshl_b32 s33, s2, 13")
    A("s_add_u32 s33, s33, s31")
    A(f"s_add_u32 s33, s33, {hex(F_UT)}")
    A(f"s_add_u32 m0, s31, {L_U}")
    flag_wait(A, 2, "s30", 10, 34)
    tick(A, "F0seen")
    A("buffer_load_dwordx4 v4, s[24:27], s33 offen sc1 lds")
    A("buffer_load_dwordx4 v4, s[24:27], s33 offen offset:1024 sc1 lds")
    mark(A, L_SU, 29, 8, 30)
    A("s_lshl_b32 s30, s10, 11")
    A("s_lshl4_add_u32 s30, s29, s30")
    A(f"s_add_u32 s30, s30, {hex(F_FL + 16384)}")
    A("v_and_b32 v5, 7, v1")
    A("v_lshlrev_b32 v5, 8, v5")
    A("s_and_b32 s31, s11, 3")
    A("s_lshl2_add_u32 s31, s10, s31")
    A("s_lshl_b32 s37, s31, 16")
    A("s_lshr_b32 s28, s11, 2")
    A("s_lshl_b32 s32, s28, 13")
    A("s_add_u32 s37, s37, s32")
    A("s_lshl_b32 s31, s31, 17")
    A(f"s_add_u32 s31, s31, {hex(F_KV)}")
    A("s_lshl_b32 s32, s15, 11")
    A("s_add_u32 s37, s37, s32")
    A(f"s_add_u32 s37, s37, {hex(F_Q)}")
    A(f"s_add_u32 s38, s32, {L_Q}")
    A("s_lshl1_add_u32 s31, s32, s31")
    A(f"s_mul_i32 s33, s15, {KVS}")
    A(f"s_add_u32 s33, s33, {L_KV}")
    A("v_and_b32 v10, 1, v1")
    A("v_cmp_eq_u32 vcc, 0, v10")
    A("v_bfe_u32 v11, v1, 1, 4")
    A("v_mov_b32 v16, 0x3f803f80")
    A("v_cndmask_b32 v16, 0, v16, vcc")
    A(f"v_mul_u32_u24 v11, {4*KVS}, v11")
    A("v_lshl_add_u32 v11, v10, 4, v11")
    A("v_add_u32 v11, s33, v11")
    for r in range(17, 20): A(f"v_mov_b32 v{r}, v16")
    lds_wait(A, 8, C_FR, 6, 10, 34, 35)
    lds_wait(A, 8, C_KX, 4, 10, 34, 35)
    A("ds_write_b128 v11, v[16:19] offset:2048")
    A("s_mov_b32 s36, 0xff")
    A("s_mov_b32 s39, 0")
    A("s_cmp_eq_u32 s15, 0")
    A("s_cbranch_scc0 F_f1w")
    A("v_bfe_u32 v6, v1, 3, 2")
    A("v_lshl_add_u32 v6, v6, 6, v5")
    A("s_lshl_b32 s41, 0x01010101, s28")
    lds_wait(A, 8, C_QKV, 4, 10, 34, 35)
    A("s_mov_b32 s34, 0")
    A("F_f1p:")
    A("buffer_load_dword v10, v6, s[24:27], s30 offen sc1")
    A("s_add_u32 s34, s34, 1")
    A("s_waitcnt vmcnt(0)")
    A("v_cmp_eq_u32 vcc, 1, v10")
    A(f"s_cmp_lt_u32 s34, {hex(SPIN)}")
    A("s_cselect_b32 s35, vcc_lo, -1")
    A("s_and_b32 s42, s35, s41")
    A("s_cmp_eq_u32 s42, s41")
    A("s_cbranch_scc0 F_f1p")
    A("v_mov_b32 v10, s35")
    A(f"ds_write_b32 v8, v10 offset:{C_F1}")
    A("s_branch F_f1d")
    A("F_f1w:")
    lds_wait(A, 8, C_F1, 1, 10, 35, 34)
    A("s_lshl_b32 s41, s15, 3")
    A("s_lshr_b32 s35, s35, s41")
    A("F_f1d:")
    tick(A, "F1seen")
    A("s_mov_b32 s34, 0")
    A("s_and_b32 s35, s35, s36")
    A("s_cbranch_scc1 F_kv1")
    A("F_kv:")
    A("buffer_load_dword v10, v5, s[24:27], s30 offen sc1")
    A("s_add_u32 s34, s34, 1")
    A("s_waitcnt vmcnt(0)")
    A("v_cmp_eq_u32 vcc, 1, v10")
    A(f"s_cmp_lt_u32 s34, {hex(SPIN)}")
    A("s_cselect_b32 s35, vcc_lo, -1")
    A("s_and_b32 s35, s35, s36")
    A("s_cbranch_scc1 F_kv1")
    A("s_sleep 1")
    A("s_branch F_kv")
    A("F_kv1:")
    A("s_ff1_i32_b32 s40, s35")
    A("s_bitcmp1_b32 s35, s28")
    A("s_cbranch_scc0 F_kv2")
    A("s_mov_b32 m0, s38")
    A("s_mov_b32 s40, s28")
    A("buffer_load_dwordx4 v3, s[24:27], s37 offen sc1 lds")
    A("buffer_load_dwordx4 v3, s[24:27], s37 offen offset:1024 sc1 lds")
    A("s_add_u32 s39, s39, 16")
    A("F_kv2:")
    A("s_lshl_b32 s41, s40, 14")
    A("s_mov_b32 m0, s33")
    A("s_add_u32 s41, s41, s31")
    A("buffer_load_dwordx4 v3, s[24:27], s41 offen sc1 lds")
    A("buffer_load_dwordx4 v3, s[24:27], s41 offen offset:1024 sc1 lds")
    A(f"s_add_u32 m0, s33, {32*KVS - 2048}")
    A("s_bitset0_b32 s35, s40")
    A("buffer_load_dwordx4 v3, s[24:27], s41 offen offset:2048 sc1 lds")
    A("buffer_load_dwordx4 v3, s[24:27], s41 offen offset:3072 sc1 lds")
    A("s_bitset0_b32 s36, s40")
    A(f"s_add_u32 s33, s33, {4*KVS}")
    A("s_add_u32 s39, s39, 1")
    A("s_lshl_b32 s41, s40, 8")
    A("s_add_u32 s41, s41, s30")
    A("s_sub_u32 s42, s39, 18")
    A("s_cmp_lt_u32 s42, 14")
    A("s_cbranch_scc0 F_kv3")
    mark(A, L_S1, 29, 8, 41)
    tick(A, "m1")
    A("s_add_u32 s39, s39, 32")
    A("F_kv3:")
    A("s_and_b32 s42, s39, 15")
    A("s_cmp_eq_u32 s42, 6")
    A("s_cbranch_scc0 F_kv4")
    mark(A, L_S2, 29, 8, 41)
    A("F_kv4:")
    A("s_cmp_lg_u32 s35, 0")
    A("s_cbranch_scc1 F_kv1")
    A("s_cmp_lg_u32 s36, 0")
    A("s_cbranch_scc1 F_kv")
    mark(A, L_S3, 29, 8, 41)
    tick(A, "kv_issued")
    outproj(A)

def outproj(A):
    A("s_and_b32 s30, s15, 1")
    A("s_lshr_b32 s31, s15, 1")
    A("v_and_b32 v7, 31, v1")
    A("v_lshrrev_b32 v12, 5, v1")
    A("s_lshl_b32 s32, s12, 6")
    A("s_lshl_b32 s33, s30, 5")
    A("s_add_u32 s32, s32, s33")
    A("s_lshl_b32 s33, s13, 6")
    A("s_lshl_b32 s34, s31, 5")
    A("s_add_u32 s33, s33, s34")
    A("v_lshlrev_b32 v10, 15, v12")
    A("v_lshl_add_u32 v10, v7, 3, v10")
    A("s_lshl_b32 s34, s33, 12")
    A("s_lshr_b32 s35, s12, 2")
    A("s_lshl1_add_u32 s35, s35, s30")
    A("s_lshl_b32 s35, s35, 8")
    A("s_add_u32 s34, s34, s35")
    A("s_and_b32 s35, s12, 3")
    A("s_lshl1_add_u32 s34, s35, s34")
    A(f"s_add_u32 s34, s34, {hex(F_YA)}")
    srd(A, 16, 46, 512 * 512 * 2)
    srd(A, 20, 50, 2048 * 512 * 2)
    A("v_lshrrev_b32 v4, 3, v1")
    A("v_lshlrev_b32 v4, 10, v4")
    A("v_and_b32 v5, 7, v1")
    A("v_bfe_u32 v6, v1, 4, 1")
    A("v_lshlrev_b32 v6, 2, v6")
    A("v_xor_b32 v5, v5, v6")
    A("v_lshl_add_u32 v4, v5, 4, v4")
    A("s_lshl_b32 s36, s15, 17")
    A("s_lshl_b32 s37, s13, 7")
    A("s_add_u32 s36, s36, s37")
    A("s_lshl_b32 s37, s15, 14")
    A(f"s_add_u32 s37, s37, {L_WO}")
    lds_wait(A, 8, C_FREE, 4, 11, 38, 39, sleep=32)
    lds_wait(A, 8, C_YA, 2, 11, 38, 39, sleep=8)
    lds_wait(A, 8, C_YA2, 8, 11, 38, 39, sleep=8)
    A("s_mov_b32 s38, 16")
    A("F_wo:")
    A("s_mov_b32 m0, s37")
    A("s_add_u32 s37, s37, 1024")
    A("buffer_load_dwordx4 v4, s[16:19], s36 offen lds")
    A("s_add_u32 s36, s36, 8192")
    A("s_sub_u32 s38, s38, 1")
    A("s_cmp_lg_u32 s38, 0")
    A("s_cbranch_scc1 F_wo")
    A("s_lshl_b32 s36, s13, 11")
    A(f"s_add_u32 s36, s36, {hex(F_FL + 2*16384)}")
    flag_wait(A, 2, "s36", 11, 38, sleep=8)
    lds_add1(A, 8, 9, C_WO)
    GA = 32
    for r in range(GA, GA + 32): A(f"v_mov_b32 v{r}, 0")
    for c in range(2):
        for p in range(8):
            A(f"s_add_u32 s36, s34, {(16*c + p)*4096}")
            A(f"buffer_load_short_d16_hi v{GA+8*c+p}, v10, s[24:27], s36 offen sc1")
    A("s_and_b32 s36, s32, 255")
    A("s_cbranch_scc1 F_nc")
    A("s_lshr_b32 s36, s32, 4")
    A("s_cbranch_scc0 F_nc")
    A("s_lshl_b32 s37, s33, 7")
    A("s_add_u32 s36, s36, s37")
    A(f"s_add_u32 s36, s36, {hex(F_YC - 16)}")
    A("v_lshlrev_b32 v10, 10, v12")
    A("v_lshl_add_u32 v10, v7, 2, v10")
    A("s_mov_b32 exec_lo, 7")
    A("s_mov_b32 exec_hi, 7")
    for c in range(2):
        for p in range(8):
            A(f"buffer_load_dword v{GA+16+8*c+p}, v10, s[24:27], s36 offen offset:{(16*c + p)*128} sc1")
    A("s_mov_b64 exec, -1")
    A("F_nc:")
    A("s_lshl_b32 s36, s30, 7")
    A("v_lshl_add_u32 v11, v7, 2, s36")
    A(f"ds_read_b32 v11, v11 offset:{L_G}")
    A("v_bfe_u32 v13, v1, 2, 2")
    A("v_lshl_add_u32 v14, v12, 2, v13")
    A("v_lshlrev_b32 v14, 7, v14")
    A("v_lshrrev_b32 v13, 1, v13")
    A("v_xor_b32 v13, s31, v13")
    A("v_lshl_add_u32 v14, v13, 6, v14")
    A("v_and_b32 v13, 16, v1")
    A("v_lshl_add_u32 v14, v13, 1, v14")
    A("v_and_b32 v13, 1, v1")
    A("v_lshl_add_u32 v14, v13, 4, v14")
    A("v_and_b32 v13, 2, v1")
    A("v_lshl_add_u32 v14, v13, 2, v14")
    A("s_lshl_b32 s36, s31, 15")
    A(f"s_add_u32 s36, s36, {L_WO}")
    A("v_add_u32 v5, s36, v14")
    A("v_xor_b32 v4, 64, v5")
    A("v_lshlrev_b32 v6, 10, v7")
    A("v_lshl_add_u32 v6, v12, 4, v6")
    A("s_lshl_b32 s32, s32, 10")
    A("s_lshl_b32 s33, s33, 1")
    A("s_add_u32 s32, s32, s33")
    A("s_lshl_b32 s36, s15, 12")
    A(f"s_add_u32 s36, s36, {L_O}")
    A("v_add_u32 v7, s36, v3")
    A("v_xor_b32 v10, 0x2000, v7")
    A("v_and_b32 v2, 15, v1")
    A("v_lshlrev_b32 v2, 6, v2")
    A("s_waitcnt vmcnt(0) lgkmcnt(0)")
    for r in range(GA, GA + 16): A(f"v_add_f32 v{r}, v{r}, v{r+16}")
    for r in range(GA, GA + 16): A(f"v_mul_f32 v{r}, v11, v{r}")
    GP = 16
    for p in range(8): A(f"v_cvt_pk_bf16_f32 v{GP+p}, v{GA+2*p}, v{GA+2*p+1}")
    A("v_sub_f32 v11, 1.0, v11")
    A("v_cvt_pk_bf16_f32 v11, v11, v11")
    A("v_and_b32 v11, 0xffff0000, v11")
    A("s_lshl_b32 s34, s31, 20")
    A("s_lshl1_add_u32 s35, s12, s30")
    A("s_lshl_b32 s35, s35, 10")
    A("s_add_u32 s34, s34, s35")
    A(f"s_add_u32 s34, s34, {hex(F_Q)}")
    A("s_lshl1_add_u32 s36, s12, s31")
    A("s_lshl_b32 s36, s36, 10")
    A(f"s_add_u32 s36, s36, {hex(F_FL + 3*16384)}")
    lds_wait(A, 8, C_WO, 4, 13, 38, 39, sleep=8)
    A1 = 24; A0 = 40; OF = 80
    WB = lambda k: 56 + 8 * (k % 3)
    OB_ = lambda k: OF + 4 * (k % 12)
    def wrd(ks):
        for av, b in ((4, WB(ks)), (5, WB(ks) + 4)):
            A(f"ds_read_b64_tr_b16 {vr(b,2)}, v{av} offset:{ks*2048}")
            A(f"ds_read_b64_tr_b16 {vr(b+2,2)}, v{av} offset:{ks*2048+1024}")
    def old(ks):
        A(f"buffer_load_dwordx4 {vr(OB_(ks),4)}, v3, s[24:27], s34 offen sc1")
        if ks < 15: A("s_add_u32 s34, s34, 0x10000")
    for ks in range(3): wrd(ks)
    tick(A, "op_ready")
    A("s_barrier")
    flag_wait(A, 2, "s36", 13, 38)
    tick(A, "F3seen")
    for ks in range(12): old(ks)
    for ks in range(16):
        A(f"s_waitcnt vmcnt({min(11, 15-ks)}) lgkmcnt({4*min(2, 15-ks)})")
        A(mfma32(A1, WB(ks), OB_(ks), "0" if ks == 0 else None))
        A(mfma32(A0, WB(ks) + 4, OB_(ks), "0" if ks == 0 else None))
        if ks < 4: old(ks + 12)
        if ks + 3 < 16: wrd(ks + 3)
    GU = 96
    for q in range(8):
        A(f"v_lshlrev_b32 v{GU+2*q}, 16, v{GP+q}")
        if q < 3: A(f"v_and_b32 v{GU+2*q+1}, 0xffff0000, v{GP+q}")
    for q in range(4): A(f"ds_write_b128 v7, {vr(A1+4*q,4)} offset:{q*1024}")
    for q in range(3, 8): A(f"v_and_b32 v{GU+2*q+1}, 0xffff0000, v{GP+q}")
    for r in range(16): A(f"v_fma_f32 v{GU+r}, v{A0+r}, v11, v{GU+r}")
    A("s_waitcnt lgkmcnt(0)")
    A("s_barrier")
    for q in range(4): A(f"ds_read_b128 {vr(A0+4*q,4)}, v10 offset:{q*1024}")
    for hf in range(2):
        A(f"s_waitcnt lgkmcnt({2 - 2*hf})")
        for r in range(8*hf, 8*hf + 8): A(f"v_fma_f32 v{GU+r}, v{A0+r}, v11, v{GU+r}")
        for p in range(4*hf, 4*hf + 4): A(f"v_cvt_pk_bf16_f32 v{GP+p}, v{GU+2*p}, v{GU+2*p+1}")
        A(f"buffer_store_dwordx4 {vr(GP+4*hf,4)}, v6, s[20:23], s32 offen offset:{32*hf}")
    pad(A, "end")
    if PAD[0] == "endmin":
        A("v_mov_b32 v2, 0")
        A("global_load_dword v3, v2, s[52:53] offset:128 sc1")
        A("s_waitcnt vmcnt(0)")
        A("v_readfirstlane_b32 s56, v3")
        A("s_nop 3")
        A("s_not_b32 s56, s56")
        pad(A, "endmin")
    dump(A, 0, 6)
    A("s_endpgm")

def misc(A):
    A("v_mov_b32 v8, 0")
    A("v_mov_b32 v9, 1")
    A("s_setprio 3")
    A("s_cmp_eq_u32 s15, 12")
    A("s_cbranch_scc0 F_gate")
    srd(A, 36, 52, 256)
    A("v_and_b32 v5, 15, v1")
    A(f"v_min_u32 v2, {NCLR-1}, v1")
    A("v_lshlrev_b32 v2, 2, v2")
    A("v_bfe_u32 v4, v1, 3, 1")
    A("v_bfe_u32 v6, v1, 1, 1")
    A("v_lshl_or_b32 v4, v4, 1, v6")
    A("v_lshlrev_b32 v4, 4, v4")
    A("v_lshl_add_u32 v4, v5, 7, v4")
    A("v_bfe_u32 v6, v1, 4, 1")
    A("v_lshl_add_u32 v4, v6, 12, v4")
    A("v_lshrrev_b32 v6, 5, v1")
    A("v_lshl_add_u32 v4, v6, 3, v4")
    A(f"v_add_u32 v20, {L_RING}, v4")
    for k in range(1, 8): A(f"v_xor_b32 v{20+k}, {16*k}, v20")
    A("v_bfe_u32 v4, v1, 2, 3")
    A("v_lshlrev_b32 v4, 5, v4")
    A("v_lshl_add_u32 v7, v6, 14, v4")
    A("v_and_b32 v4, 1, v1")
    A("v_lshl_add_u32 v7, v4, 4, v7")
    A("v_bfe_u32 v4, v1, 1, 1")
    A("v_lshl_add_u32 v7, v4, 13, v7")
    A("s_lshl_b32 s31, s14, 18")
    A("s_lshl_b32 s32, s12, 8")
    A("s_add_u32 s31, s31, s32")
    A(f"s_add_u32 s31, s31, {hex(F_UT)}")
    A("s_lshl_b32 s33, s14, 5")
    A("s_add_u32 s33, s33, s12")
    A("s_lshl_b32 s33, s33, 6")
    A(f"s_add_u32 s33, s33, {hex(F_FL)}")
    UT = 32
    bar(A)
    for i in range(8):
        for eh in range(2):
            A(f"ds_read_b64_tr_b16 {vr(UT+4*i+2*eh,2)}, v{20 + (i ^ (4*eh))} offset:{eh*2048}")
    for i in range(8):
        if i % 2 == 0: A(f"s_waitcnt lgkmcnt({12 - 2*i})")
        A(f"buffer_store_dwordx4 {vr(UT+4*i,4)}, v7, s[24:27], s31 offen sc1")
        if i < 7: A("s_add_u32 s31, s31, 0x8000")
    bar(A)
    A("buffer_load_dword v10, v2, s[36:39], 0 offen sc1")
    bar(A); bar(A)
    A("s_waitcnt vmcnt(0)")
    A("v_cmp_eq_u32 vcc, 1, v10")
    A("s_nop 1")
    A("s_cmp_eq_u64 vcc, -1")
    A("s_cbranch_scc1 F_m2")
    flag_wait(A, 2, "0", 10, 34, srd_="s[36:39]", sleep=2)
    A("F_m2:")
    A("s_mov_b64 exec, 1")
    A("buffer_store_dword v9, v8, s[24:27], s33 offen sc1")
    A("s_mov_b64 exec, -1")
    if STAMPS[0]:
        for k in range(4): bar(A)
    dump(A)
    A("s_endpgm")

    A("F_gate:")
    GW = 64; X = [32, 48]; GA = 16; GM = 68
    for r in range(GA, GA + 8): A(f"v_mov_b32 v{r}, 0")
    for r in range(X[1], X[1] + 16): A(f"v_mov_b32 v{r}, 0")
    for r in range(GM, GM + 8): A(f"v_mov_b32 v{r}, 0")
    xaddr(A)
    A("s_sub_u32 s16, s15, 13")
    A("s_lshl_b32 s30, s16, 12")
    A("v_add_u32 v4, s30, v4")
    A("v_add_u32 v5, s30, v5")
    A("s_lshl_b32 s30, s16, 7")
    A("v_lshl_add_u32 v10, v9, 2, s30")
    A("v_mov_b32 v8, 0")
    A("v_mov_b32 v9, 1")
    A("s_lshl_b32 s30, s14, 1")
    A("s_mov_b32 s31, 4")
    A("s_waitcnt vmcnt(0)")
    def gmm(st):
        for ks in range(2):
            for mt in range(2):
                A(mfma16(GA + 4 * mt, GM + 4 * ks, X[st] + 8 * ks + 4 * mt))
    A("F_gt:")
    for par in range(2):
        bar(A)
        for ks in range(2):
            for mt in range(2):
                A(f"ds_read_b128 {vr(X[par]+8*ks+4*mt,4)}, v{4+ks} offset:{par*32768 + mt*512}")
        gmm(par ^ 1)
        for ks in range(2):
            A("v_cmp_eq_u32 vcc, s30, v2")
            A("s_add_u32 s30, s30, 1")
            A("s_and_b32 s30, s30, 15")
            for r in range(4): A(f"v_cndmask_b32 v{GM+4*ks+r}, 0, v{GW+r}, vcc")
        if par == 1:
            A("v_xor_b32 v4, 0x10000, v4")
            A("v_xor_b32 v5, 0x10000, v5")
            A("s_sub_u32 s31, s31, 1")
            A("s_cmp_lg_u32 s31, 0")
        A("s_waitcnt lgkmcnt(0)")
    A("s_cbranch_scc1 F_gt")
    gmm(1)
    lds_add1(A, 8, 9, C_FR)
    A("s_nop 4")
    R = [GA, GA + 4]
    for q in R: A(f"v_add_f32 v{q}, v{q}, v{q+1}")
    for q in R: A(f"v_add_f32 v{q+2}, v{q+2}, v{q+3}")
    for q in R: A(f"v_add_f32 v{q}, v{q}, v{q+2}")
    for sw in ("v_permlane16_swap_b32", "v_permlane32_swap_b32"):
        for q in R: A(f"v_mov_b32 v{q+1}, v{q}")
        A("s_nop 1")
        for q in R: A(f"{sw} v{q}, v{q+1}")
        A("s_nop 0")
        for q in R: A(f"v_add_f32 v{q}, v{q}, v{q+1}")
    for q in R: A(f"v_cvt_pk_bf16_f32 v{q}, v{q}, v{q}")
    for q in R: A(f"v_and_b32 v{q}, 0xffff0000, v{q}")
    for q in R: A(f"v_mul_f32 v{q}, {hex(LOG2E ^ 0x80000000)}, v{q}")
    for q in R: A(f"v_exp_f32 v{q}, v{q}")
    for q in R: A(f"v_add_f32 v{q}, 1.0, v{q}")
    for q in R: A(f"v_rcp_f32 v{q}, v{q}")
    for q in R: A(f"v_cvt_pk_bf16_f32 v{q}, v{q}, v{q}")
    for q in R: A(f"v_and_b32 v{q}, 0xffff0000, v{q}")
    for mt in range(2): A(f"ds_write_b32 v10, v{R[mt]} offset:{L_G + mt*16}")
    lds_add1(A, 8, 9, C_YA)
    A("s_waitcnt lgkmcnt(0)")
    dump(A)
    A("s_endpgm")

def xaddr(A, d=4, t=0):
    A(f"v_and_b32 v{t+2}, 15, v1")
    A(f"v_lshrrev_b32 v{t+3}, 4, v1")
    A(f"v_lshrrev_b32 v{t+7}, 2, v{t+2}")
    A(f"v_and_b32 v{t+8}, 3, v1")
    A(f"v_lshl_add_u32 v{t+9}, v{t+7}, 3, v{t+8}")
    A(f"v_lshrrev_b32 v{t+10}, 1, v{t+8}")
    A(f"v_lshl_or_b32 v{t+10}, v{t+7}, 1, v{t+10}")
    A(f"v_xor_b32 v{t+10}, v{t+10}, v{t+3}")
    A(f"v_lshlrev_b32 v{t+10}, 4, v{t+10}")
    A(f"v_lshl_add_u32 v{d}, v{t+9}, 7, v{t+10}")
    A(f"v_add_u32 v{d}, {L_RING}, v{d}")
    A(f"v_xor_b32 v{d+1}, 64, v{d}")

ROW2 = 528
TABC = 60 * ROW2

def cmul_pk(A, lst):
    for (R, X, E, T) in lst:
        A(f"v_pk_mul_f32 {vr(T,2)}, {vr(X,2)}, {vr(E,2)} op_sel:[0,0] op_sel_hi:[1,0]")
    for (R, X, E, T) in lst:
        A(f"v_pk_fma_f32 {vr(R,2)}, {vr(X,2)}, {vr(E,2)}, {vr(T,2)} op_sel:[1,1,0] op_sel_hi:[0,1,1] neg_lo:[1,0,0]")

def cmul_sc(A, lst):
    for (R, X, E, T) in lst:
        A(f"v_mul_f32 v{T}, v{X}, v{E+1}")
        A(f"v_mul_f32 v{R}, v{X}, v{E}")
    for (R, X, E, T) in lst:
        A(f"v_fma_f32 v{R}, -v{X+1}, v{E+1}, v{R}")
        A(f"v_fma_f32 v{R+1}, v{X+1}, v{E}, v{T}")

def kgen(A):
    P = 4
    A(f"s_lshl_b32 s19, s16, 15")
    A(f"s_add_u32 s19, s19, {L_RING}")
    A(f"s_add_u32 s20, s19, {32*ROW2}")
    A("s_bfe_u32 s22, s15, 0x10001")
    AR, AI, DT = 16, 18, 14
    def gens(lst):
        n = 0
        for (k1, k2), E in lst:
            for m in range(2):
                A(f"v_mul_f32 v{48+n}, {k1}, v{AR+m}")
                A(f"v_mul_f32 v{56+n}, {k2}, v{AI+m}")
                n += 1
        for i in range(n):
            A(f"v_exp_f32 v{48+i}, v{48+i}")
            A(f"v_fract_f32 v{56+i}, v{56+i}")
        n = 0
        for k, E in lst:
            for m in range(2):
                A(f"v_cos_f32 v{E+2*m}, v{56+n}")
                A(f"v_sin_f32 v{E+2*m+1}, v{56+n}")
                n += 1
        n = 0
        for k, E in lst:
            for m in range(2):
                A(f"v_mul_f32 v{E+2*m}, v{48+n}, v{E+2*m}")
                A(f"v_mul_f32 v{E+2*m+1}, v{48+n}, v{E+2*m+1}")
                n += 1
    K = lambda k: (f32hex(k * math.log2(math.e)), f32hex(k / (2 * math.pi)))
    cnt = [0]
    def put(X, off, neg):
        c = 44 + 2 * (cnt[0] & 1); cnt[0] += 1
        for m in range(2):
            A(f"v_cvt_pk_bf16_f32 v{c+m}, v{X+2*m}, {'-' if neg else ''}v{X+2*m+1}")
        if OPT.get("nowr") != "1": A(f"ds_write_b64 v13, {vr(c,2)} offset:{off}")
    def to2(lst, f=cmul_sc):
        f(A, [(R + 2 * m, X + 2 * m, E + 2 * m, 48 + 4 * i + 2 * m) for i, (R, X, E) in enumerate(lst) for m in range(2)])
    def ip2(lst, f=cmul_sc):
        to2([(X, X, E) for X, E in lst], f)
    A("v_and_b32 v16, 31, v1")
    A("v_lshrrev_b32 v17, 5, v1")
    A("v_lshlrev_b32 v17, 4, v17")
    A(f"v_mul_u32_u24 v2, {ROW2}, v16")
    A("v_add3_u32 v2, v2, v17, s19")
    A("v_bfe_u32 v18, v1, 2, 1")
    A("v_bfe_u32 v19, v1, 4, 1")
    A("v_lshl_add_u32 v18, v19, 1, v18")
    A("v_and_b32 v19, 3, v1")
    A("v_bfe_u32 v20, v1, 3, 1")
    A("v_lshl_add_u32 v19, v20, 2, v19")
    A("s_mov_b32 s35, 0x11100000")
    A("s_mov_b32 s36, 0x1a181614")
    A("s_cmp_eq_u32 s22, 0")
    A("s_cselect_b32 s32, 0x22111000, s35")
    A("s_cselect_b32 s33, 0xd7ccc6bb, s35")
    A("s_cselect_b32 s34, 0x54392108, s35")
    A("s_cselect_b32 s35, 0x110e0000, s36")
    A("v_mov_b32 v20, s32")
    A("v_mov_b32 v21, s33")
    A("v_mov_b32 v22, s34")
    A("v_cmp_eq_u32 vcc, 1, v18")
    A("v_lshlrev_b32 v23, 2, v19")
    A("v_lshlrev_b32 v24, 3, v18")
    A("v_cndmask_b32 v20, v20, v21, vcc")
    A("v_cmp_eq_u32 vcc, 0, v18")
    A("v_bfe_u32 v24, s35, v24, 8")
    A("s_lshl_b32 s31, s22, 23")
    A("v_cndmask_b32 v20, v20, v22, vcc")
    A("v_bfe_u32 v20, v20, v23, 4")
    A("v_add_u32 v20, v20, v24")
    A(f"v_mul_u32_u24 v12, {ROW2}, v20")
    A("v_add3_u32 v12, v12, v17, s20")
    A("s_mul_i32 s31, s31, 9")
    A(f"s_add_u32 s30, s31, {K(1)[0]}")
    A(f"s_add_u32 s31, s31, {K(1)[1]}")
    A(f"s_mul_i32 s29, s22, {6*ROW2}")
    A("s_add_u32 s29, s29, s20")
    A("v_lshl_add_u32 v13, v1, 3, s29")
    A(f"s_mul_i32 s32, s22, {K(128)[0]}")
    A(f"s_mul_i32 s33, s22, {K(128)[1]}")
    A(f"s_mul_i32 s29, s22, {16*ROW2}")
    A("s_add_u32 s29, s29, s19")
    A("v_lshl_add_u32 v3, v1, 3, s29")
    A(f"s_mul_i32 s21, s16, {TABW}")
    A(f"s_add_u32 s21, s21, {L_TAB}")
    A("v_lshrrev_b32 v16, 5, v1")
    A("v_and_b32 v16, s16, v16")
    A("v_lshlrev_b32 v16, 12, v16")
    A("v_lshlrev_b32 v17, 4, v1")
    A("v_add3_u32 v16, v16, v17, s21")
    for r in range(20, 24): A(f"v_mov_b32 v{r}, 0")
    A("ds_write_b128 v16, v[20:23]")
    A("s_lshl_b32 s21, s22, 6")
    A("v_cmp_eq_u32 vcc, s21, v1")
    A("s_waitcnt vmcnt(0) lgkmcnt(0)")
    A("v_lshlrev_b32 v11, 16, v11")
    A("v_cndmask_b32 v11, 0, v11, vcc")
    A(f"v_lshlrev_b32 v{DT}, 16, v10")
    A(f"v_mul_f32 v{DT}, {hex(LOG2E)}, v{DT}")
    A(f"v_exp_f32 v{DT}, v{DT}")
    A(f"v_lshlrev_b32 v{AR}, 16, v{P}")
    A(f"v_and_b32 v{AR+1}, 0xffff0000, v{P}")
    A(f"v_cvt_pk_bf16_f32 v{DT}, v{DT}, v{DT}")
    A(f"v_lshlrev_b32 v{AI}, 16, v{P+1}")
    A(f"v_and_b32 v{AI+1}, 0xffff0000, v{P+1}")
    A(f"v_and_b32 v{DT}, 0xffff0000, v{DT}")
    for r in range(AR, AR + 4): A(f"v_mul_f32 v{r}, v{DT}, v{r}")
    EV = 20; E4 = 24; E256 = 28; C0 = 32; C1 = 36; C2 = 40; B_ = 36; C_ = 40; X1 = 16; X2 = 4; E8 = 44; Y = 64; T1 = 60
    XR = 68
    YR = 96
    def keep(X, slot):
        for m in range(2): A(f"v_cvt_pk_bf16_f32 v{XR+2*slot+m}, v{X+2*m}, -v{X+2*m+1}")
    ny = [0]
    def ystep(n):
        for _ in range(n):
            for m in range(2): A(f"v_cvt_pk_bf16_f32 v{YR+2*ny[0]+m}, v{Y+2*m}, v{Y+2*m+1}")
            if ny[0] < 15: ip2([(Y, E8)])
            ny[0] += 1
    for k, dst in ((2, B_), (3, B_ + 1), (4, C_), (5, C_ + 1)):
        A(f"v_lshlrev_b32 v{dst}, 16, v{P+k}")
        A(f"v_and_b32 v{dst+2}, 0xffff0000, v{P+k}")
    for r in range(B_, B_ + 4): A(f"v_mul_f32 v{r}, v{DT}, v{r}")
    to2([(C0, C_, B_)])
    A(f"s_mul_i32 s29, s22, {20*ROW2}")
    A("s_add_u32 s29, s29, s20")
    A("v_lshl_add_u32 v9, v1, 3, s29")
    A("s_mul_i32 s23, s16, 4608")
    A("s_lshl_b32 s29, s22, 11")
    A("s_add_u32 s23, s23, s29")
    A(f"s_add_u32 s23, s23, {L_KXA}")
    gens([(("s30", "s31"), EV), (K(4), E4), (K(256), E256), (("s32", "s33"), Y)])
    to2([(E8, E4, E4)])
    bar(A)
    ystep(4)
    bar(A)
    ystep(5)
    bar(A)
    ystep(5)
    bar(A)
    ystep(2)
    A("s_cmp_eq_u32 s22, 0")
    A("s_cbranch_scc1 F_kx0")
    ip2([(C0, EV)])
    A("F_kx0:")
    to2([(C1, C0, E4), (C2, C0, E8)])
    keep(C0, 0); keep(C1, 1); keep(C2, 2)
    bar(A)
    A("s_cbranch_scc0 F_kx3")
    to2([(X1, C0, EV), (X2, C1, EV)])
    keep(X1, 6); keep(X2, 9)
    ip2([(X1, EV), (X2, EV)])
    keep(X1, 7); keep(X2, 10)
    bar(A)
    to2([(Y, X1, E256), (T1, X2, E256)])
    keep(Y, 12); keep(T1, 13)
    ip2([(X1, EV), (X2, EV)])
    keep(X1, 8); keep(X2, 11)
    bar(A)
    A("F_kx3:")
    ip2([(C0, E256), (C1, E256), (C2, E256)])
    keep(C0, 3); keep(C1, 4); keep(C2, 5)
    A("s_cbranch_scc1 F_kt")
    for q in range(4):
        if q in (0, 2): bar(A)
        ip2([(C0, E256), (C2, E256)])
        keep(C0, 6 + 2 * q); keep(C2, 7 + 2 * q)
    A("F_kt:")
    bar(A)
    if OPT.get("dumpdelay"): A(f"s_sleep {OPT['dumpdelay']}")
    for e in range(6): A(f"ds_write_b64 v13, {vr(XR+2*e,2)} offset:{(8+e)*ROW2}")
    for e in range(6, 14): A(f"ds_write_b64 v9, {vr(XR+2*e,2)} offset:{(e-6)*ROW2}")
    for e in range(16): A(f"ds_write_b64 v3, {vr(YR+2*e,2)} offset:{e*ROW2}")
    A("v_mov_b32 v8, 0")
    A("v_mov_b32 v9, 1")
    A("s_lshl_b32 s20, s16, 2")
    A("v_mov_b32 v13, s20")
    lds_add1(A, 13, 9, C_TAB)
    tick(A, "tables")
    lds_wait(A, 13, C_TAB, 2, 10, 33, 34, sleep=0)
    AC = 112
    F = 16
    NS = 6
    def rd(ks):
        b = F + 8 * (ks % NS)
        A(f"ds_read_b128 {vr(b,4)}, v12 offset:{ks*32}")
        A(f"ds_read_b128 {vr(b+4,4)}, v2 offset:{ks*32}")
    side_ops = conv_setup(A)
    for ks in range(5): rd(ks)
    for ks in range(16):
        if ks < 11: rd(ks + 5)
        A(f"s_waitcnt lgkmcnt({2*min(5, 15-ks)})")
        A(mfma32(AC, F + 8 * (ks % NS), F + 8 * (ks % NS) + 4, "0" if ks == 0 else None))
        lo, hi = (3 * ks, 3 * ks + 3) if ks < 11 else (33 + 6 * (ks - 11), 39 + 6 * (ks - 11))
        for t in side_ops[lo:hi]: A(t)
    lds_add1(A, 8, 9, C_KX)
    A("s_mul_i32 s30, s22, 0xaaaaaaaa")
    A("s_mov_b32 s31, s30")
    A("v_lshl_add_u32 v12, v1, 4, s23")
    A("s_nop 4")
    A(f"v_add_f32 v{AC}, v{AC}, v11")
    A(f"v_cndmask_b32 v{AC+4}, v{AC+4}, v{AC+5}, s[30:31]")
    A(f"v_cndmask_b32 v{AC+12}, v{AC+12}, v{AC+13}, s[30:31]")
    for p in range(8): A(f"v_cvt_pk_bf16_f32 v{96+p}, v{AC+2*p}, v{AC+2*p+1}")
    A("ds_write_b128 v12, v[96:99]")
    A("ds_write_b128 v12, v[100:103] offset:1024")
    lds_add1(A, 8, 9, C_CIN)
    tick(A, "kg_end")

CAC = 64
def conv_setup(A):
    return [
        "s_and_b32 s16, s15, 3",
        "s_lshr_b32 s17, s15, 2",
        "v_bfe_u32 v7, v1, 2, 3",
        "v_lshrrev_b32 v10, 5, v1",
        "v_add_u32 v7, v7, v10",
        "v_add_u32 v4, 3, v7",
        "v_bfe_u32 v4, v4, 1, 1",
        "v_xor_b32 v4, s17, v4",
        "v_lshlrev_b32 v4, 6, v4",
        "v_lshl_add_u32 v4, v7, 7, v4",
        "v_and_b32 v7, 3, v1",
        "v_lshl_add_u32 v4, v7, 4, v4",
        "s_lshl_b32 s35, s16, 10",
        f"s_add_u32 s36, s35, {L_U - 128 - 1280}",
        "v_add_u32 v5, s36, v4",
        f"s_sub_u32 s36, {L_U - 128 - 1280 + 7*1024}, s35",
        "v_add_u32 v4, s36, v4",
        "v_xor_b32 v13, 64, v4",
        "v_xor_b32 v14, 64, v5",
        "v_and_b32 v6, 16, v1",
        "v_lshlrev_b32 v6, 1, v6",
        "v_lshl_add_u32 v6, v7, 3, v6",
        "v_bfe_u32 v7, v1, 2, 2",
        "v_lshl_add_u32 v7, v10, 3, v7",
        "v_lshlrev_b32 v7, 3, v7",
        "v_sub_u32 v6, v6, v7",
        "s_mul_i32 s36, s17, 4608",
        f"s_add_u32 s36, s36, {L_KXA + 32}",
        "v_add_u32 v6, s36, v6",
    ] + [f"v_mov_b32 v{r}, 0" for r in range(CAC, CAC + 32)]

def conv(A):
    AC = CAC
    A("s_add_u32 s30, s16, 1")
    mark_wait(A, 8, L_SU, 16, 33, 34, sleep=1)
    lds_wait(A, 8, C_CIN, 4, 10, 33, 34, sleep=1)
    A("s_setprio 2")
    tick(A, "conv_go")
    SB_ = lambda k: 16 + 12 * (k & 3)
    def rd(nn, both):
        b = SB_(nn)
        A(f"ds_read_b64_tr_b16 {vr(b,2)}, v6 offset:{nn*128 + 32}")
        A(f"ds_read_b64_tr_b16 {vr(b+2,2)}, v6 offset:{nn*128}")
        A(f"ds_read_b128 {vr(b+4,4)}, v{13 if nn & 1 else 4} offset:{(5-nn)*256}")
        if both: A(f"ds_read_b128 {vr(b+8,4)}, v{14 if nn & 1 else 5} offset:{(5-nn)*256}")
    def mm(nn, both):
        b = SB_(nn)
        A(mfma32(AC, b + 4, b))
        if both: A(mfma32(AC + 16, b + 8, b))
    rd(0, True); rd(1, True)
    A("F_c1:")
    A("s_sub_u32 s30, s30, 1")
    A("s_cmp_lg_u32 s30, 0")
    for nn in range(4):
        rd(nn + 2, True)
        A("s_waitcnt lgkmcnt(8)")
        mm(nn, True)
    A("v_add_u32 v6, 512, v6")
    for r in (4, 5, 13, 14): A(f"v_subrev_u32 v{r}, 1024, v{r}")
    A("s_cbranch_scc1 F_c1")
    A("s_lshl_b32 s30, s16, 1")
    A("s_sub_u32 s30, 7, s30")
    A("F_c2:")
    A("s_sub_u32 s30, s30, 1")
    A("s_cmp_lg_u32 s30, 0")
    for nn in range(4):
        rd(nn + 2, False)
        A("s_waitcnt lgkmcnt(6)")
        mm(nn, False)
    A("v_add_u32 v6, 512, v6")
    for r in (4, 13): A(f"v_subrev_u32 v{r}, 1024, v{r}")
    A("s_cbranch_scc1 F_c2")
    A("s_nop 6")
    A("s_waitcnt lgkmcnt(0)")
    tick(A, "conv_mm_end")
    T = 16
    def lvl(dst, src, add):
        for g in range(1, 4):
            for k in (1, 0):
                A(f"v_add_f32_dpp v{dst(k,g)}, v{src(k,g-1)}, v{add(k,g)} wave_ror:1 row_mask:0x1 bank_mask:0x1")
        for k in (1, 0):
            A(f"v_add_f32_dpp v{dst(k,0)}, v{src(k,0)}, v{add(k,0)} wave_shr:1 row_mask:0xf bank_mask:0xf bound_ctrl:0")
        for g in range(1, 4):
            for k in (1, 0):
                A(f"v_add_f32_dpp v{dst(k,g)}, v{src(k,g)}, v{add(k,g)} wave_shr:1 row_mask:0xf bank_mask:0xf")
    Z = lambda rho: (lambda k, g: AC + 16 * k + 4 * g + rho)
    TT = lambda k, g: T + 4 * k + g
    lvl(TT, Z(3), Z(2))
    lvl(Z(2), TT, Z(1))
    lvl(Z(1), Z(2), Z(0))
    for k in range(2):
        A(f"v_mov_b32 v{116+4*k}, v{Z(2)(k,3)}")
        A(f"v_mov_b32 v{117+4*k}, v{TT(k,3)}")
        A(f"v_mov_b32 v{118+4*k}, v{Z(3)(k,3)}")
    for k in range(2):
        A(f"v_cvt_pk_bf16_f32 v{112+2*k}, v{Z(1)(k,0)}, v{Z(1)(k,1)}")
        A(f"v_cvt_pk_bf16_f32 v{113+2*k}, v{Z(1)(k,2)}, v{Z(1)(k,3)}")
    tick(A, "conv_st")

ACC = 80
SET = [16, 44]
GX, GWA, GST = 72, 74, 75
def gemm_setup(A):
    t = 16
    xaddr(A, GX, t)
    A(f"v_lshl_add_u32 v{t+10}, v{t+3}, 3, v{t+7}")
    A(f"v_lshlrev_b32 v{t+10}, 7, v{t+10}")
    A(f"v_lshrrev_b32 v{t+11}, 1, v{t+7}")
    A(f"v_and_b32 v{t+12}, 1, v{t+3}")
    A(f"v_lshl_or_b32 v{t+11}, v{t+12}, 1, v{t+11}")
    A(f"v_xor_b32 v{t+11}, s15, v{t+11}")
    A(f"v_lshl_add_u32 v{t+10}, v{t+11}, 5, v{t+10}")
    A(f"v_lshl_add_u32 v{t+10}, v{t+8}, 3, v{t+10}")
    A(f"v_add_u32 v{GWA}, {L_RING + 8192}, v{t+10}")
    A(f"v_lshl_add_u32 v{t+9}, v{t+12}, 2, v{t+9}")
    A(f"v_and_b32 v{t+10}, 32, v1")
    A(f"v_add_lshl_u32 v{GST}, v{t+9}, v{t+10}, 4")
    for r in range(ACC, ACC + 48): A(f"v_mov_b32 v{r}, 0")
    A("s_lshl2_add_u32 s33, s13, s15")
    A("s_lshl_b32 s33, s33, 16")
    A("s_lshl_b32 s32, s12, 11")
    A("s_add_u32 s33, s33, s32")
    A("s_lshl_b32 s32, s33, 1")
    A(f"s_add_u32 s33, s33, {hex(F_Q)}")
    A(f"s_add_u32 s32, s32, {hex(F_KV)}")
    A(f"s_mov_b32 s38, {hex(QSCALE)}")
    A(f"s_mov_b32 s39, {hex(QSCALE)}")
    A("s_lshl_b32 s40, s13, 5")
    A("s_add_u32 s40, s40, s12")
    A("s_lshl_b32 s40, s40, 6")
    A(f"s_add_u32 s40, s40, {hex(F_FL + 16384)}")
    A("s_mov_b32 s36, 4")

def gemm(A):
    gemm_setup(A)
    A("s_setprio 2")
    A("v_lshlrev_b32 v3, 4, v1")
    A("v_mov_b32 v8, 0")
    A("v_mov_b32 v9, 1")
    MORD = (1, 2, 0)
    def step(ks, st, par, mm=True):
        b = SET[st]; c = SET[st ^ 1]; o = par * 32768
        rds = []
        for mat in MORD:
            for e in range(2):
                rds.append(f"ds_read_b64_tr_b16 {vr(b+16+4*mat+2*e,2)}, v{GWA} offset:{o + mat*8192 + ks*4096 + e*512}")
        for mt in range(4):
            rds.append(f"ds_read_b128 {vr(b+4*mt,4)}, v{GX+ks} offset:{o + (mt&1)*512 + (mt>>1)*4096}")
        n = 0
        for mat in MORD:
            for mt in range(4):
                d = ACC + 16 * mat + 4 * mt
                x = c + 4 * mt; w = c + 16 + 4 * mat
                if n < len(rds): A(rds[n])
                n += 1
                if mm: A(mfma16(d, x, w) if mat == 2 else mfma16(d, w, x))
    bar(A)
    step(0, 0, 0, mm=False)
    A("s_branch F_gl1")
    A(".p2align 3")
    A("F_gl:")
    for par in range(2):
        A("s_waitcnt lgkmcnt(0)")
        bar(A)
        step(0, 0, par)
        if par == 0: A("F_gl1:")
        A("s_waitcnt lgkmcnt(0)")
        A("s_sub_u32 s36, s36, 1" if par == 0 else "s_cmp_lg_u32 s36, 0")
        step(1, 1, par)
    for r in (GX, GX + 1, GWA): A(f"v_xor_b32 v{r}, 0x10000, v{r}")
    A("s_cbranch_scc1 F_gl")
    A("s_waitcnt lgkmcnt(0)")
    c = SET[1]
    for mat in MORD:
        for mt in range(4):
            d = ACC + 16 * mat + 4 * mt
            x = c + 4 * mt; w = c + 16 + 4 * mat
            A(mfma16(d, x, w) if mat == 2 else mfma16(d, w, x))
    lds_add1(A, 8, 9, C_FR)
    tick(A, "g_mm_end")
    pad(A, "gemmend")
    PK = 16
    def pack(mat, dst):
        for mt in range(4):
            d = ACC + 16 * mat + 4 * mt
            A(f"v_cvt_pk_bf16_f32 v{dst+2*mt}, v{d}, v{d+1}")
            A(f"v_cvt_pk_bf16_f32 v{dst+2*mt+1}, v{d+2}, v{d+3}")
    def swaps(dst):
        for gp in range(2):
            A(f"v_permlane16_swap_b32 v{dst+4*gp}, v{dst+4*gp+2}")
            A(f"v_permlane16_swap_b32 v{dst+4*gp+1}, v{dst+4*gp+3}")
    pack(1, PK)
    pack(2, PK + 8)
    swaps(PK)
    for gp in range(2):
        A(f"buffer_store_dwordx4 {vr(PK+8+4*gp,4)}, v3, s[24:27], s32 offen offset:{gp*2048+1024} sc1")
        A(f"buffer_store_dwordx4 {vr(PK+4*gp,4)}, v{GST}, s[24:27], s32 offen offset:{gp*2048} sc1")
    for r in range(ACC, ACC + 16, 2):
        A(f"v_pk_mul_f32 {vr(r,2)}, {vr(r,2)}, s[38:39]")
    pack(0, PK + 16)
    A("s_nop 0")
    swaps(PK + 16)
    for gp in range(2):
        A(f"buffer_store_dwordx4 {vr(PK+16+4*gp,4)}, v{GST}, s[24:27], s33 offen offset:{gp*1024} sc1")
    tick(A, "g_st")
    for t in conv_setup(A): A(t)
    A("s_waitcnt vmcnt(0)")
    signal_last(A, 8, 9, 10, 36, C_QKV, 4, 40)
    tick(A, "signaled")

SA, SB, OA, OB, QA, QB = 16, 32, 48, 64, 80, 84
FS = [88, 100]
VIDX, VK, VV0, VV1 = 2, 4, 5, 6
def pv(O, V, S):
    return f"v_smfmac_f32_32x32x32_bf16 {vr(O,16)}, {vr(V,4)}, {vr(S,8)}, v{VIDX}"

def attention(A):
    A("v_lshlrev_b32 v3, 4, v1")
    A("s_and_b32 s30, s11, 3")
    A("s_lshl2_add_u32 s30, s10, s30")
    A("s_lshr_b32 s31, s11, 2")
    A("s_and_b32 s32, s15, 3")
    A("s_lshr_b32 s33, s15, 2")
    A("s_lshl2_add_u32 s34, s31, s32")
    A("s_lshl_b32 s34, s34, 11")
    A("s_lshl_b32 s35, s30, 16")
    A("s_add_u32 s34, s34, s35")
    A(f"s_add_u32 s34, s34, {hex(F_Q)}")
    A(f"s_mul_i32 s35, s33, {32*KVS}")
    A(f"s_add_u32 s35, s35, {L_KV}")
    A("v_and_b32 v7, 31, v1")
    A("v_lshrrev_b32 v11, 5, v1")
    A(f"v_add_u32 v{VK}, s35, v3")
    A("v_lshlrev_b32 v11, 8, v11")
    A("v_lshl_add_u32 v11, v7, 4, v11")
    A("v_add_u32 v11, 1024, v11")
    A("v_and_b32 v12, 27, v7")
    A("v_cmp_eq_u32 vcc, 16, v12")
    A("v_mov_b32 v12, 2064")
    A("v_mov_b32 v13, 2048")
    A("v_cndmask_b32 v12, v12, v13, vcc")
    A("v_cmp_gt_u32 vcc, 16, v7")
    A("v_add_u32 v13, 512, v11")
    A(f"v_mov_b32 v{VIDX}, 0xdddddddd")
    A(f"v_cndmask_b32 v{VV0}, v12, v11, vcc")
    A(f"v_cndmask_b32 v{VV1}, v12, v13, vcc")
    A(f"v_add_u32 v{VV0}, s35, v{VV0}")
    A(f"v_add_u32 v{VV1}, s35, v{VV1}")
    for r in range(SB + 8, SB + 48): A(f"v_mov_b32 v{r}, 0")
    for r in range(FS[1] + 8, FS[1] + 12): A(f"v_mov_b32 v{r}, 0")
    A("s_lshl_b32 s36, s32, 11")
    A("v_add_u32 v10, s36, v3")
    A("s_setprio 1")
    mark_wait(A, 8, L_S1, 124, 36, 37)
    A(f"ds_read_b128 {vr(QA,4)}, v10 offset:{L_Q}")
    A(f"ds_read_b128 {vr(QB,4)}, v10 offset:{L_Q + 1024}")
    A(f"ds_read_b128 {vr(FS[0],4)}, v{VK}")
    A(f"ds_read_b128 {vr(FS[0]+4,4)}, v{VV0}")
    A("s_mov_b32 s36, 1")
    A("s_mov_b32 s37, 0")
    A("s_waitcnt lgkmcnt(0)")
    tick(A, "attn_go")
    pad(A, "attn")
    A(mfma32(SA, FS[0], QA, "0"))
    A("s_nop 7")
    A("s_nop 1")
    def E(S, a, b):
        for i in range(a, b): A(f"v_exp_f32 v{S+i}, v{S+i}")
    A(".p2align 3")
    A("F_al:")
    A("s_sub_u32 s36, s36, 1")
    A("s_cmp_lg_u32 s36, 0")
    U = 4
    for t in range(U):
        cur, oth = FS[t & 1], FS[(t & 1) ^ 1]
        E(SA, 0, 2)
        A(pv(OB, oth + 8, SB + 8))
        A(f"ds_read_b128 {vr(cur+8,4)}, v{VV1} offset:{t*KVS}")
        A(f"ds_read_b128 {vr(oth,4)}, v{VK} offset:{(t+1)*KVS}")
        E(SA, 2, 6)
        A(mfma32(SB, cur, QB, "0"))
        A(f"ds_read_b128 {vr(oth+4,4)}, v{VV0} offset:{(t+1)*KVS}")
        if t == U - 1:
            for r in (VK, VV0, VV1): A(f"v_add_u32 v{r}, {U*KVS}, v{r}")
        E(SA, 6, 12)
        A(pv(OA, cur + 4, SA))
        E(SA, 12, 16)
        A("s_waitcnt lgkmcnt(0)")
        E(SB, 0, 1)
        A(pv(OA, cur + 8, SA + 8))
        E(SB, 1, 5)
        A(mfma32(SA, oth, QA, "0"))
        E(SB, 5, 11)
        A(pv(OB, cur + 4, SB))
        A(f"v_exp_f32_e64 v{SB+11}, v{SB+11}")
        E(SB, 12, 16)
    A("s_cbranch_scc1 F_al")
    A("s_add_u32 s37, s37, 1")
    A("s_cmp_eq_u32 s37, 1")
    A("s_cbranch_scc0 F_ev2")
    tick(A, "it1")
    mark_wait(A, 8, L_S2, 124, 38, 39, sleep=1)
    A("s_mov_b32 s36, 1")
    A("v_lshlrev_b32 v7, 3, v1")
    A("s_lshl1_add_u32 s20, s2, s17")
    A("s_lshl_b32 s18, s20, 12")
    A(f"s_add_u32 s18, s18, {hex(F_YA)}")
    A("s_lshl_b32 s22, s16, 9")
    A("s_add_u32 s19, s18, s22")
    A("s_add_u32 s18, s18, 3584")
    A("s_sub_u32 s18, s18, s22")
    A("s_lshl_b32 s20, s20, 7")
    A(f"s_add_u32 s20, s20, {hex(F_YC)}")
    A("s_lshl_b32 s22, s16, 4")
    A("s_add_u32 s21, s20, s22")
    A("s_add_u32 s20, s20, 112")
    A("s_sub_u32 s20, s20, s22")
    A("s_lshl_b32 s40, s2, 6")
    A(f"s_add_u32 s40, s40, {hex(F_FL + 2*16384)}")
    for k in range(2):
        A(f"buffer_store_dwordx2 {vr(112+2*k,2)}, v7, s[24:27], s{18+k} offen sc1")
    A("s_mov_b32 exec_lo, 0")
    A("s_mov_b32 exec_hi, 0x80000000")
    for k in range(2):
        A(f"buffer_store_dwordx4 {vr(116+4*k,4)}, v8, s[24:27], s{20+k} offen sc1")
    A("s_mov_b64 exec, -1")
    A("s_branch F_al")
    A("F_ev2:")
    A("s_cmp_eq_u32 s37, 2")
    A("s_cbranch_scc0 F_ev2b")
    A("s_waitcnt vmcnt(0)")
    signal_last(A, 8, 9, 12, 38, C_YA2, 8, 40)
    A("s_mov_b32 s36, 3")
    A("s_branch F_al")
    A("F_ev2b:")
    A("s_cmp_eq_u32 s37, 3")
    A("s_cbranch_scc0 F_ev3")
    mark_wait(A, 8, L_S3, 124, 38, 39, sleep=1)
    A("s_lshl_b32 s38, s32, 12")
    A(f"s_add_u32 s38, s38, {L_XCH}")
    A("v_add_u32 v10, s38, v3")
    A("s_lshl_b32 s38, s32, 9")
    A(f"s_add_u32 s38, s38, {L_LX}")
    A("v_lshl_add_u32 v11, v1, 2, s38")
    A("s_lshl_b32 s38, s32, 2")
    A("v_mov_b32 v13, s38")
    A("s_mov_b32 s36, 2")
    A("s_lshl2_add_u32 s40, s31, s32")
    A("s_lshl_b32 s40, s40, 5")
    A("s_add_u32 s40, s40, s30")
    A("s_lshl_b32 s40, s40, 6")
    A(f"s_add_u32 s40, s40, {hex(F_FL + 3*16384)}")
    A("s_mov_b32 s42, 0x17800000")
    A("s_mov_b32 s43, 0x50000000")
    A("s_branch F_al")
    A("F_ev3:")
    A("s_cmp_eq_u32 s37, 4")
    A("s_cbranch_scc0 F_aend")
    tick(A, "it7")
    A("s_setprio 0")
    A("s_mov_b32 s36, 1")
    A("s_cmp_eq_u32 s33, 0")
    A("s_cbranch_scc0 F_al")
    lds_add1(A, 8, 9, C_FREE)
    A("s_branch F_al")
    A("F_aend:")
    tick(A, "it8")
    A(pv(OB, FS[1] + 8, SB + 8))
    A("s_cmp_eq_u32 s33, 0")
    A("s_cbranch_scc0 F_x1")
    lds_wait(A, 8, C_FREE, 4, 12, 38, 39)
    A(f"ds_write_b128 v10, {vr(OA,4)}")
    A(f"ds_write_b128 v10, {vr(OA+4,4)} offset:1024")
    A("s_nop 1")
    A(f"ds_write_b128 v10, {vr(OB,4)} offset:2048")
    A(f"ds_write_b128 v10, {vr(OB+4,4)} offset:3072")
    A(f"ds_write2st64_b32 v11, v{OA+8}, v{OB+8} offset0:0 offset1:1")
    lds_add1(A, 13, 9, C_PAIR)
    A("s_waitcnt lgkmcnt(0)")
    dump(A)
    A("s_endpgm")
    A("F_x1:")
    lds_wait(A, 13, C_PAIR, 1, 12, 38, 39, sleep=0)
    A(f"ds_read2st64_b32 {vr(FS[0],2)}, v11 offset0:0 offset1:1")
    for q in range(4): A(f"ds_read_b128 {vr(SA+4*q,4)}, v10 offset:{q*1024}")
    A("s_waitcnt lgkmcnt(4)")
    A(f"v_add_f32 v{OA+8}, v{OA+8}, v{FS[0]}")
    A(f"v_add_f32 v{OB+8}, v{OB+8}, v{FS[0]+1}")
    A(f"v_rcp_f32 v12, v{OA+8}")
    A(f"v_rcp_f32 v14, v{OB+8}")
    A("s_waitcnt lgkmcnt(2)")
    for r in range(8): A(f"v_add_f32 v{OA+r}, v{OA+r}, v{SA+r}")
    A("s_waitcnt lgkmcnt(0)")
    for r in range(8): A(f"v_add_f32 v{OB+r}, v{OB+r}, v{SA+8+r}")
    for r in range(8): A(f"v_mul_f32 v{OA+r}, v{OA+r}, v12")
    for r in range(8): A(f"v_mul_f32 v{OB+r}, v{OB+r}, v14")
    for p in range(4): A(f"v_cvt_pk_bf16_f32 v{SB+p}, v{OA+2*p}, v{OA+2*p+1}")
    for p in range(4): A(f"v_cvt_pk_bf16_f32 v{SB+4+p}, v{OB+2*p}, v{OB+2*p+1}")
    A(f"buffer_store_dwordx4 {vr(SB,4)}, v3, s[24:27], s34 offen sc1")
    A(f"buffer_store_dwordx4 {vr(SB+4,4)}, v3, s[24:27], s34 offen offset:1024 sc1")
    tick(A, "o_st")
    for r in range(8):
        A(f"v_fma_f32 v{OA+8}, v{OA+r}, 0, v{OA+8}")
        A(f"v_fma_f32 v{OB+8}, v{OB+r}, 0, v{OB+8}")
    A(f"v_subrev_u32 v7, s42, v{OA+8}")
    A(f"v_subrev_u32 v12, s42, v{OB+8}")
    A("v_max_u32 v7, v7, v12")
    A("v_cmp_gt_u32 vcc, s43, v7")
    A("s_nop 0")
    A("s_cmp_eq_u64 vcc, -1")
    A("s_cbranch_scc0 F_slow")
    A("F_pub:")
    pad(A, "ostore")
    A("s_mov_b64 exec, 1")
    A("s_waitcnt vmcnt(0)")
    A("buffer_store_dword v9, v8, s[24:27], s40 offen sc1")
    A("s_mov_b64 exec, -1")
    dump(A)
    A("s_endpgm")
    A("F_slow:")
    A("s_mov_b32 s37, 2")
    A("F_slow0:")
    A("s_lshl_b32 s35, s30, 17")
    A(f"s_add_u32 s35, s35, {hex(F_KV)}")
    A("v_mov_b32 v12, 0xff800000")
    A("s_mov_b32 s36, s35")
    A("s_mov_b32 s41, 64")
    A("F_slow1:")
    A(f"buffer_load_dwordx4 {vr(FS[0],4)}, v3, s[24:27], s36 offen sc1")
    A("s_add_u32 s36, s36, 2048")
    A("s_waitcnt vmcnt(0)")
    A(mfma32(SA, FS[0], QA, "0"))
    A("s_nop 7")
    A("s_nop 3")
    for r in range(0, 16, 2): A(f"v_max3_f32 v12, v12, v{SA+r}, v{SA+r+1}")
    A("s_sub_u32 s41, s41, 1")
    A("s_cmp_lg_u32 s41, 0")
    A("s_cbranch_scc1 F_slow1")
    A("v_mov_b32 v13, v12")
    A("s_nop 1")
    A("v_permlane32_swap_b32 v12, v13")
    A("s_nop 1")
    A("v_max_f32 v14, v12, v13")
    for r in range(16): A(f"v_mov_b32 v{OA+r}, 0")
    for r in range(4, 12): A(f"v_mov_b32 v{FS[0]+r}, 0x3f803f80")
    A("v_and_b32 v10, 15, v1")
    A("v_lshrrev_b32 v11, 5, v1")
    A("v_lshlrev_b32 v11, 8, v11")
    A("v_lshl_add_u32 v10, v10, 4, v11")
    A("s_mov_b32 s41, 64")
    A("F_slow2:")
    A(f"buffer_load_dwordx4 {vr(FS[0],4)}, v3, s[24:27], s35 offen sc1")
    A("s_mov_b32 exec_lo, 0xffff")
    A("s_mov_b32 exec_hi, 0xffff")
    A(f"buffer_load_dwordx4 {vr(FS[0]+4,4)}, v10, s[24:27], s35 offen offset:1024 sc1")
    A(f"buffer_load_dwordx4 {vr(FS[0]+8,4)}, v10, s[24:27], s35 offen offset:1536 sc1")
    A("s_mov_b64 exec, -1")
    A("s_add_u32 s35, s35, 2048")
    A("s_waitcnt vmcnt(0)")
    A(mfma32(SA, FS[0], QA, "0"))
    A("s_nop 7")
    A("s_nop 3")
    for r in range(16): A(f"v_sub_f32 v{SA+r}, v{SA+r}, v14")
    for r in range(16): A(f"v_exp_f32 v{SA+r}, v{SA+r}")
    A("s_nop 1")
    A(pv(OA, FS[0] + 4, SA))
    A(pv(OA, FS[0] + 8, SA + 8))
    A("s_sub_u32 s41, s41, 1")
    A("s_cmp_lg_u32 s41, 0")
    A("s_nop 7")
    A("s_nop 3")
    A("s_cbranch_scc1 F_slow2")
    A(f"v_rcp_f32 v12, v{OA+8}")
    for r in range(4): A(f"v_mov_b32 v{QA+r}, v{QB+r}")
    for r in range(8): A(f"v_mul_f32 v{OA+r}, v{OA+r}, v12")
    for p in range(4): A(f"v_cvt_pk_bf16_f32 v{SB+p}, v{OA+2*p}, v{OA+2*p+1}")
    A(f"buffer_store_dwordx4 {vr(SB,4)}, v3, s[24:27], s34 offen sc1")
    A("s_add_u32 s34, s34, 1024")
    A("s_sub_u32 s37, s37, 1")
    A("s_cmp_lg_u32 s37, 0")
    A("s_cbranch_scc1 F_slow0")
    A("s_branch F_pub")
```

```python
import sys
sys.path.insert(0, "gen")
import common
from common import *
import hazard
def build():
    import fused
    A = Asm()
    hdr = open("cdna_kernels/%s.s.ref" % NAME).read().split("; Override launch")[0]
    A.l.extend(hdr.rstrip("\n").split("\n"))
    A.l.append(f"; @launch grid=(256,1,1) block=(960,1,1) lds={fused.F_LDS}")
    A('.amdgcn_target "amdgcn-amd-amdhsa--gfx950"')
    A(".text")
    fused.gen_fused(A, NAME + "_kernel")
    A('.section .rodata,"a"')
    kernel_desc(A, NAME + "_kernel", 128)
    return A.text()
if __name__ == "__main__":
    if len(sys.argv) > 2 and sys.argv[2] == "st": common.STAMPS[0] = True
    if len(sys.argv) > 3 and sys.argv[2] == "pad": common.PAD[0] = sys.argv[3]; common.PAD[1] = int(sys.argv[4])
    t = build()
    open(sys.argv[1], "w").write(t)
    print("hazards:", hazard.check(t))
    if common.STAMPS[0]:
        import json
        json.dump(common.NAMES, open(sys.argv[1] + ".names", "w"))
```

```python
from common import *
import math, struct

def f32hex(x): return hex(struct.unpack("<I", struct.pack("<f", x))[0])
LOG2E = 0x3fb8aa3b
QSCALE = 0x3eb8aa3b

def reg(i): return (i << 21) + ((i + 1) << 12)
F_Q = reg(0)
F_KV = reg(1)
F_UT = reg(3)
F_YA = reg(4)
F_FL = reg(5)
NCLR = 4
F_F1 = F_FL + 4
F_F2 = F_FL + 8
F_F3 = F_FL + 12
F_YC = F_FL + (192 << 10)
F_O = F_Q
FWS = 12 << 20
HOLES = [0, (1 << 21) + (1 << 12), (3 << 21) + (2 << 12), (4 << 21) + (4 << 12), (5 << 21) + (5 << 12)]

L_CNT = 0
C_QKV, C_KV1, C_KV2, C_CARRY, C_YA, C_FREE, C_O, C_RING, C_PAIR, C_F1, C_CIN, C_YA2 = 0, 4, 8, 12, 16, 20, 24, 28, 32, 48, 52, 56
C_FULL, C_FR, C_KX, C_ANN, C_UT, C_ISS, C_TAB, C_CAR2 = 64, 96, 60, 28, 672, 676, 680, 688
L_G = 128
L_S1, L_S2, L_S3, L_SU = 384, 416, 432, 464
L_MK = 576
C_WO = 448
C_GO = 452
L_TAB = 768
TABW = 9216
L_U = L_TAB + 1024
L_KXA = L_TAB + 9216 + 512
ROW = 272
L_RING = 32768
L_Q = L_TAB + 2 * TABW
L_KV = L_Q + 8192
KVS = 2080
L_WO = 1024
L_XCH = 66560
L_LX = L_KV + 64 * KVS
L_O = 98304
F_LDS = 163840
SPIN = 200000
import os
OPT = dict(kv.split('=') for kv in os.environ.get('FOPT', '').split(',') if kv)
PM = OPT.get("pm", "sc1").replace("+", " ")
FM = OPT.get("fm", "sc1").replace("+", " ")
NPF = int(OPT.get('npf', 5 if not STAMPS[0] else 7))

class G:
    n = 0
def lab(p):
    G.n += 1
    return f"{p}{G.n}"

def lds_wait(A, addr_v, off, target, tmp_v, tmp_s, cnt_s, sleep=1, pre=False):
    l = lab("LW"); d = lab("LD")
    if pre:
        A(f"v_readfirstlane_b32 s{tmp_s}, v{tmp_v}")
        A(f"s_mov_b32 s{cnt_s}, 0")
        A(f"s_cmp_ge_u32 s{tmp_s}, {target}")
        A(f"s_cbranch_scc1 {d}")
    else:
        A(f"s_mov_b32 s{cnt_s}, 0")
    A(f"{l}:")
    A(f"ds_read_b32 v{tmp_v}, v{addr_v} offset:{off}")
    A("s_waitcnt lgkmcnt(0)")
    A(f"v_readfirstlane_b32 s{tmp_s}, v{tmp_v}")
    A(f"s_add_u32 s{cnt_s}, s{cnt_s}, 1")
    A(f"s_cmp_ge_u32 s{tmp_s}, {target}")
    A(f"s_cbranch_scc1 {d}")
    if sleep: A(f"s_sleep {sleep}")
    A(f"s_cmp_lt_u32 s{cnt_s}, {hex(SPIN * 8)}")
    A(f"s_cbranch_scc1 {l}")
    A(f"{d}:")

def mask_read(A, tmp_v, zero_v, addr_s, dst_s):
    A("s_mov_b64 exec, 1")
    A(f"v_mov_b32 v{tmp_v}, 0")
    A(f"buffer_atomic_or v{tmp_v}, v{zero_v}, s[24:27], s{addr_s} offen sc0 sc1")
    A("s_waitcnt vmcnt(0)")
    A(f"v_readfirstlane_b32 s{dst_s}, v{tmp_v}")
    A("s_mov_b64 exec, -1")

def mask_wait(A, tmp_v, zero_v, addr_s, dst_s, cnt_s, want, tmp_s, sleep=1):
    l = lab("KW"); d = lab("KD")
    A(f"s_mov_b32 s{cnt_s}, 0")
    A(f"{l}:")
    mask_read(A, tmp_v, zero_v, addr_s, dst_s)
    A(f"s_andn2_b32 s{tmp_s}, {want}, s{dst_s}")
    A(f"s_cbranch_scc0 {d}")
    if sleep: A(f"s_sleep {sleep}")
    A(f"s_add_u32 s{cnt_s}, s{cnt_s}, 1")
    A(f"s_cmp_lt_u32 s{cnt_s}, {hex(SPIN)}")
    A(f"s_cbranch_scc1 {l}")
    A(f"s_mov_b32 s{dst_s}, -1")
    A(f"{d}:")

def mask_wait_p(A, regs, zero_v, addr_s, dst_s, cnt_s, want, tmp_s, gap):
    l = lab("KW"); d = lab("KD"); D = len(regs)
    A(f"s_mov_b32 s{cnt_s}, 0")
    A("s_mov_b64 exec, 1")
    for r in regs[:-1]:
        A(f"v_mov_b32 v{r}, 0")
        A(f"buffer_atomic_or v{r}, v{zero_v}, s[24:27], s{addr_s} offen sc0 sc1")
        A(f"s_sleep {gap}")
    A(f"{l}:")
    for i in range(D):
        r = regs[(i - 1) % D]
        A(f"v_mov_b32 v{r}, 0")
        A(f"buffer_atomic_or v{r}, v{zero_v}, s[24:27], s{addr_s} offen sc0 sc1")
        A(f"s_waitcnt vmcnt({D-1})")
        A(f"v_readfirstlane_b32 s{dst_s}, v{regs[i]}")
        A("s_nop 0")
        A(f"s_andn2_b32 s{tmp_s}, {want}, s{dst_s}")
        A(f"s_cbranch_scc0 {d}")
    A(f"s_add_u32 s{cnt_s}, s{cnt_s}, 1")
    A(f"s_cmp_lt_u32 s{cnt_s}, {hex(SPIN)}")
    A(f"s_cbranch_scc1 {l}")
    A(f"s_mov_b32 s{dst_s}, -1")
    A(f"{d}:")
    A("s_mov_b64 exec, -1")

def mask_set(A, bit_v, off_v, addr_s, lanes):
    A(f"s_mov_b64 exec, {hex((1 << lanes) - 1)}" if lanes < 32 else "s_mov_b32 exec_hi, 0")
    A(f"buffer_atomic_or v{bit_v}, v{off_v}, s[24:27], s{addr_s} offen sc1")
    A("s_mov_b64 exec, -1")

def flag_wait(A, voff, soff, tmp_v, cnt_s, srd_="s[24:27]", sleep=1, lanes=0):
    l = lab("FW"); d = lab("FD")
    A(f"s_mov_b32 s{cnt_s}, 0")
    A(f"{l}:")
    A(f"buffer_load_dword v{tmp_v}, v{voff}, {srd_}, {soff} offen sc1")
    A("s_waitcnt vmcnt(0)")
    A(f"v_cmp_eq_u32 vcc, 1, v{tmp_v}")
    A(f"s_add_u32 s{cnt_s}, s{cnt_s}, 1")
    A("s_cmp_eq_u64 vcc, -1")
    A(f"s_cbranch_scc1 {d}")
    if sleep: A(f"s_sleep {sleep}")
    A(f"s_cmp_lt_u32 s{cnt_s}, {hex(SPIN)}")
    A(f"s_cbranch_scc1 {l}")
    A(f"{d}:")

def mark_wait(A, zero_v, off, tmp4, tmp_s, cnt_s, sleep=0, pre=False):
    l = lab("MW"); d = lab("MD")
    if pre:
        A(f"v_min3_u32 v{tmp4}, v{tmp4}, v{tmp4+1}, v{tmp4+2}")
        A(f"v_min_u32 v{tmp4}, v{tmp4}, v{tmp4+3}")
        A(f"s_mov_b32 s{cnt_s}, 0")
        A(f"v_readfirstlane_b32 s{tmp_s}, v{tmp4}")
        A("s_nop 0")
        A(f"s_cmp_lg_u32 s{tmp_s}, 0")
        A(f"s_cbranch_scc1 {d}")
    else:
        A(f"s_mov_b32 s{cnt_s}, 0")
    A(f"{l}:")
    A(f"ds_read_b128 {vr(tmp4,4)}, v{zero_v} offset:{off}")
    A("s_waitcnt lgkmcnt(0)")
    A(f"v_min3_u32 v{tmp4}, v{tmp4}, v{tmp4+1}, v{tmp4+2}")
    A(f"v_min_u32 v{tmp4}, v{tmp4}, v{tmp4+3}")
    A(f"s_add_u32 s{cnt_s}, s{cnt_s}, 1")
    A(f"v_readfirstlane_b32 s{tmp_s}, v{tmp4}")
    A("s_nop 0")
    A(f"s_cmp_lg_u32 s{tmp_s}, 0")
    A(f"s_cbranch_scc1 {d}")
    if sleep: A(f"s_sleep {sleep}")
    A(f"s_cmp_lt_u32 s{cnt_s}, {hex(SPIN * 8)}")
    A(f"s_cbranch_scc1 {l}")
    A(f"{d}:")

def mark(A, off, lw4_s, zero_v):
    A(f"s_add_u32 m0, s{lw4_s}, {off}")
    A("s_mov_b64 exec, 1")
    A(f"buffer_load_dword v{zero_v}, s[16:19], 0 offen sc1 lds")
    A("s_mov_b64 exec, -1")

def lds_add1(A, zero_v, one_v, off):
    A("s_mov_b64 exec, 1")
    A(f"ds_add_u32 v{zero_v}, v{one_v} offset:{off}")
    A("s_mov_b64 exec, -1")

def signal_last(A, zero_v, one_v, tmp_v, tmp_s, off, n, setter):
    sk = lab("SG")
    A("s_mov_b64 exec, 1")
    A(f"ds_add_rtn_u32 v{tmp_v}, v{zero_v}, v{one_v} offset:{off}")
    A("s_waitcnt lgkmcnt(0)")
    A(f"v_readfirstlane_b32 s{tmp_s}, v{tmp_v}")
    A("s_nop 0")
    A(f"s_cmp_eq_u32 s{tmp_s}, {n-1}")
    A("s_mov_b64 exec, -1")
    A(f"s_cbranch_scc0 {sk}")
    setter()
    A(f"{sk}:")

def mfma16(D, Aop, Bop):
    return f"v_mfma_f32_16x16x32_bf16 {vr(D,4)}, {vr(Aop,4)}, {vr(Bop,4)}, {vr(D,4)}"

def gen_fused(A, name):
    kernel_head(A, name)
    A("F_start:")
    pad_init(A)
    npf = int(OPT.get('npf', 6 if STAMPS[0] else 5))
    A("s_load_dwordx16 s[72:87], s[0:1], 0")
    A("s_load_dwordx16 s[40:55], s[0:1], 64")
    A("v_lshrrev_b32 v2, 6, v0")
    A("s_cmp_ge_u32 s2, 256")
    A("v_readfirstlane_b32 s15, v2")
    A("s_cbranch_scc1 F_done")
    A("v_and_b32 v1, 63, v0")
    A("s_sub_u32 s15, s15, 1")
    A("s_cbranch_scc0 F_role")
    A(f"s_cmp_lt_u32 s2, {8*npf}")
    A("s_cbranch_scc0 F_pf1")
    A("s_getpc_b64 s[30:31]")
    A("s_lshr_b32 s32, s2, 3")
    A("s_lshl_b32 s32, s32, 12")
    A("v_lshl_add_u32 v2, v1, 6, s32")
    A("global_load_dword v3, v2, s[30:31]")
    A("F_pf1:")
    A("v_lshlrev_b32 v2, 4, v1")
    for r in range(4, 8): A(f"v_mov_b32 v{r}, 0")
    A("s_mov_b32 exec_hi, 0xf")
    A("ds_write_b128 v2, v[4:7]")
    A("s_mov_b32 exec_hi, -1")
    A("v_lshlrev_b32 v2, 7, v1")
    A("s_lshl_b32 s33, s2, 13")
    A(f"s_add_u32 s33, s33, {hex(F_FL)}")
    A("v_add_u32 v2, s33, v2")
    A(f"s_cmp_lt_u32 s2, {NCLR}")
    A("s_waitcnt lgkmcnt(0)")
    A("s_cbranch_scc0 F_pf2")
    A("global_store_dwordx4 v2, v[4:7], s[54:55] sc1")
    A("s_lshl_b32 s33, s2, 2")
    A("v_mov_b32 v2, s33")
    A("v_mov_b32 v8, 1")
    A("s_mov_b64 exec, 1")
    A("s_waitcnt vmcnt(0)")
    A("global_store_dword v2, v8, s[52:53] sc1")
    A("F_pf2:")
    for k, h in enumerate(HOLES):
        A(f"s_mov_b32 s32, {hex(h)}")
        A(f"s_load_dword s{16+k}, s[54:55], s32")
    A("s_load_dword s21, s[46:47], 0")
    A("s_load_dword s22, s[50:51], 0")
    A("s_endpgm")
    A("F_role:")
    A("s_and_b32 s10, s2, 7")
    A("s_lshr_b32 s11, s2, 3")
    A("s_lshr_b32 s12, s10, 1")
    A("s_lshl_b32 s12, s12, 3")
    A("s_and_b32 s3, s11, 7")
    A("s_add_u32 s12, s12, s3")
    A("s_and_b32 s6, s10, 1")
    A("s_lshr_b32 s7, s11, 3")
    A("s_lshl2_add_u32 s13, s6, s7" if OPT.get("hgmap", "0") == "0" else "s_lshl1_add_u32 s13, s7, s6")
    A("s_lshl1_add_u32 s14, s7, s6")
    A("s_add_u32 s14, s14, s3")
    A("s_and_b32 s14, s14, 7")
    savewave(A)
    A("s_cmp_lt_u32 s15, 8")
    A("s_cbranch_scc0 F_notkgen")
    A("s_and_b32 s16, s15, 1")
    A("s_lshl1_add_u32 s17, s2, s16")
    A("s_lshl_b32 s18, s17, 8")
    A("v_lshl_add_u32 v2, v1, 2, s18")
    A("s_lshl_b32 s18, s17, 1")
    A("v_mov_b32 v3, s18")
    A("s_waitcnt lgkmcnt(0)")
    A("global_load_ushort v10, v3, s[86:87]")
    for k in range(2):
        A(f"global_load_dword v{4+k}, v2, s[{74+2*k}:{75+2*k}]")
    A("s_cmp_lt_u32 s15, 4")
    A("s_cbranch_scc1 F_notloader")
    for k in range(2, 6):
        A(f"global_load_dword v{4+k}, v2, s[{74+2*k}:{75+2*k}]")
    A("global_load_ushort v11, v3, s[40:41]")
    A("s_branch F_notloader")
    A("F_notkgen:")
    A("s_bitcmp1_b32 0xf00, s15")
    A("s_cbranch_scc1 F_side")
    A("s_cmp_lt_u32 s15, 13")
    A("s_cbranch_scc1 F_notloader")
    A("v_and_b32 v2, 15, v1")
    A("v_and_b32 v3, 48, v1")
    A("v_lshl_add_u32 v2, v2, 6, v3")
    A("s_waitcnt lgkmcnt(0)")
    A("global_load_dwordx4 v[64:67], v2, s[48:49]")
    A("s_branch F_notloader")
    A("F_side:")
    side(A)
    A("F_notloader:")
    A("s_waitcnt lgkmcnt(0)")
    tick(A, "start")
    A("s_mov_b32 s8, s54")
    A("s_mov_b32 s9, s55")
    srd(A, 24, 54, FWS)
    A("s_cmp_lt_u32 s15, 4")
    A("s_cbranch_scc1 F_gemm")
    A("s_cmp_lt_u32 s15, 8")
    A("s_cbranch_scc1 F_kgen")
    misc(A)
    A("F_kgen:")
    kgen(A)
    A("s_branch F_conv")
    A("F_gemm:")
    gemm(A)
    A("F_conv:")
    conv(A)
    attention(A)
    A("F_done:")
    A("s_endpgm")
    A("F_codeend:")
    A(f".fill (({npf}*4096 + 256 - (F_codeend - F_start)) >> 2), 4, 0xbf810000")

def side(A):
    A("s_sub_u32 s15, s15, 8")
    A("v_lshrrev_b32 v2, 3, v1")
    A("v_bfe_u32 v3, v1, 4, 1")
    A("v_and_b32 v6, 7, v1")
    A("s_and_b32 s30, s15, 1")
    A("s_lshl_b32 s30, s30, 2")
    A("v_xor_b32 v7, v6, v3")
    A("v_xor_b32 v7, s30, v7")
    A("v_lshlrev_b32 v7, 4, v7")
    A("v_lshl_add_u32 v4, v2, 10, v7")
    A("v_xor_b32 v5, 32, v4")
    A("v_lshlrev_b32 v3, 1, v3")
    A("v_xor_b32 v7, v6, v3")
    A("v_mul_u32_u24 v6, 3072, v2")
    A("v_lshl_add_u32 v6, v7, 4, v6")
    A("v_xor_b32 v7, 64, v6")
    A("s_lshl_b32 s30, s12, 16")
    A("s_lshl_b32 s31, s15, 14")
    A("s_add_u32 s30, s30, s31")
    A("s_mul_i32 s31, s15, 49152")
    A("s_lshl_b32 s32, s13, 7")
    A("s_add_u32 s31, s31, s32")
    A("s_lshl_b32 s32, s15, 11")
    A(f"s_add_u32 s32, s32, {L_RING}")
    A("s_mov_b32 s33, 0")
    A("s_lshl_b32 s39, s15, 2")
    A(f"s_add_u32 s39, s39, {L_MK}")
    A("v_and_b32 v9, 7, v1")
    A("v_mov_b32 v8, 0")
    A("v_lshl_add_u32 v9, v9, 4, s39")
    A("ds_write_b32 v9, v8")
    A("s_waitcnt lgkmcnt(0)")
    tick(A, "start")
    pad(A, "start")
    srd(A, 16, 72, 2048 * 512 * 2)
    srd(A, 20, 44, 512 * 1536 * 2)
    A("s_setprio 3")
    thr = int(OPT.get("thr", 63))
    GW = 64; GM = 68; X = 76; GA = 84; XA = 88
    def issue():
        A("s_add_u32 s34, s14, s33")
        A("s_and_b32 s34, s34, 7")
        A("s_lshl_b32 s35, s34, 7")
        A("s_add_u32 s35, s35, s30")
        A("s_mul_i32 s36, s34, 196608")
        A("s_add_u32 s36, s36, s31")
        A("s_and_b32 s37, s33, 3")
        A("s_lshl_b32 s37, s37, 15")
        A("s_add_u32 m0, s37, s32")
        A("s_add_u32 s38, s35, 7168")
        if thr < 63: A(f"s_waitcnt vmcnt({thr})")
        A("buffer_load_dwordx4 v4, s[16:19], s35 offen lds")
        A("buffer_load_dwordx4 v5, s[16:19], s38 offen offset:1024 lds")
        for mat in range(3):
            A("s_add_u32 m0, m0, 8192")
            A(f"s_add_u32 s38, s36, {24576 - 1024}")
            if thr < 63: A(f"s_waitcnt vmcnt({thr})")
            A("buffer_load_dwordx4 v6, s[20:23], s36 offen lds")
            A("buffer_load_dwordx4 v7, s[20:23], s38 offen offset:1024 lds")
            if mat < 2: A("s_add_u32 s36, s36, 1024")
    A("s_getpc_b64 s[28:29]")
    A("F_ld:")
    A("s_bitcmp1_b32 0xac, s33")
    A("s_cbranch_scc0 F_ld1")
    bar(A)
    A("F_ld1:")
    issue()
    A("s_mov_b32 m0, s39")
    A("s_mov_b64 exec, 1")
    A("global_load_lds_dword v8, s[28:29]")
    A("s_mov_b64 exec, -1")
    A("s_add_u32 s39, s39, 16")
    A("s_add_u32 s33, s33, 1")
    A("s_cmp_lt_u32 s33, 8")
    A("s_cbranch_scc1 F_ld")
    A("s_mov_b32 s8, s54")
    A("s_mov_b32 s9, s55")
    srd(A, 24, 54, FWS)
    bar(A)
    tick(A, "ld_done")
    if PAD[0] == "endmin":
        A("s_not_b32 s58, s56")
        A("v_mov_b32 v2, 0")
        A("v_mov_b32 v3, s58")
        A("s_mov_b64 exec, 1")
        A("global_atomic_umax v2, v3, s[52:53] offset:128")
        A("s_mov_b64 exec, -1")
    A("v_lshlrev_b32 v3, 4, v1")
    srd(A, 16, 52, 256)
    A("v_mov_b32 v8, 0")
    A("v_mov_b32 v9, 1")
    A("s_lshl_b32 s29, s15, 2")
    A("s_and_b32 s31, s11, 3")
    A("s_lshl2_add_u32 s31, s10, s31")
    A("s_lshr_b32 s28, s11, 2")
    A("s_lshl3_add_u32 s30, s31, s28")
    A("s_lshl_b32 s30, s30, 7")
    A(f"s_add_u32 s30, s30, {hex(F_F1)}")
    A("s_lshl_b32 s20, s15, 3")
    A("s_lshl_b32 s37, s31, 16")
    A("s_lshr_b32 s28, s11, 2")
    A("s_lshl_b32 s32, s28, 13")
    A("s_add_u32 s37, s37, s32")
    A("s_lshl_b32 s31, s31, 17")
    A(f"s_add_u32 s31, s31, {hex(F_KV)}")
    A("s_lshl_b32 s32, s15, 11")
    A("s_add_u32 s37, s37, s32")
    A(f"s_add_u32 s37, s37, {hex(F_Q)}")
    A(f"s_add_u32 s38, s32, {L_Q}")
    A("s_lshl1_add_u32 s31, s32, s31")
    A(f"s_mul_i32 s33, s15, {KVS}")
    A(f"s_add_u32 s33, s33, {L_KV}")
    A("v_and_b32 v10, 1, v1")
    A("v_cmp_eq_u32 vcc, 0, v10")
    A("v_bfe_u32 v11, v1, 1, 4")
    A("v_mov_b32 v16, 0x3f803f80")
    A("v_cndmask_b32 v16, 0, v16, vcc")
    A(f"v_mul_u32_u24 v11, {4*KVS}, v11")
    A("v_lshl_add_u32 v11, v10, 4, v11")
    A("v_add_u32 v11, s33, v11")
    for r in range(17, 20): A(f"v_mov_b32 v{r}, v16")
    lds_wait(A, 8, C_FR, 6, 10, 34, 35)
    A("ds_write_b128 v11, v[16:19] offset:2048")
    A("s_waitcnt lgkmcnt(0)")
    A("s_mov_b32 s36, 0xff")
    A("s_mov_b32 s39, 0")
    A(f"s_mul_i32 s33, s15, {2*KVS}")
    A(f"s_add_u32 s33, s33, {L_KV}")
    A(f"s_mov_b32 s43, {32*KVS}")
    A("s_cmp_eq_u32 s15, 0")
    A("s_cbranch_scc0 F_f1w")
    A("s_lshl_b32 s41, 0x01010101, s28")
    pd1 = int(OPT.get("pd1", 1))
    if pd1 > 1: mask_wait_p(A, [20, 21, 22, 23][:pd1], 8, 30, 35, 34, "s41", 42, int(OPT.get("pg", 4)))
    else: mask_wait(A, 10, 8, 30, 35, 34, "s41", 42, sleep=int(OPT.get("f1sl", 0)))
    A("v_mov_b32 v10, s35")
    A(f"ds_write_b32 v8, v10 offset:{C_F1}")
    A("s_branch F_f1d")
    A("F_f1w:")
    lds_wait(A, 8, C_F1, 1, 10, 35, 34)
    A("s_lshr_b32 s35, s35, s20")
    A("F_f1d:")
    tick(A, "F1seen")
    A("s_mov_b32 m0, s38")
    A("s_mov_b32 s34, 0")
    A("buffer_load_dwordx4 v3, s[24:27], s37 offen sc1 lds")
    A("buffer_load_dwordx4 v3, s[24:27], s37 offen offset:1024 sc1 lds")
    A("s_and_b32 s35, s35, s36")
    A("s_cbranch_scc1 F_kv1")
    A("F_kv:")
    mask_read(A, 10, 8, 30, 35)
    A("s_add_u32 s34, s34, 1")
    A("s_lshr_b32 s35, s35, s20")
    A(f"s_cmp_lt_u32 s34, {hex(SPIN)}")
    A("s_cselect_b32 s35, s35, -1")
    A("s_and_b32 s35, s35, s36")
    A("s_cbranch_scc1 F_kv1")
    A("s_sleep 1")
    A("s_branch F_kv")
    A("F_kv1:")
    A("s_ff1_i32_b32 s40, s35")
    A("F_kv2:")
    A("s_lshl_b32 s41, s40, 14")
    A("s_mov_b32 m0, s33")
    A("s_add_u32 s41, s41, s31")
    A("buffer_load_dwordx4 v3, s[24:27], s41 offen sc1 lds")
    A("buffer_load_dwordx4 v3, s[24:27], s41 offen offset:1024 sc1 lds")
    A(f"s_add_u32 m0, s33, {KVS - 2048}")
    A("s_bitset0_b32 s35, s40")
    A("buffer_load_dwordx4 v3, s[24:27], s41 offen offset:2048 sc1 lds")
    A("buffer_load_dwordx4 v3, s[24:27], s41 offen offset:3072 sc1 lds")
    A("s_bitset0_b32 s36, s40")
    A("s_bitcmp1_b32 s39, 0")
    A(f"s_cselect_b32 s42, {hex((-24*KVS) & 0xffffffff)}, s43")
    A("s_add_u32 s33, s33, s42")
    A("s_bitcmp1_b32 0xa3, s39")
    A("s_cbranch_scc0 F_kv3")
    mark(A, L_S1, 29, 8)
    A("s_add_u32 s29, s29, 16")
    tick(A, "mk")
    A("F_kv3:")
    A("s_add_u32 s39, s39, 1")
    A("F_kv4:")
    A("s_cmp_lg_u32 s35, 0")
    A("s_cbranch_scc1 F_kv1")
    A("s_cmp_lg_u32 s36, 0")
    A("s_cbranch_scc1 F_kv")
    tick(A, "kv_issued")
    outproj(A)

def outproj(A):
    A("s_and_b32 s30, s15, 1")
    A("s_lshr_b32 s31, s15, 1")
    A("v_and_b32 v7, 31, v1")
    A("v_lshrrev_b32 v12, 5, v1")
    A("s_lshl_b32 s32, s12, 6")
    A("s_lshl_b32 s33, s30, 5")
    A("s_add_u32 s32, s32, s33")
    A("s_lshl_b32 s33, s13, 6")
    A("s_lshl_b32 s34, s31, 5")
    A("s_add_u32 s33, s33, s34")
    A("v_lshlrev_b32 v10, 15, v12")
    A("v_lshl_add_u32 v10, v7, 3, v10")
    A("s_lshl_b32 s34, s33, 12")
    A("s_lshr_b32 s35, s12, 2")
    A("s_lshl1_add_u32 s35, s35, s30")
    A("s_lshl_b32 s35, s35, 8")
    A("s_add_u32 s34, s34, s35")
    A("s_and_b32 s35, s12, 3")
    A("s_lshl1_add_u32 s34, s35, s34")
    A(f"s_add_u32 s34, s34, {hex(F_YA)}")
    srd(A, 16, 46, 512 * 512 * 2)
    srd(A, 20, 50, 2048 * 512 * 2)
    A("v_lshrrev_b32 v4, 3, v1")
    A("v_lshlrev_b32 v4, 10, v4")
    A("v_and_b32 v5, 7, v1")
    A("v_bfe_u32 v6, v1, 4, 1")
    A("v_lshlrev_b32 v6, 2, v6")
    A("v_xor_b32 v5, v5, v6")
    A("v_lshl_add_u32 v4, v5, 4, v4")
    A("s_lshl_b32 s36, s15, 17")
    A("s_lshl_b32 s37, s13, 7")
    A("s_add_u32 s36, s36, s37")
    A("s_lshl_b32 s37, s15, 14")
    A(f"s_add_u32 s37, s37, {L_WO}")
    lds_wait(A, 8, C_FREE, 4, 11, 38, 39, sleep=32)
    lds_wait(A, 8, C_YA, 2, 11, 38, 39, sleep=8)
    lds_wait(A, 8, C_YA2, 8, 11, 38, 39, sleep=8)
    A("s_mov_b32 s38, 16")
    A("F_wo:")
    A("s_mov_b32 m0, s37")
    A("s_add_u32 s37, s37, 1024")
    A("buffer_load_dwordx4 v4, s[16:19], s36 offen lds")
    A("s_add_u32 s36, s36, 8192")
    A("s_sub_u32 s38, s38, 1")
    A("s_cmp_lg_u32 s38, 0")
    A("s_cbranch_scc1 F_wo")
    A("s_lshl3_add_u32 s28, s12, s13")
    A("s_lshl_b32 s28, s28, 7")
    A(f"s_add_u32 s28, s28, {hex(F_F2)}")
    mask_wait(A, 11, 8, 28, 36, 38, "-1", 37, sleep=16)
    A("s_add_u32 s28, s28, 4")
    lds_add1(A, 8, 9, C_WO)
    GA = 32
    for r in range(GA, GA + 32): A(f"v_mov_b32 v{r}, 0")
    for c in range(2):
        for p in range(8):
            A(f"s_add_u32 s36, s34, {(16*c + p)*4096}")
            A(f"buffer_load_short_d16_hi v{GA+8*c+p}, v10, s[24:27], s36 offen sc1")
    A("s_and_b32 s36, s32, 255")
    A("s_cbranch_scc1 F_nc")
    A("s_lshr_b32 s36, s32, 4")
    A("s_cbranch_scc0 F_nc")
    A("s_lshl_b32 s37, s33, 7")
    A("s_add_u32 s36, s36, s37")
    A(f"s_add_u32 s36, s36, {hex(F_YC - 16)}")
    A("v_lshlrev_b32 v10, 10, v12")
    A("v_lshl_add_u32 v10, v7, 2, v10")
    A("s_mov_b32 exec_lo, 7")
    A("s_mov_b32 exec_hi, 7")
    for c in range(2):
        for p in range(8):
            A(f"buffer_load_dword v{GA+16+8*c+p}, v10, s[24:27], s36 offen offset:{(16*c + p)*128} sc1")
    A("s_mov_b64 exec, -1")
    A("F_nc:")
    A("s_lshl_b32 s36, s30, 7")
    A("v_lshl_add_u32 v11, v7, 2, s36")
    A(f"ds_read_b32 v11, v11 offset:{L_G}")
    A("v_bfe_u32 v13, v1, 2, 2")
    A("v_lshl_add_u32 v14, v12, 2, v13")
    A("v_lshlrev_b32 v14, 7, v14")
    A("v_lshrrev_b32 v13, 1, v13")
    A("v_xor_b32 v13, s31, v13")
    A("v_lshl_add_u32 v14, v13, 6, v14")
    A("v_and_b32 v13, 16, v1")
    A("v_lshl_add_u32 v14, v13, 1, v14")
    A("v_and_b32 v13, 1, v1")
    A("v_lshl_add_u32 v14, v13, 4, v14")
    A("v_and_b32 v13, 2, v1")
    A("v_lshl_add_u32 v14, v13, 2, v14")
    A("s_lshl_b32 s36, s31, 15")
    A(f"s_add_u32 s36, s36, {L_WO}")
    A("v_add_u32 v5, s36, v14")
    A("v_xor_b32 v4, 64, v5")
    A("v_and_b32 v6, 28, v1")
    A("v_add_lshl_u32 v6, v6, v12, 10")
    A("v_and_b32 v13, 1, v1")
    A("v_lshl_add_u32 v6, v13, 5, v6")
    A("v_and_b32 v13, 2, v1")
    A("v_lshl_add_u32 v6, v13, 3, v6")
    A("s_mov_b32 s40, 0x55555555")
    A("s_mov_b32 s41, s40")
    A("s_mov_b32 s42, 0x33333333")
    A("s_mov_b32 s43, s42")
    A("s_lshl_b32 s32, s32, 10")
    A("s_lshl_b32 s33, s33, 1")
    A("s_add_u32 s32, s32, s33")
    A("s_lshl_b32 s36, s15, 12")
    A(f"s_add_u32 s36, s36, {L_O}")
    A("v_add_u32 v7, s36, v3")
    A("v_xor_b32 v10, 0x2000, v7")
    A("s_waitcnt vmcnt(0) lgkmcnt(0)")
    for r in range(GA, GA + 16): A(f"v_add_f32 v{r}, v{r}, v{r+16}")
    for r in range(GA, GA + 16): A(f"v_mul_f32 v{r}, v11, v{r}")
    GP = 16
    for p in range(8): A(f"v_cvt_pk_bf16_f32 v{GP+p}, v{GA+2*p}, v{GA+2*p+1}")
    A("v_sub_f32 v11, 1.0, v11")
    A("v_cvt_pk_bf16_f32 v11, v11, v11")
    A("v_and_b32 v11, 0xffff0000, v11")
    A("s_lshl_b32 s34, s31, 20")
    A("s_lshl1_add_u32 s35, s12, s30")
    A("s_lshl_b32 s35, s35, 10")
    A("s_add_u32 s34, s34, s35")
    A(f"s_add_u32 s34, s34, {hex(F_Q)}")
    A("s_lshl_b32 s35, s31, 4")
    A("s_lshl_b32 s35, 0xffff, s35")
    lds_wait(A, 8, C_WO, 4, 13, 38, 39, sleep=8)
    if OPT.get("dyn"):
        GS = [0, 1, 2, 12, 9, 10, 14, 7]
        for p in range(8): A(f"v_mov_b32 v{GS[p]}, v{GP+p}")
        A1 = 32; A0 = 48; OF = 64
        WB = lambda k: 16 + 8 * (k & 1)
        def wrd(ks):
            for av, b in ((4, WB(ks)), (5, WB(ks) + 4)):
                A(f"ds_read_b64_tr_b16 {vr(b,2)}, v{av} offset:{ks*2048}")
                A(f"ds_read_b64_tr_b16 {vr(b+2,2)}, v{av} offset:{ks*2048+1024}")
        for r in range(A1, A1 + 32): A(f"v_mov_b32 v{r}, 0")
        A("s_mov_b32 s35, 0x1111")
        A("s_lshl_b32 s79, s31, 4")
        A("s_mov_b32 s38, 0")
        tick(A, "op_ready")
        A("s_barrier")
        tick(A, "op_go")
        A("F_or:")
        mask_read(A, 13, 8, 28, 77)
        A("s_add_u32 s38, s38, 1")
        A(f"s_cmp_lt_u32 s38, {hex(SPIN)}")
        A("s_cselect_b32 s77, s77, -1")
        A("s_lshr_b32 s77, s77, s79")
        A("s_lshr_b32 s37, s77, 2")
        A("s_and_b32 s77, s77, s37")
        A("s_lshr_b32 s37, s77, 1")
        A("s_and_b32 s77, s77, s37")
        A("s_and_b32 s77, s77, s35")
        A("s_cbranch_scc0 F_or")
        A("s_bcnt1_i32_b32 s36, s77")
        A("s_andn2_b32 s35, s35, s77")
        for g in range(4):
            A(f"s_bitcmp1_b32 s77, {4*g}")
            A(f"s_cbranch_scc0 F_oi{g}")
            for k in range(4 * g, 4 * g + 4):
                A(f"s_add_u32 s37, s34, {k*65536}")
                A(f"buffer_load_dwordx4 {vr(OF+4*k,4)}, v3, s[24:27], s37 offen sc1")
            A(f"F_oi{g}:")
        for g in range(4):
            A(f"s_bitcmp1_b32 s77, {4*g}")
            A(f"s_cbranch_scc0 F_og{g}")
            wrd(4 * g); wrd(4 * g + 1)
            for n in range(3 - g, 0, -1):
                A(f"s_waitcnt vmcnt({4*n})")
                A(f"s_cmp_eq_u32 s36, {n+1}")
                A(f"s_cbranch_scc1 F_ow{g}")
            A("s_waitcnt vmcnt(0)")
            A(f"F_ow{g}:")
            for k in range(4 * g, 4 * g + 4):
                A(f"s_waitcnt lgkmcnt({4 if k < 4*g+3 else 0})")
                A(mfma32(A1, WB(k), OF + 4 * k))
                A(mfma32(A0, WB(k) + 4, OF + 4 * k))
                if k + 2 < 4 * g + 4: wrd(k + 2)
            A("s_sub_u32 s36, s36, 1")
            A(f"F_og{g}:")
        A("s_cmp_lg_u32 s35, 0")
        A("s_cbranch_scc1 F_or")
        tick(A, "op_mm")
        GU = 64
        A("s_lshl_b32 s36, s15, 12")
        A(f"s_add_u32 s36, s36, {L_O}")
        A("v_add_u32 v4, s36, v3")
        A("v_xor_b32 v5, 0x2000, v4")
        for q in range(5): A(f"v_lshlrev_b32 v{GU+2*q}, 16, v{GS[q]}")
        if OPT.get("eb") == "7": A("s_barrier")
        for q in range(4): A(f"ds_write_b128 v4, {vr(A1+4*q,4)} offset:{q*1024}")
        for q in range(8):
            if q >= 5: A(f"v_lshlrev_b32 v{GU+2*q}, 16, v{GS[q]}")
            A(f"v_and_b32 v{GU+2*q+1}, 0xffff0000, v{GS[q]}")
        for r in range(16): A(f"v_fma_f32 v{GU+r}, v{A0+r}, v11, v{GU+r}")
        A("s_waitcnt lgkmcnt(0)")
        A("s_barrier")
        for q in range(4): A(f"ds_read_b128 {vr(A1+4*q,4)}, v5 offset:{q*1024}")
        A("s_mov_b64 vcc, s[40:41]")
        if STAMPS[0]: A("v_lshrrev_b32 v1, 4, v3")
        for hf in range(2):
            A(f"s_waitcnt lgkmcnt({2 - 2*hf})")
            for r in range(8*hf, 8*hf + 8): A(f"v_fma_f32 v{GU+r}, v{A1+r}, v11, v{GU+r}")
            for p in range(4*hf, 4*hf + 4): A(f"v_cvt_pk_bf16_f32 v{GP+p}, v{GU+2*p}, v{GU+2*p+1}")
    else:
        A1 = 24; A0 = 40; OF = 80
        WB = lambda k: 56 + 8 * (k % 3)
        OB_ = lambda k: OF + 4 * (k % 12)
        def wrd(ks):
            for av, b in ((4, WB(ks)), (5, WB(ks) + 4)):
                A(f"ds_read_b64_tr_b16 {vr(b,2)}, v{av} offset:{ks*2048}")
                A(f"ds_read_b64_tr_b16 {vr(b+2,2)}, v{av} offset:{ks*2048+1024}")
        def old(ks):
            A(f"buffer_load_dwordx4 {vr(OB_(ks),4)}, v3, s[24:27], s34 offen sc1")
            if ks < 15: A("s_add_u32 s34, s34, 0x10000")
        for ks in range(3): wrd(ks)
        tick(A, "op_ready")
        A("s_barrier")
        tick(A, "op_go")
        if OPT.get("one", "0") == "1":
            A("s_cmp_eq_u32 s15, 0")
            A("s_cbranch_scc0 F_f3d")
            mask_wait(A, 13, 8, 28, 36, 38, "-1", 37, sleep=int(OPT.get("psl", 0)))
            A("F_f3d:")
            A("s_barrier")
        else:
            pd = int(OPT.get("pd", 3))
            if pd > 1: mask_wait_p(A, [13, 12, 14, 2][:pd], 8, 28, 36, 38, "s35", 37, int(OPT.get("pg", 4)))
            else: mask_wait(A, 13, 8, 28, 36, 38, "s35", 37, sleep=int(OPT.get("psl", 0)))
        tick(A, "F3seen")
        for ks in range(12): old(ks)
        for ks in range(16):
            A(f"s_waitcnt vmcnt({min(11, 15-ks)}) lgkmcnt({4*min(2, 15-ks)})")
            A(mfma32(A1, WB(ks), OB_(ks), "0" if ks == 0 else None))
            A(mfma32(A0, WB(ks) + 4, OB_(ks), "0" if ks == 0 else None))
            if ks < 4: old(ks + 12)
            if ks + 3 < 16: wrd(ks + 3)
        tick(A, "op_mm")
        GU = 96
        for q in range(8):
            A(f"v_lshlrev_b32 v{GU+2*q}, 16, v{GP+q}")
            if q < 3: A(f"v_and_b32 v{GU+2*q+1}, 0xffff0000, v{GP+q}")
        for q in range(4): A(f"ds_write_b128 v7, {vr(A1+4*q,4)} offset:{q*1024}")
        for q in range(3, 8): A(f"v_and_b32 v{GU+2*q+1}, 0xffff0000, v{GP+q}")
        for r in range(16): A(f"v_fma_f32 v{GU+r}, v{A0+r}, v11, v{GU+r}")
        A("s_waitcnt lgkmcnt(0)")
        A("s_barrier")
        for q in range(4): A(f"ds_read_b128 {vr(A0+4*q,4)}, v10 offset:{q*1024}")
        A("s_mov_b64 vcc, s[40:41]")
        for hf in range(2):
            A(f"s_waitcnt lgkmcnt({2 - 2*hf})")
            for r in range(8*hf, 8*hf + 8): A(f"v_fma_f32 v{GU+r}, v{A0+r}, v11, v{GU+r}")
            for p in range(4*hf, 4*hf + 4): A(f"v_cvt_pk_bf16_f32 v{GP+p}, v{GU+2*p}, v{GU+2*p+1}")
    def xswap(src, dst, perm):
        for d in range(4): A(f"v_cndmask_b32_dpp v{dst+d}, v{src+4+d}, v{src+d}, vcc quad_perm:{perm} row_mask:0xf bank_mask:0xf")
        A("s_not_b64 vcc, vcc")
        for d in range(4): A(f"v_cndmask_b32_dpp v{dst+4+d}, v{src+d}, v{src+4+d}, vcc quad_perm:{perm} row_mask:0xf bank_mask:0xf")
    xswap(GP, 24, "[1,0,3,2]")
    A("s_mov_b64 vcc, s[42:43]")
    for d in range(4): A(f"v_permlane32_swap_b32 v{24+d}, v{28+d}")
    xswap(24, GP, "[2,3,0,1]")
    om = OPT.get("omod", "sc1")
    A(f"buffer_store_dwordx4 {vr(GP,4)}, v6, s[20:23], s32 offen {om}")
    A(f"buffer_store_dwordx4 {vr(GP+4,4)}, v6, s[20:23], s32 offen offset:2048 {om}")
    pad(A, "end")
    if PAD[0] == "endmin":
        A("v_mov_b32 v2, 0")
        A("global_load_dword v3, v2, s[52:53] offset:128 sc1")
        A("s_waitcnt vmcnt(0)")
        A("v_readfirstlane_b32 s56, v3")
        A("s_nop 3")
        A("s_not_b32 s56, s56")
        pad(A, "endmin")
    dump(A, 0, 6)
    A("s_endpgm")

def misc(A):
    A("v_mov_b32 v8, 0")
    A("v_mov_b32 v9, 1")
    A("s_setprio 3")
    A("s_cmp_eq_u32 s15, 12")
    A("s_cbranch_scc0 F_gate")
    srd(A, 36, 52, 256)
    A("v_and_b32 v5, 15, v1")
    A(f"v_min_u32 v2, {NCLR-1}, v1")
    A("v_lshlrev_b32 v2, 2, v2")
    A("v_bfe_u32 v4, v1, 3, 1")
    A("v_bfe_u32 v6, v1, 1, 1")
    A("v_lshl_or_b32 v4, v4, 1, v6")
    A("v_lshlrev_b32 v4, 4, v4")
    A("v_lshl_add_u32 v4, v5, 7, v4")
    A("v_bfe_u32 v6, v1, 4, 1")
    A("v_lshl_add_u32 v4, v6, 12, v4")
    A("v_lshrrev_b32 v6, 5, v1")
    A("v_lshl_add_u32 v4, v6, 3, v4")
    A(f"v_add_u32 v20, {L_RING}, v4")
    for k in range(1, 8): A(f"v_xor_b32 v{20+k}, {16*k}, v20")
    A("v_bfe_u32 v4, v1, 2, 3")
    A("v_lshlrev_b32 v4, 5, v4")
    A("v_lshl_add_u32 v7, v6, 14, v4")
    A("v_and_b32 v4, 1, v1")
    A("v_lshl_add_u32 v7, v4, 4, v7")
    A("v_bfe_u32 v4, v1, 1, 1")
    A("v_lshl_add_u32 v7, v4, 13, v7")
    A("s_lshl_b32 s31, s14, 18")
    A("s_lshl_b32 s32, s12, 8")
    A("s_add_u32 s31, s31, s32")
    A(f"s_add_u32 s31, s31, {hex(F_UT)}")
    A("s_lshl_b32 s33, s14, 12")
    A(f"s_add_u32 s33, s33, {hex(F_FL)}")
    A("v_lshlrev_b32 v11, 7, v1")
    A("v_lshlrev_b32 v12, s12, v9")
    UT = 32
    bar(A)
    mark_wait(A, 8, L_MK, 16, 34, 35, sleep=1)
    for i in range(8):
        for eh in range(2):
            A(f"ds_read_b64_tr_b16 {vr(UT+4*i+2*eh,2)}, v{20 + (i ^ (4*eh))} offset:{eh*2048}")
    for i in range(8):
        if i % 2 == 0: A(f"s_waitcnt lgkmcnt({12 - 2*i})")
        A(f"buffer_store_dwordx4 {vr(UT+4*i,4)}, v7, s[24:27], s31 offen sc1")
        if i < 7: A("s_add_u32 s31, s31, 0x8000")
    A("buffer_load_dword v10, v2, s[36:39], 0 offen sc1")
    utb = int(OPT.get("utb", 1))
    for k in range(utb): bar(A)
    A("s_waitcnt vmcnt(0)")
    A("v_cmp_eq_u32 vcc, 1, v10")
    A("s_nop 1")
    A("s_cmp_eq_u64 vcc, -1")
    A("s_cbranch_scc1 F_m2")
    flag_wait(A, 2, "0", 10, 34, srd_="s[36:39]", sleep=2)
    A("F_m2:")
    mask_set(A, 12, 11, 33, 32)
    if STAMPS[0]:
        for k in range(4 - utb): bar(A)
    dump(A)
    A("s_endpgm")

    A("F_gate:")
    GW = 64; X = [32, 48]; GA = 16; GM = 68
    for r in range(GA, GA + 8): A(f"v_mov_b32 v{r}, 0")
    for r in range(X[1], X[1] + 16): A(f"v_mov_b32 v{r}, 0")
    for r in range(GM, GM + 8): A(f"v_mov_b32 v{r}, 0")
    xaddr(A)
    A("s_sub_u32 s16, s15, 13")
    A("s_lshl_b32 s30, s16, 12")
    A("v_add_u32 v4, s30, v4")
    A("v_add_u32 v5, s30, v5")
    A("s_lshl_b32 s30, s16, 7")
    A("v_lshl_add_u32 v10, v9, 2, s30")
    A("v_mov_b32 v8, 0")
    A("v_mov_b32 v9, 1")
    A("s_lshl_b32 s30, s14, 1")
    A("s_mov_b32 s31, 4")
    bar(A)
    A("s_waitcnt vmcnt(0)")
    def gmm(st):
        for ks in range(2):
            for mt in range(2):
                A(mfma16(GA + 4 * mt, GM + 4 * ks, X[st] + 8 * ks + 4 * mt))
    A("v_mov_b32 v6, 0")
    A("F_gt:")
    for par in range(2):
        if par == 1: bar(A)
        mark_wait(A, 6, L_MK + 16 * par, 76, 34, 35, sleep=1)
        for ks in range(2):
            for mt in range(2):
                A(f"ds_read_b128 {vr(X[par]+8*ks+4*mt,4)}, v{4+ks} offset:{par*32768 + mt*512}")
        gmm(par ^ 1)
        for ks in range(2):
            A("v_cmp_eq_u32 vcc, s30, v2")
            A("s_add_u32 s30, s30, 1")
            A("s_and_b32 s30, s30, 15")
            for r in range(4): A(f"v_cndmask_b32 v{GM+4*ks+r}, 0, v{GW+r}, vcc")
        if par == 1:
            A("v_xor_b32 v4, 0x10000, v4")
            A("v_xor_b32 v5, 0x10000, v5")
            A("v_add_u32 v6, 32, v6")
            A("s_sub_u32 s31, s31, 1")
            A("s_cmp_lg_u32 s31, 0")
        A("s_waitcnt lgkmcnt(0)")
    A("s_cbranch_scc1 F_gt")
    gmm(1)
    lds_add1(A, 8, 9, C_FR)
    A("s_nop 4")
    R = [GA, GA + 4]
    for q in R: A(f"v_add_f32 v{q}, v{q}, v{q+1}")
    for q in R: A(f"v_add_f32 v{q+2}, v{q+2}, v{q+3}")
    for q in R: A(f"v_add_f32 v{q}, v{q}, v{q+2}")
    for sw in ("v_permlane16_swap_b32", "v_permlane32_swap_b32"):
        for q in R: A(f"v_mov_b32 v{q+1}, v{q}")
        A("s_nop 1")
        for q in R: A(f"{sw} v{q}, v{q+1}")
        A("s_nop 0")
        for q in R: A(f"v_add_f32 v{q}, v{q}, v{q+1}")
    for q in R: A(f"v_cvt_pk_bf16_f32 v{q}, v{q}, v{q}")
    for q in R: A(f"v_and_b32 v{q}, 0xffff0000, v{q}")
    for q in R: A(f"v_mul_f32 v{q}, {hex(LOG2E ^ 0x80000000)}, v{q}")
    for q in R: A(f"v_exp_f32 v{q}, v{q}")
    for q in R: A(f"v_add_f32 v{q}, 1.0, v{q}")
    for q in R: A(f"v_rcp_f32 v{q}, v{q}")
    for q in R: A(f"v_cvt_pk_bf16_f32 v{q}, v{q}, v{q}")
    for q in R: A(f"v_and_b32 v{q}, 0xffff0000, v{q}")
    for mt in range(2): A(f"ds_write_b32 v10, v{R[mt]} offset:{L_G + mt*16}")
    lds_add1(A, 8, 9, C_YA)
    A("s_waitcnt lgkmcnt(0)")
    dump(A)
    A("s_endpgm")

def xaddr(A, d=4, t=0):
    A(f"v_and_b32 v{t+2}, 15, v1")
    A(f"v_lshrrev_b32 v{t+3}, 4, v1")
    A(f"v_lshrrev_b32 v{t+7}, 2, v{t+2}")
    A(f"v_and_b32 v{t+8}, 3, v1")
    A(f"v_lshl_add_u32 v{t+9}, v{t+7}, 3, v{t+8}")
    A(f"v_lshrrev_b32 v{t+10}, 1, v{t+8}")
    A(f"v_lshl_or_b32 v{t+10}, v{t+7}, 1, v{t+10}")
    A(f"v_xor_b32 v{t+10}, v{t+10}, v{t+3}")
    A(f"v_lshlrev_b32 v{t+10}, 4, v{t+10}")
    A(f"v_lshl_add_u32 v{d}, v{t+9}, 7, v{t+10}")
    A(f"v_add_u32 v{d}, {L_RING}, v{d}")
    A(f"v_xor_b32 v{d+1}, 64, v{d}")

ROW2 = 528
TABC = 60 * ROW2

def cmul_pk(A, lst):
    for (R, X, E, T) in lst:
        A(f"v_pk_mul_f32 {vr(T,2)}, {vr(X,2)}, {vr(E,2)} op_sel:[0,0] op_sel_hi:[1,0]")
    for (R, X, E, T) in lst:
        A(f"v_pk_fma_f32 {vr(R,2)}, {vr(X,2)}, {vr(E,2)}, {vr(T,2)} op_sel:[1,1,0] op_sel_hi:[0,1,1] neg_lo:[1,0,0]")

def cmul_sc(A, lst):
    for (R, X, E, T) in lst:
        A(f"v_mul_f32 v{T}, v{X}, v{E+1}")
        A(f"v_mul_f32 v{R}, v{X}, v{E}")
    for (R, X, E, T) in lst:
        A(f"v_fma_f32 v{R}, -v{X+1}, v{E+1}, v{R}")
        A(f"v_fma_f32 v{R+1}, v{X+1}, v{E}, v{T}")

AR, AI, DT = 16, 18, 14
KE = lambda k: (f32hex(k * math.log2(math.e)), f32hex(k / (2 * math.pi)))
def k_base(A):
    A(f"s_mul_i32 s19, s16, {L_RING + 3*32768 - L_TAB}")
    A(f"s_add_u32 s19, s19, {L_TAB}")
    A("s_bfe_u32 s22, s15, 0x10001")
def k_head(A):
    A(f"v_lshlrev_b32 v{DT}, 16, v10")
    A(f"v_mul_f32 v{DT}, {hex(LOG2E)}, v{DT}")
    A(f"v_exp_f32 v{DT}, v{DT}")
    A(f"v_lshlrev_b32 v{AR}, 16, v4")
    A(f"v_and_b32 v{AR+1}, 0xffff0000, v4")
    A(f"v_cvt_pk_bf16_f32 v{DT}, v{DT}, v{DT}")
    A(f"v_lshlrev_b32 v{AI}, 16, v5")
    A(f"v_and_b32 v{AI+1}, 0xffff0000, v5")
    A(f"v_and_b32 v{DT}, 0xffff0000, v{DT}")
    for r in range(AR, AR + 4): A(f"v_mul_f32 v{r}, v{DT}, v{r}")
def k_gens(A, lst):
    n = 0
    for (k1, k2), E in lst:
        for m in range(2):
            A(f"v_mul_f32 v{48+n}, {k1}, v{AR+m}")
            A(f"v_mul_f32 v{56+n}, {k2}, v{AI+m}")
            n += 1
    for i in range(n):
        A(f"v_exp_f32 v{48+i}, v{48+i}")
        A(f"v_fract_f32 v{56+i}, v{56+i}")
    n = 0
    for k, E in lst:
        for m in range(2):
            A(f"v_cos_f32 v{E+2*m}, v{56+n}")
            A(f"v_sin_f32 v{E+2*m+1}, v{56+n}")
            n += 1
    n = 0
    for k, E in lst:
        for m in range(2):
            A(f"v_mul_f32 v{E+2*m}, v{48+n}, v{E+2*m}")
            A(f"v_mul_f32 v{E+2*m+1}, v{48+n}, v{E+2*m+1}")
            n += 1
PUTN = [0]
def k_put(A, X, off, neg):
    c = 44 + 2 * (PUTN[0] & 1); PUTN[0] += 1
    for m in range(2):
        A(f"v_cvt_pk_bf16_f32 v{c+m}, v{X+2*m}, {'-' if neg else ''}v{X+2*m+1}")
    A(f"ds_write_b64 v13, {vr(c,2)} offset:{off}")
def k_mul(A, lst):
    cmul_pk(A, [(R + 2 * m, X + 2 * m, E + 2 * m, 48 + 4 * i + 2 * m) for i, (R, X, E) in enumerate(lst) for m in range(2)])

def kgen_y(A):
    k_base(A)
    A(f"s_mul_i32 s30, s22, {KE(128)[0]}")
    A(f"s_mul_i32 s31, s22, {KE(128)[1]}")
    A(f"s_mul_i32 s29, s22, {16*ROW2}")
    A("s_add_u32 s29, s29, s19")
    A("v_lshl_add_u32 v13, v1, 3, s29")
    A("s_mov_b32 s21, 3")
    A("s_waitcnt vmcnt(0)")
    tick(A, "params")
    k_head(A)
    E8 = 20; Y = 24
    k_gens(A, [(KE(8), E8), (("s30", "s31"), Y)])
    A(".p2align 3")
    A("F_ky:")
    A("s_sub_u32 s21, s21, 1")
    A("s_nop 0")
    for j in range(4):
        k_put(A, Y, j * ROW2, False)
        k_mul(A, [(Y, Y, E8)])
    A(f"v_add_u32 v13, {4*ROW2}, v13")
    A("s_cbranch_scc0 F_ky")
    A("s_waitcnt lgkmcnt(0)")
    tick(A, "tables")
    bar(A)

def kgen(A):
    P = 4
    k_base(A)
    A(f"s_add_u32 s20, s19, {32*ROW2}")
    A("v_and_b32 v16, 31, v1")
    A("v_lshrrev_b32 v17, 5, v1")
    A("v_lshlrev_b32 v17, 4, v17")
    A(f"v_mul_u32_u24 v2, {ROW2}, v16")
    A("v_add3_u32 v2, v2, v17, s19")
    A("v_bfe_u32 v18, v1, 2, 1")
    A("v_bfe_u32 v19, v1, 4, 1")
    A("v_lshl_add_u32 v18, v19, 1, v18")
    A("v_and_b32 v19, 3, v1")
    A("v_bfe_u32 v20, v1, 3, 1")
    A("v_lshl_add_u32 v19, v20, 2, v19")
    A("s_mov_b32 s35, 0x11100000")
    A("s_mov_b32 s36, 0x1a181614")
    A("s_cmp_eq_u32 s22, 0")
    A("s_cselect_b32 s32, 0x22111000, s35")
    A("s_cselect_b32 s33, 0xd7ccc6bb, s35")
    A("s_cselect_b32 s34, 0x54392108, s35")
    A("s_cselect_b32 s35, 0x110e0000, s36")
    A("v_mov_b32 v20, s32")
    A("v_mov_b32 v21, s33")
    A("v_mov_b32 v22, s34")
    A("v_cmp_eq_u32 vcc, 1, v18")
    A("v_lshlrev_b32 v23, 2, v19")
    A("v_lshlrev_b32 v24, 3, v18")
    A("v_cndmask_b32 v20, v20, v21, vcc")
    A("v_cmp_eq_u32 vcc, 0, v18")
    A("v_bfe_u32 v24, s35, v24, 8")
    A("s_lshl_b32 s31, s22, 23")
    A("v_cndmask_b32 v20, v20, v22, vcc")
    A("v_bfe_u32 v20, v20, v23, 4")
    A("v_add_u32 v20, v20, v24")
    A(f"v_mul_u32_u24 v12, {ROW2}, v20")
    A("v_add3_u32 v12, v12, v17, s20")
    A("s_mul_i32 s31, s31, 9")
    A(f"s_add_u32 s30, s31, {KE(1)[0]}")
    A(f"s_add_u32 s31, s31, {KE(1)[1]}")
    A(f"s_mul_i32 s29, s22, {6*ROW2}")
    A("s_add_u32 s29, s29, s20")
    A("v_lshl_add_u32 v13, v1, 3, s29")
    A("s_setprio 1")
    A("s_waitcnt vmcnt(0)")
    tick(A, "params")
    k_head(A)
    EV = 20; E4 = 24; E256 = 28; C0 = 32; C1 = 36; C2 = 40; B_ = 64; C_ = 68; X1 = 72; X2 = 76
    for k, dst in ((2, B_), (3, B_ + 1), (4, C_), (5, C_ + 1)):
        A(f"v_lshlrev_b32 v{dst}, 16, v{P+k}")
        A(f"v_and_b32 v{dst+2}, 0xffff0000, v{P+k}")
    for r in range(B_, B_ + 4): A(f"v_mul_f32 v{r}, v{DT}, v{r}")
    k_gens(A, [(("s30", "s31"), EV), (KE(4), E4), (KE(256), E256)])
    put = lambda X, row: k_put(A, X, row * ROW2, True)
    A(".p2align 3")
    k_mul(A, [(C0, C_, B_)])
    A("s_cmp_eq_u32 s22, 0")
    A("s_cbranch_scc1 F_kx0")
    k_mul(A, [(C0, C0, EV)])
    A("F_kx0:")
    put(C0, 8)
    k_mul(A, [(C1, C0, E4)])
    put(C1, 9)
    k_mul(A, [(C2, C1, E4)])
    put(C2, 10)
    A("s_cbranch_scc0 F_kx3")
    A("s_nop 0")
    k_mul(A, [(X1, C0, EV), (X2, C1, EV)])
    put(X1, 0); put(X2, 3)
    k_mul(A, [(X1, X1, EV), (X2, X2, EV)])
    put(X1, 1); put(X2, 4)
    k_mul(A, [(B_, X1, E256), (C_, X2, E256)])
    put(B_, 6); put(C_, 7)
    k_mul(A, [(X1, X1, EV), (X2, X2, EV)])
    put(X1, 2); put(X2, 5)
    A("F_kx3:")
    k_mul(A, [(C0, C0, E256), (C1, C1, E256), (C2, C2, E256)])
    put(C0, 11); put(C1, 12); put(C2, 13)
    A("s_cbranch_scc1 F_kt")
    A("s_mov_b32 s21, 3")
    A("F_kx2:")
    A("s_sub_u32 s21, s21, 1")
    A("s_nop 0")
    k_mul(A, [(C0, C0, E256), (C2, C2, E256)])
    put(C0, 14); put(C2, 15)
    A(f"v_add_u32 v13, {2*ROW2}, v13")
    A("s_cbranch_scc0 F_kx2")
    A("F_kt:")
    A("s_setprio 0")
    A("s_waitcnt lgkmcnt(0)")
    tick(A, "tables")
    bar(A)
    AC = 112
    F = 16
    NS = 12
    def rd(ks):
        b = F + 8 * (ks % NS)
        A(f"ds_read_b128 {vr(b,4)}, v12 offset:{ks*32}")
        A(f"ds_read_b128 {vr(b+4,4)}, v2 offset:{ks*32}")
    kb = int(OPT.get("kb", 8))
    for ks in range(6): rd(ks)
    for ks in range(16):
        if ks < 5:
            rd(6 + 2 * ks); rd(7 + 2 * ks)
            A("s_waitcnt lgkmcnt(14)")
        if ks == 5: A("s_waitcnt lgkmcnt(0)")
        if ks == kb: bar(A)
        A(mfma32(AC, F + 8 * (ks % NS), F + 8 * (ks % NS) + 4, "0" if ks == 0 else None))
    A("s_nop 0")
    A("s_lshl_b32 s21, s22, 6")
    A("v_cmp_eq_u32 vcc, s21, v1")
    A("v_lshlrev_b32 v11, 16, v11")
    A("s_mul_i32 s30, s22, 0xaaaaaaaa")
    A("v_cndmask_b32 v11, 0, v11, vcc")
    A("s_mov_b32 s31, s30")
    A("s_mul_i32 s23, s16, 4608")
    A("s_lshl_b32 s29, s22, 11")
    A("s_add_u32 s23, s23, s29")
    A(f"s_add_u32 s23, s23, {L_KXA}")
    A("v_lshl_add_u32 v24, v1, 4, s23")
    A(f"v_add_f32 v{AC}, v{AC}, v11")
    A(f"v_cndmask_b32 v{AC+4}, v{AC+4}, v{AC+5}, s[30:31]")
    A(f"v_cndmask_b32 v{AC+12}, v{AC+12}, v{AC+13}, s[30:31]")
    for p in range(8): A(f"v_cvt_pk_bf16_f32 v{16+p}, v{AC+2*p}, v{AC+2*p+1}")
    A(f"s_mul_i32 s21, s16, {TABW}")
    A(f"s_add_u32 s21, s21, {L_TAB}")
    A("v_lshrrev_b32 v25, 5, v1")
    A("v_and_b32 v25, s16, v25")
    A("v_lshlrev_b32 v25, 12, v25")
    A("v_lshl_add_u32 v25, v1, 4, v25")
    A("v_add_u32 v25, s21, v25")
    A("v_lshrrev_b32 v26, 2, v1")
    A("v_lshrrev_b32 v27, 4, v1")
    A("v_xor_b32 v26, v26, v27")
    A("v_and_b32 v26, 1, v26")
    A("v_lshlrev_b32 v26, 4, v26")
    A("v_and_b32 v27, 3, v1")
    A("v_lshl_add_u32 v26, v27, 5, v26")
    A("v_lshrrev_b32 v27, 3, v1")
    A("v_lshl_add_u32 v26, v27, 7, v26")
    A("v_mov_b32 v8, 0")
    A("v_mov_b32 v9, 1")
    A("v_mov_b32 v27, 0")
    A("s_lshl_b32 s20, s2, 7")
    A(f"s_add_u32 s20, s20, {hex(F_FL)}")
    A("s_and_b32 s21, s15, 3")
    A("s_lshl_b32 s21, s21, 11")
    A("s_lshl_b32 s29, s2, 13")
    A("s_add_u32 s29, s29, s21")
    A(f"s_add_u32 s29, s29, {hex(F_UT)}")
    A(f"s_add_u32 m0, s21, {L_U}")
    bar(A)
    for t in conv_setup(A): A(t)
    bar(A)
    attn_setup(A)
    A("s_mov_b64 exec, 1")
    A("buffer_atomic_or v27, v8, s[24:27], s20 offen sc0 sc1")
    A("s_mov_b64 exec, -1")
    bar(A)
    A("s_waitcnt vmcnt(0)")
    A("v_readfirstlane_b32 s21, v27")
    A("s_nop 0")
    A("s_cmp_eq_u32 s21, -1")
    A("s_cbranch_scc1 F_ku")
    mask_wait(A, 27, 8, 20, 21, 33, "-1", 34, sleep=0)
    A("F_ku:")
    A("buffer_load_dwordx4 v26, s[24:27], s29 offen sc1 lds")
    A("buffer_load_dwordx4 v26, s[24:27], s29 offen offset:1024 sc1 lds")
    A("s_waitcnt vmcnt(0)")
    A(f"ds_write_b128 v25, {vr(CAC,4)}")
    A("ds_write_b128 v24, v[16:19]")
    A("ds_write_b128 v24, v[20:23] offset:1024")
    lds_add1(A, 8, 9, C_CIN)
    tick(A, "kg_end")

CAC = 64
def conv_setup(A):
    return [
        "s_and_b32 s16, s15, 3",
        "s_lshr_b32 s17, s15, 2",
        "v_bfe_u32 v7, v1, 2, 3",
        "v_lshrrev_b32 v10, 5, v1",
        "v_add_u32 v7, v7, v10",
        "v_add_u32 v4, 3, v7",
        "v_bfe_u32 v4, v4, 1, 1",
        "v_xor_b32 v4, s17, v4",
        "v_lshlrev_b32 v4, 6, v4",
        "v_lshl_add_u32 v4, v7, 7, v4",
        "v_and_b32 v7, 3, v1",
        "v_lshl_add_u32 v4, v7, 4, v4",
        "s_lshl_b32 s35, s16, 10",
        f"s_add_u32 s36, s35, {L_U - 128 - 1280}",
        "v_add_u32 v5, s36, v4",
        f"s_sub_u32 s36, {L_U - 128 - 1280 + 7*1024}, s35",
        "v_add_u32 v4, s36, v4",
        "v_xor_b32 v13, 64, v4",
        "v_xor_b32 v14, 64, v5",
        "v_and_b32 v6, 16, v1",
        "v_lshlrev_b32 v6, 1, v6",
        "v_lshl_add_u32 v6, v7, 3, v6",
        "v_bfe_u32 v7, v1, 2, 2",
        "v_lshl_add_u32 v7, v10, 3, v7",
        "v_lshlrev_b32 v7, 3, v7",
        "v_sub_u32 v6, v6, v7",
        "s_mul_i32 s36, s17, 4608",
        f"s_add_u32 s36, s36, {L_KXA + 32}",
        "v_add_u32 v6, s36, v6",
    ] + [f"v_mov_b32 v{r}, 0" for r in range(CAC, CAC + 32)]

def conv(A):
    AC = CAC
    A("s_add_u32 s30, s16, 1")
    lds_wait(A, 8, C_CIN, 4, 10, 33, 34, sleep=1)
    A("s_setprio 2")
    tick(A, "conv_go")
    SB_ = lambda k: 16 + 12 * (k & 3)
    def rd(nn, both):
        b = SB_(nn)
        A(f"ds_read_b64_tr_b16 {vr(b,2)}, v6 offset:{nn*128 + 32}")
        A(f"ds_read_b64_tr_b16 {vr(b+2,2)}, v6 offset:{nn*128}")
        A(f"ds_read_b128 {vr(b+4,4)}, v{13 if nn & 1 else 4} offset:{(5-nn)*256}")
        if both: A(f"ds_read_b128 {vr(b+8,4)}, v{14 if nn & 1 else 5} offset:{(5-nn)*256}")
    def mm(nn, both):
        b = SB_(nn)
        A(mfma32(AC, b + 4, b))
        if both: A(mfma32(AC + 16, b + 8, b))
    rd(0, True); rd(1, True)
    A("F_c1:")
    A("s_sub_u32 s30, s30, 1")
    A("s_cmp_lg_u32 s30, 0")
    for nn in range(4):
        rd(nn + 2, True)
        A("s_waitcnt lgkmcnt(8)")
        mm(nn, True)
    A("v_add_u32 v6, 512, v6")
    for r in (4, 5, 13, 14): A(f"v_subrev_u32 v{r}, 1024, v{r}")
    A("s_cbranch_scc1 F_c1")
    A("s_lshl_b32 s30, s16, 1")
    A("s_sub_u32 s30, 7, s30")
    A("F_c2:")
    A("s_sub_u32 s30, s30, 1")
    A("s_cmp_lg_u32 s30, 0")
    for nn in range(4):
        rd(nn + 2, False)
        A("s_waitcnt lgkmcnt(6)")
        mm(nn, False)
    A("v_add_u32 v6, 512, v6")
    for r in (4, 13): A(f"v_subrev_u32 v{r}, 1024, v{r}")
    A("s_cbranch_scc1 F_c2")
    A("s_nop 6")
    A("s_waitcnt lgkmcnt(0)")
    tick(A, "conv_mm_end")
    T = 16
    def lvl(dst, src, add):
        for g in range(1, 4):
            for k in (1, 0):
                A(f"v_add_f32_dpp v{dst(k,g)}, v{src(k,g-1)}, v{add(k,g)} wave_ror:1 row_mask:0x1 bank_mask:0x1")
        for k in (1, 0):
            A(f"v_add_f32_dpp v{dst(k,0)}, v{src(k,0)}, v{add(k,0)} wave_shr:1 row_mask:0xf bank_mask:0xf bound_ctrl:0")
        for g in range(1, 4):
            for k in (1, 0):
                A(f"v_add_f32_dpp v{dst(k,g)}, v{src(k,g)}, v{add(k,g)} wave_shr:1 row_mask:0xf bank_mask:0xf")
    Z = lambda rho: (lambda k, g: AC + 16 * k + 4 * g + rho)
    TT = lambda k, g: T + 4 * k + g
    lvl(TT, Z(3), Z(2))
    lvl(Z(2), TT, Z(1))
    lvl(Z(1), Z(2), Z(0))
    for k in range(2):
        A(f"v_mov_b32 v{YK+4+4*k}, v{Z(2)(k,3)}")
        A(f"v_mov_b32 v{YK+5+4*k}, v{TT(k,3)}")
        A(f"v_mov_b32 v{YK+6+4*k}, v{Z(3)(k,3)}")
    for k in range(2):
        A(f"v_cvt_pk_bf16_f32 v{YK+2*k}, v{Z(1)(k,0)}, v{Z(1)(k,1)}")
        A(f"v_cvt_pk_bf16_f32 v{YK+1+2*k}, v{Z(1)(k,2)}, v{Z(1)(k,3)}")
    tick(A, "conv_st")

ACC = 80
SET = [16, 44]
GX, GWA, GST = 72, 74, 75
def gemm_setup(A):
    t = 16
    xaddr(A, GX, t)
    A(f"v_lshl_add_u32 v{t+10}, v{t+3}, 3, v{t+7}")
    A(f"v_lshlrev_b32 v{t+10}, 7, v{t+10}")
    A(f"v_lshrrev_b32 v{t+11}, 1, v{t+7}")
    A(f"v_and_b32 v{t+12}, 1, v{t+3}")
    A(f"v_lshl_or_b32 v{t+11}, v{t+12}, 1, v{t+11}")
    A(f"v_xor_b32 v{t+11}, s15, v{t+11}")
    A(f"v_lshl_add_u32 v{t+10}, v{t+11}, 5, v{t+10}")
    A(f"v_lshl_add_u32 v{t+10}, v{t+8}, 3, v{t+10}")
    A(f"v_add_u32 v{GWA}, {L_RING + 8192}, v{t+10}")
    A(f"v_lshl_add_u32 v{t+9}, v{t+12}, 2, v{t+9}")
    A(f"v_and_b32 v{t+10}, 32, v1")
    A(f"v_add_lshl_u32 v{GST}, v{t+9}, v{t+10}, 4")
    for r in range(ACC, ACC + 48): A(f"v_mov_b32 v{r}, 0")
    A("s_lshl2_add_u32 s33, s13, s15")
    A("s_lshl_b32 s40, s33, 10")
    A("s_lshl_b32 s33, s33, 16")
    A("s_lshl_b32 s32, s12, 11")
    A("s_add_u32 s33, s33, s32")
    A("s_lshl_b32 s32, s33, 1")
    A(f"s_add_u32 s33, s33, {hex(F_Q)}")
    A(f"s_add_u32 s32, s32, {hex(F_KV)}")
    A(f"s_mov_b32 s38, {hex(QSCALE)}")
    A(f"s_mov_b32 s39, {hex(QSCALE)}")
    A(f"s_add_u32 s40, s40, {hex(F_F1)}")
    A("s_and_b32 s41, s12, 3")
    A("s_lshr_b32 s42, s12, 2")
    A("s_lshl3_add_u32 s41, s41, s42")
    A("s_mov_b32 s36, 4")

def gemm(A):
    gemm_setup(A)
    kgen_y(A)
    A("s_setprio 2")
    A("v_lshlrev_b32 v3, 4, v1")
    A("v_mov_b32 v8, 0")
    A("v_mov_b32 v9, 1")
    MORD = (1, 2, 0)
    def step(ks, st, par, mm=True, extra=None, late=()):
        b = SET[st]; c = SET[st ^ 1]; o = par * 32768
        rds = []
        for mat in MORD:
            for e in range(2):
                rds.append(f"ds_read_b64_tr_b16 {vr(b+16+4*mat+2*e,2)}, v{GWA} offset:{o + mat*8192 + ks*4096 + e*512}")
        for mt in range(4):
            rds.insert(4 + mt, f"ds_read_b128 {vr(b+4*mt,4)}, v{GX+ks} offset:{o + (mt&1)*512 + (mt>>1)*4096}")
        if extra: rds.append(extra)
        per = int(OPT.get("rpm", 2))
        late = list(late)
        n = 0
        for mat in MORD:
            for mt in range(4):
                d = ACC + 16 * mat + 4 * mt
                x = c + 4 * mt; w = c + 16 + 4 * mat
                for t in rds[per*n:per*n+per]: A(t)
                if per * n >= len(rds) and late:
                    for t in late.pop(0): A(t)
                n += 1
                if mm: A(mfma16(d, x, w) if mat == 2 else mfma16(d, w, x))
        for g in late:
            for t in g: A(t)
    A("v_mov_b32 v2, 0")
    mark_wait(A, 2, L_MK, 4, 34, 35, sleep=1)
    tick(A, "c0")
    step(0, 0, 0, mm=False, extra=f"ds_read_b128 v[4:7], v2 offset:{L_MK + 16}")
    A("s_branch F_gl1")
    for par in range(2):
        A(f"F_gw{par}:")
        mark_wait(A, 2, L_MK + 16 * par, 4, 34, 35)
        A(f"s_branch F_gc{par}")
    A(".p2align 3")
    A("F_gl:")
    for par in range(2):
        A("s_cmp_eq_u32 s37, 0")
        A("s_waitcnt lgkmcnt(0)")
        if par == 1: bar(A)
        else: A("s_nop 0")
        A(f"s_cbranch_scc1 F_gw{par}")
        A(f"F_gc{par}:")
        step(0, 0, par, extra=f"ds_read_b128 v[4:7], v2 offset:{L_MK + 16 * (par + 1)}")
        if par == 0: A("F_gl1:")
        A("s_waitcnt lgkmcnt(0)")
        A("s_sub_u32 s36, s36, 1" if par == 0 else "s_cmp_lg_u32 s36, 0")
        late = [["v_min3_u32 v4, v4, v5, v6"], ["v_min_u32 v4, v4, v7", "s_nop 0"], ["v_readfirstlane_b32 s37, v4", "s_nop 0"]]
        if par == 1:
            late += [[f"v_xor_b32 v{r}, 0x10000, v{r}"] for r in (GX, GX + 1, GWA)] + [["v_add_u32 v2, 32, v2", "s_nop 0"]]
        step(1, 1, par, late=late)
    A("s_cbranch_scc1 F_gl")
    A("s_waitcnt lgkmcnt(0)")
    c = SET[1]
    for mat in MORD:
        for mt in range(4):
            d = ACC + 16 * mat + 4 * mt
            x = c + 4 * mt; w = c + 16 + 4 * mat
            A(mfma16(d, x, w) if mat == 2 else mfma16(d, w, x))
    lds_add1(A, 8, 9, C_FR)
    tick(A, "g_mm_end")
    pad(A, "gemmend")
    PK = 16
    def pack(mat, dst):
        for mt in range(4):
            d = ACC + 16 * mat + 4 * mt
            A(f"v_cvt_pk_bf16_f32 v{dst+2*mt}, v{d}, v{d+1}")
            A(f"v_cvt_pk_bf16_f32 v{dst+2*mt+1}, v{d+2}, v{d+3}")
    def swaps(dst):
        for gp in range(2):
            A(f"v_permlane16_swap_b32 v{dst+4*gp}, v{dst+4*gp+2}")
            A(f"v_permlane16_swap_b32 v{dst+4*gp+1}, v{dst+4*gp+3}")
    pack(1, PK)
    pack(2, PK + 8)
    swaps(PK)
    for gp in range(2):
        A(f"buffer_store_dwordx4 {vr(PK+8+4*gp,4)}, v3, s[24:27], s32 offen offset:{gp*2048+1024} sc1")
        A(f"buffer_store_dwordx4 {vr(PK+4*gp,4)}, v{GST}, s[24:27], s32 offen offset:{gp*2048} sc1")
    for r in range(ACC, ACC + 16, 2):
        A(f"v_pk_mul_f32 {vr(r,2)}, {vr(r,2)}, s[38:39]")
    pack(0, PK + 16)
    A("s_nop 0")
    swaps(PK + 16)
    for gp in range(2):
        A(f"buffer_store_dwordx4 {vr(PK+16+4*gp,4)}, v{GST}, s[24:27], s33 offen offset:{gp*1024} sc1")
    tick(A, "g_st")
    for t in conv_setup(A): A(t)
    attn_setup(A)
    A("v_lshlrev_b32 v7, 7, v1")
    A("v_lshlrev_b32 v10, s41, v9")
    A("s_waitcnt vmcnt(0)")
    mask_set(A, 10, 7, 40, 8)
    tick(A, "signaled")

SA, SB, OA, OB, QA, QB = 16, 32, 96, 112, 64, 68
FS = [72, 84]
VIDX, VK, VV0, VV1 = 2, 0, 11, 12
YK, MT = 48, 60
def pv(O, V, S):
    return f"v_smfmac_f32_32x32x32_bf16 {vr(O,16)}, {vr(V,4)}, {vr(S,8)}, v{VIDX}"

def attn_setup(A, mid=None):
    A("v_lshlrev_b32 v3, 4, v1")
    A("s_and_b32 s88, s11, 3")
    A("s_lshl2_add_u32 s88, s10, s88")
    A("s_lshr_b32 s89, s11, 2")
    A("s_and_b32 s90, s15, 3")
    A("s_lshr_b32 s91, s15, 2")
    A("s_lshl2_add_u32 s92, s89, s90")
    A("s_lshl_b32 s92, s92, 11")
    A("s_lshl_b32 s93, s88, 16")
    A("s_add_u32 s92, s92, s93")
    A(f"s_add_u32 s92, s92, {hex(F_Q)}")
    A(f"s_mul_i32 s93, s91, {32*KVS}")
    A(f"s_add_u32 s93, s93, {L_KV}")
    A("v_and_b32 v7, 31, v1")
    A("v_lshrrev_b32 v10, 5, v1")
    A(f"v_add_u32 v{VK}, s93, v3")
    A("v_lshlrev_b32 v10, 8, v10")
    A("v_lshl_add_u32 v10, v7, 4, v10")
    A("v_add_u32 v10, 1024, v10")
    A(f"v_and_b32 v{VV0}, 27, v7")
    A(f"v_cmp_eq_u32 vcc, 16, v{VV0}")
    A(f"v_mov_b32 v{VV1}, 2064")
    A(f"v_mov_b32 v{VV0}, 2048")
    A(f"v_cndmask_b32 v{VV1}, v{VV1}, v{VV0}, vcc")
    A("v_cmp_gt_u32 vcc, 16, v7")
    A("v_add_u32 v7, 512, v10")
    A(f"v_mov_b32 v{VIDX}, 0xdddddddd")
    A(f"v_cndmask_b32 v{VV0}, v{VV1}, v10, vcc")
    A(f"v_cndmask_b32 v{VV1}, v{VV1}, v7, vcc")
    A(f"v_add_u32 v{VV0}, s93, v{VV0}")
    A(f"v_add_u32 v{VV1}, s93, v{VV1}")
    if mid: mid()
    for r in range(OA, OA + 32): A(f"v_mov_b32 v{r}, 0")

def attention(A):
    A("s_lshl_b32 s36, s90, 11")
    A("v_add_u32 v10, s36, v3")
    A("s_lshl_b32 s36, s91, 4")
    A("v_mov_b32 v4, s36")
    A("s_setprio 1")
    mark_wait(A, 4, L_S1, MT, 36, 37)
    A(f"ds_read_b128 {vr(QA,4)}, v10 offset:{L_Q}")
    A(f"ds_read_b128 {vr(FS[0],4)}, v{VK}")
    A(f"ds_read_b128 {vr(QB,4)}, v10 offset:{L_Q + 1024}")
    A(f"ds_read_b128 {vr(FS[0]+4,4)}, v{VV0}")
    A("s_mov_b32 s36, 0")
    A("s_mov_b32 s37, 0")
    A("s_waitcnt lgkmcnt(2)")
    tick(A, "attn_go")
    pad(A, "attn")
    A(mfma32(SA, FS[0], QA, "0"))
    A("s_cmp_lg_u32 s36, 0")
    A("s_nop 7")
    A("s_nop 1")
    A("s_waitcnt lgkmcnt(0)")
    A(f"v_exp_f32 v{SA}, v{SA}")
    A(f"v_exp_f32 v{SA+1}, v{SA+1}")
    A("s_branch F_al1")
    def E(S, a, b):
        for i in range(a, b): A(f"v_exp_f32 v{S+i}, v{S+i}")
    A(".p2align 3")
    A("F_al:")
    A("s_sub_u32 s36, s36, 1")
    A("s_cmp_lg_u32 s36, 0")
    U = 4
    for t in range(U):
        cur, oth = FS[t & 1], FS[(t & 1) ^ 1]
        E(SA, 0, 2)
        A(pv(OB, oth + 8, SB + 8))
        if t == 0: A("F_al1:")
        A(f"ds_read_b128 {vr(cur+8,4)}, v{VV1} offset:{t*KVS}")
        A(f"ds_read_b128 {vr(oth,4)}, v{VK} offset:{(t+1)*KVS}")
        E(SA, 2, 6)
        A(mfma32(SB, cur, QB, "0"))
        A(f"ds_read_b128 {vr(oth+4,4)}, v{VV0} offset:{(t+1)*KVS}")
        if t == U - 1:
            for r in (VK, VV0, VV1): A(f"v_add_u32 v{r}, {U*KVS}, v{r}")
        E(SA, 6, 12)
        A(pv(OA, cur + 4, SA))
        E(SA, 12, 16)
        A("s_waitcnt lgkmcnt(0)")
        E(SB, 0, 1)
        A(pv(OA, cur + 8, SA + 8))
        E(SB, 1, 5)
        A(mfma32(SA, oth, QA, "0"))
        E(SB, 5, 11)
        A(pv(OB, cur + 4, SB))
        A(f"v_exp_f32_e64 v{SB+11}, v{SB+11}")
        E(SB, 12, 16)
    A("s_cbranch_scc1 F_al")
    A("s_add_u32 s37, s37, 1")
    A("s_cmp_eq_u32 s37, 1")
    A("s_cbranch_scc0 F_ev2")
    tick(A, "it1")
    mark_wait(A, 8, L_S2, MT, 38, 39, sleep=1)
    A("s_mov_b32 s36, 1")
    A("v_lshlrev_b32 v7, 3, v1")
    A("s_lshl1_add_u32 s20, s2, s17")
    A("s_lshl_b32 s18, s20, 12")
    A(f"s_add_u32 s18, s18, {hex(F_YA)}")
    A("s_lshl_b32 s22, s16, 9")
    A("s_add_u32 s19, s18, s22")
    A("s_add_u32 s18, s18, 3584")
    A("s_sub_u32 s18, s18, s22")
    A("s_lshl_b32 s20, s20, 7")
    A(f"s_add_u32 s20, s20, {hex(F_YC)}")
    A("s_lshl_b32 s22, s16, 4")
    A("s_add_u32 s21, s20, s22")
    A("s_add_u32 s20, s20, 112")
    A("s_sub_u32 s20, s20, s22")
    for k in range(2):
        A(f"buffer_store_dwordx2 {vr(YK+2*k,2)}, v7, s[24:27], s{18+k} offen sc1")
    A("s_mov_b32 exec_lo, 0")
    A("s_mov_b32 exec_hi, 0x80000000")
    for k in range(2):
        A(f"buffer_store_dwordx4 {vr(YK+4+4*k,4)}, v8, s[24:27], s{20+k} offen sc1")
    A("s_mov_b64 exec, -1")
    A("s_branch F_al")
    A("F_ev2:")
    A("s_cmp_eq_u32 s37, 2")
    A("s_cbranch_scc0 F_ev2b")
    A("s_waitcnt vmcnt(0)")
    def setf2():
        A("s_lshr_b32 s40, s2, 5")
        A("s_lshl_b32 s40, s40, 7")
        A(f"s_add_u32 s40, s40, {hex(F_F2)}")
        A("v_lshlrev_b32 v7, 10, v1")
        A("v_lshlrev_b32 v6, s2, v9")
        mask_set(A, 6, 7, 40, 32)
    signal_last(A, 8, 9, 6, 38, C_YA2, 8, setf2)
    A("s_mov_b32 s36, 3")
    A("s_branch F_al")
    A("F_ev2b:")
    A("s_cmp_eq_u32 s37, 3")
    A("s_cbranch_scc0 F_ev3")
    mark_wait(A, 8, L_S3, MT, 38, 39, sleep=1)
    A("s_lshl_b32 s38, s90, 12")
    A(f"s_add_u32 s38, s38, {L_XCH}")
    A("v_add_u32 v10, s38, v3")
    A("s_lshl_b32 s38, s90, 9")
    A(f"s_add_u32 s38, s38, {L_LX}")
    A("v_lshl_add_u32 v5, v1, 2, s38")
    A("s_lshl_b32 s38, s90, 2")
    A("v_mov_b32 v13, s38")
    A("s_mov_b32 s36, 2")
    A("s_lshl2_add_u32 s40, s89, s90")
    A("s_lshl_b32 s40, s40, 10")
    A(f"s_add_u32 s40, s40, {hex(F_F3)}")
    A("s_mov_b32 s42, 0x17800000")
    A("s_mov_b32 s43, 0x50000000")
    A("s_branch F_al")
    A("F_ev3:")
    A("s_cmp_eq_u32 s37, 4")
    A("s_cbranch_scc0 F_aend")
    tick(A, "it7")
    A("s_setprio 0")
    A("s_mov_b32 s36, 1")
    A("s_cmp_eq_u32 s91, 0")
    A("s_cbranch_scc0 F_al")
    lds_add1(A, 8, 9, C_FREE)
    A("s_branch F_al")
    A("F_aend:")
    tick(A, "it8")
    A(pv(OB, FS[1] + 8, SB + 8))
    A("s_cmp_eq_u32 s91, 0")
    A("s_cbranch_scc0 F_x1")
    lds_wait(A, 8, C_FREE, 4, 6, 38, 39)
    A(f"ds_write_b128 v10, {vr(OA,4)}")
    A(f"ds_write_b128 v10, {vr(OA+4,4)} offset:1024")
    A("s_nop 1")
    A(f"ds_write_b128 v10, {vr(OB,4)} offset:2048")
    A(f"ds_write_b128 v10, {vr(OB+4,4)} offset:3072")
    A(f"ds_write2st64_b32 v5, v{OA+8}, v{OB+8} offset0:0 offset1:1")
    lds_add1(A, 13, 9, C_PAIR)
    A("s_waitcnt lgkmcnt(0)")
    dump(A)
    A("s_endpgm")
    A("F_x1:")
    lds_wait(A, 13, C_PAIR, 1, 6, 38, 39, sleep=0)
    A(f"ds_read2st64_b32 {vr(FS[0],2)}, v5 offset0:0 offset1:1")
    for q in range(4): A(f"ds_read_b128 {vr(SA+4*q,4)}, v10 offset:{q*1024}")
    A("s_waitcnt lgkmcnt(4)")
    A(f"v_add_f32 v{OA+8}, v{OA+8}, v{FS[0]}")
    A(f"v_add_f32 v{OB+8}, v{OB+8}, v{FS[0]+1}")
    A(f"v_rcp_f32 v6, v{OA+8}")
    A(f"v_rcp_f32 v14, v{OB+8}")
    A("s_waitcnt lgkmcnt(2)")
    for r in range(8): A(f"v_add_f32 v{OA+r}, v{OA+r}, v{SA+r}")
    A("s_waitcnt lgkmcnt(0)")
    for r in range(8): A(f"v_add_f32 v{OB+r}, v{OB+r}, v{SA+8+r}")
    for r in range(8): A(f"v_mul_f32 v{OA+r}, v{OA+r}, v6")
    for r in range(8): A(f"v_mul_f32 v{OB+r}, v{OB+r}, v14")
    for p in range(4): A(f"v_cvt_pk_bf16_f32 v{SB+p}, v{OA+2*p}, v{OA+2*p+1}")
    for p in range(4): A(f"v_cvt_pk_bf16_f32 v{SB+4+p}, v{OB+2*p}, v{OB+2*p+1}")
    A(f"buffer_store_dwordx4 {vr(SB,4)}, v3, s[24:27], s92 offen sc1")
    A(f"buffer_store_dwordx4 {vr(SB+4,4)}, v3, s[24:27], s92 offen offset:1024 sc1")
    tick(A, "o_st")
    if OPT.get("eb", "2") == "1": A("s_barrier")
    for r in range(8):
        A(f"v_fma_f32 v{OA+8}, v{OA+r}, 0, v{OA+8}")
        A(f"v_fma_f32 v{OB+8}, v{OB+r}, 0, v{OB+8}")
    A(f"v_subrev_u32 v7, s42, v{OA+8}")
    A(f"v_subrev_u32 v6, s42, v{OB+8}")
    A("v_max_u32 v7, v7, v6")
    A("v_cmp_gt_u32 vcc, s43, v7")
    A("s_nop 0")
    A("s_cmp_eq_u64 vcc, -1")
    A("s_cbranch_scc0 F_slow")
    A("F_pub:")
    pad(A, "ostore")
    A("v_lshlrev_b32 v7, 7, v1")
    A("v_lshlrev_b32 v6, s88, v9")
    A("s_waitcnt vmcnt(0)")
    mask_set(A, 6, 7, 40, 8)
    tick(A, "o_fl")
    if OPT.get("eb", "2") == "2": A("s_barrier")
    dump(A, nowait=True)
    A("s_endpgm")
    A("F_slow:")
    A("s_mov_b32 s37, 2")
    A("F_slow0:")
    A("s_lshl_b32 s35, s88, 17")
    A(f"s_add_u32 s35, s35, {hex(F_KV)}")
    A("v_mov_b32 v6, 0xff800000")
    A("s_mov_b32 s36, s35")
    A("s_mov_b32 s41, 64")
    A("F_slow1:")
    A(f"buffer_load_dwordx4 {vr(FS[0],4)}, v3, s[24:27], s36 offen sc1")
    A("s_add_u32 s36, s36, 2048")
    A("s_waitcnt vmcnt(0)")
    A(mfma32(SA, FS[0], QA, "0"))
    A("s_nop 7")
    A("s_nop 3")
    for r in range(0, 16, 2): A(f"v_max3_f32 v6, v6, v{SA+r}, v{SA+r+1}")
    A("s_sub_u32 s41, s41, 1")
    A("s_cmp_lg_u32 s41, 0")
    A("s_cbranch_scc1 F_slow1")
    A("v_mov_b32 v13, v6")
    A("s_nop 1")
    A("v_permlane32_swap_b32 v6, v13")
    A("s_nop 1")
    A("v_max_f32 v14, v6, v13")
    for r in range(16): A(f"v_mov_b32 v{OA+r}, 0")
    for r in range(4, 12): A(f"v_mov_b32 v{FS[0]+r}, 0x3f803f80")
    A("v_and_b32 v10, 15, v1")
    A("v_lshrrev_b32 v5, 5, v1")
    A("v_lshlrev_b32 v5, 8, v5")
    A("v_lshl_add_u32 v10, v10, 4, v5")
    A("s_mov_b32 s41, 64")
    A("F_slow2:")
    A(f"buffer_load_dwordx4 {vr(FS[0],4)}, v3, s[24:27], s35 offen sc1")
    A("s_mov_b32 exec_lo, 0xffff")
    A("s_mov_b32 exec_hi, 0xffff")
    A(f"buffer_load_dwordx4 {vr(FS[0]+4,4)}, v10, s[24:27], s35 offen offset:1024 sc1")
    A(f"buffer_load_dwordx4 {vr(FS[0]+8,4)}, v10, s[24:27], s35 offen offset:1536 sc1")
    A("s_mov_b64 exec, -1")
    A("s_add_u32 s35, s35, 2048")
    A("s_waitcnt vmcnt(0)")
    A(mfma32(SA, FS[0], QA, "0"))
    A("s_nop 7")
    A("s_nop 3")
    for r in range(16): A(f"v_sub_f32 v{SA+r}, v{SA+r}, v14")
    for r in range(16): A(f"v_exp_f32 v{SA+r}, v{SA+r}")
    A("s_nop 1")
    A(pv(OA, FS[0] + 4, SA))
    A(pv(OA, FS[0] + 8, SA + 8))
    A("s_sub_u32 s41, s41, 1")
    A("s_cmp_lg_u32 s41, 0")
    A("s_nop 7")
    A("s_nop 3")
    A("s_cbranch_scc1 F_slow2")
    A(f"v_rcp_f32 v6, v{OA+8}")
    for r in range(4): A(f"v_mov_b32 v{QA+r}, v{QB+r}")
    for r in range(8): A(f"v_mul_f32 v{OA+r}, v{OA+r}, v6")
    for p in range(4): A(f"v_cvt_pk_bf16_f32 v{SB+p}, v{OA+2*p}, v{OA+2*p+1}")
    A(f"buffer_store_dwordx4 {vr(SB,4)}, v3, s[24:27], s92 offen sc1")
    A("s_add_u32 s92, s92, 1024")
    A("s_sub_u32 s37, s37, 1")
    A("s_cmp_lg_u32 s37, 0")
    A("s_cbranch_scc1 F_slow0")
    A("s_branch F_pub")
```

```python
from common import *
import math, struct

def f32hex(x): return hex(struct.unpack("<I", struct.pack("<f", x))[0])
LOG2E = 0x3fb8aa3b
QSCALE = 0x3eb8aa3b

def reg(i): return (i << 21) + ((i + 1) << 12)
F_Q = reg(0)
F_KV = reg(1)
F_UT = reg(3)
F_YA = reg(4)
F_FL = reg(5)
NCLR = 4
F_F1 = F_FL + 4
F_F2 = F_FL + 8
F_F3 = F_FL + 12
F_YC = F_FL + (1088 << 10)
F_O = F_Q
FWS = 12 << 20
HOLES = [0, (1 << 21) + (1 << 12), (3 << 21) + (2 << 12), (4 << 21) + (4 << 12), (5 << 21) + (5 << 12)]

L_CNT = 0
C_QKV, C_KV1, C_KV2, C_CARRY, C_YA, C_FREE, C_O, C_RING, C_PAIR, C_F1, C_CIN, C_YA2 = 0, 4, 8, 12, 16, 20, 24, 28, 32, 48, 52, 56
C_FULL, C_FR, C_KX, C_ANN, C_UT, C_ISS, C_TAB, C_CAR2 = 64, 96, 60, 28, 672, 676, 680, 688
L_G = 128
L_S1, L_S2, L_S3, L_SU = 384, 416, 432, 464
L_MK = 576
C_WO = 448
C_GO = 452
L_TAB = 768
TABW = 9216
L_U = L_TAB + 1024
L_KXA = L_TAB + 9216 + 512
ROW = 272
L_RING = 32768
L_Q = L_TAB + 2 * TABW
L_KV = L_Q + 8192
KVS = 2080
L_WO = 1024
L_XCH = 66560
L_LX = L_KV + 64 * KVS
L_O = 98304
F_LDS = 163840
SPIN = 200000
import os
OPT = dict(kv.split('=') for kv in os.environ.get('FOPT', '').split(',') if kv)
PM = OPT.get("pm", "sc1").replace("+", " ")
FM = OPT.get("fm", "sc1").replace("+", " ")
FSH = int(OPT.get("fsh", 7))
KVT = True
NPF = int(OPT.get('npf', 5 if not STAMPS[0] else 7))

class G:
    n = 0
def lab(p):
    G.n += 1
    return f"{p}{G.n}"

def lds_wait(A, addr_v, off, target, tmp_v, tmp_s, cnt_s, sleep=1, pre=False):
    l = lab("LW"); d = lab("LD")
    if pre:
        A(f"v_readfirstlane_b32 s{tmp_s}, v{tmp_v}")
        A(f"s_mov_b32 s{cnt_s}, 0")
        A(f"s_cmp_ge_u32 s{tmp_s}, {target}")
        A(f"s_cbranch_scc1 {d}")
    else:
        A(f"s_mov_b32 s{cnt_s}, 0")
    A(f"{l}:")
    A(f"ds_read_b32 v{tmp_v}, v{addr_v} offset:{off}")
    A("s_waitcnt lgkmcnt(0)")
    A(f"v_readfirstlane_b32 s{tmp_s}, v{tmp_v}")
    A(f"s_add_u32 s{cnt_s}, s{cnt_s}, 1")
    A(f"s_cmp_ge_u32 s{tmp_s}, {target}")
    A(f"s_cbranch_scc1 {d}")
    if sleep: A(f"s_sleep {sleep}")
    A(f"s_cmp_lt_u32 s{cnt_s}, {hex(SPIN * 8)}")
    A(f"s_cbranch_scc1 {l}")
    A(f"{d}:")

def mask_read(A, tmp_v, zero_v, addr_s, dst_s):
    A("s_mov_b64 exec, 1")
    A(f"v_mov_b32 v{tmp_v}, 0")
    A(f"buffer_atomic_or v{tmp_v}, v{zero_v}, s[24:27], s{addr_s} offen sc0 sc1")
    A("s_waitcnt vmcnt(0)")
    A(f"v_readfirstlane_b32 s{dst_s}, v{tmp_v}")
    A("s_mov_b64 exec, -1")

def mask_wait(A, tmp_v, zero_v, addr_s, dst_s, cnt_s, want, tmp_s, sleep=1):
    l = lab("KW"); d = lab("KD")
    A(f"s_mov_b32 s{cnt_s}, 0")
    A(f"{l}:")
    mask_read(A, tmp_v, zero_v, addr_s, dst_s)
    A(f"s_andn2_b32 s{tmp_s}, {want}, s{dst_s}")
    A(f"s_cbranch_scc0 {d}")
    if sleep: A(f"s_sleep {sleep}")
    A(f"s_add_u32 s{cnt_s}, s{cnt_s}, 1")
    A(f"s_cmp_lt_u32 s{cnt_s}, {hex(SPIN)}")
    A(f"s_cbranch_scc1 {l}")
    A(f"s_mov_b32 s{dst_s}, -1")
    A(f"{d}:")

def mask_wait_p(A, regs, zero_v, addr_s, dst_s, cnt_s, want, tmp_s, gap):
    l = lab("KW"); d = lab("KD"); D = len(regs)
    A(f"s_mov_b32 s{cnt_s}, 0")
    A("s_mov_b64 exec, 1")
    for r in regs[:-1]:
        A(f"v_mov_b32 v{r}, 0")
        A(f"buffer_atomic_or v{r}, v{zero_v}, s[24:27], s{addr_s} offen sc0 sc1")
        if isinstance(gap, list):
            A("s_mov_b64 exec, -1")
            gap.pop(0)()
            A("s_mov_b64 exec, 1")
        else: A(f"s_sleep {gap}")
    A(f"{l}:")
    for i in range(D):
        r = regs[(i - 1) % D]
        A(f"v_mov_b32 v{r}, 0")
        A(f"buffer_atomic_or v{r}, v{zero_v}, s[24:27], s{addr_s} offen sc0 sc1")
        A(f"s_waitcnt vmcnt({D-1})")
        A(f"v_readfirstlane_b32 s{dst_s}, v{regs[i]}")
        A("s_nop 0")
        A(f"s_andn2_b32 s{tmp_s}, {want}, s{dst_s}")
        A(f"s_cbranch_scc0 {d}")
    A(f"s_add_u32 s{cnt_s}, s{cnt_s}, 1")
    A(f"s_cmp_lt_u32 s{cnt_s}, {hex(SPIN)}")
    A(f"s_cbranch_scc1 {l}")
    A(f"s_mov_b32 s{dst_s}, -1")
    A(f"{d}:")
    A("s_mov_b64 exec, -1")

def mask_set(A, bit_v, off_v, addr_s, lanes):
    A(f"s_mov_b64 exec, {hex((1 << lanes) - 1)}" if lanes < 32 else "s_mov_b32 exec_hi, 0")
    A(f"buffer_atomic_or v{bit_v}, v{off_v}, s[24:27], s{addr_s} offen sc1")
    A("s_mov_b64 exec, -1")

def flag_wait(A, voff, soff, tmp_v, cnt_s, srd_="s[24:27]", sleep=1, lanes=0):
    l = lab("FW"); d = lab("FD")
    A(f"s_mov_b32 s{cnt_s}, 0")
    A(f"{l}:")
    A(f"buffer_load_dword v{tmp_v}, v{voff}, {srd_}, {soff} offen sc1")
    A("s_waitcnt vmcnt(0)")
    A(f"v_cmp_eq_u32 vcc, 1, v{tmp_v}")
    A(f"s_add_u32 s{cnt_s}, s{cnt_s}, 1")
    A("s_cmp_eq_u64 vcc, -1")
    A(f"s_cbranch_scc1 {d}")
    if sleep: A(f"s_sleep {sleep}")
    A(f"s_cmp_lt_u32 s{cnt_s}, {hex(SPIN)}")
    A(f"s_cbranch_scc1 {l}")
    A(f"{d}:")

def mark_wait(A, zero_v, off, tmp4, tmp_s, cnt_s, sleep=0, pre=False):
    l = lab("MW"); d = lab("MD")
    if pre:
        A(f"v_min3_u32 v{tmp4}, v{tmp4}, v{tmp4+1}, v{tmp4+2}")
        A(f"v_min_u32 v{tmp4}, v{tmp4}, v{tmp4+3}")
        A(f"s_mov_b32 s{cnt_s}, 0")
        A(f"v_readfirstlane_b32 s{tmp_s}, v{tmp4}")
        A("s_nop 0")
        A(f"s_cmp_lg_u32 s{tmp_s}, 0")
        A(f"s_cbranch_scc1 {d}")
    else:
        A(f"s_mov_b32 s{cnt_s}, 0")
    A(f"{l}:")
    A(f"ds_read_b128 {vr(tmp4,4)}, v{zero_v} offset:{off}")
    A("s_waitcnt lgkmcnt(0)")
    A(f"v_min3_u32 v{tmp4}, v{tmp4}, v{tmp4+1}, v{tmp4+2}")
    A(f"v_min_u32 v{tmp4}, v{tmp4}, v{tmp4+3}")
    A(f"s_add_u32 s{cnt_s}, s{cnt_s}, 1")
    A(f"v_readfirstlane_b32 s{tmp_s}, v{tmp4}")
    A("s_nop 0")
    A(f"s_cmp_lg_u32 s{tmp_s}, 0")
    A(f"s_cbranch_scc1 {d}")
    if sleep: A(f"s_sleep {sleep}")
    A(f"s_cmp_lt_u32 s{cnt_s}, {hex(SPIN * 8)}")
    A(f"s_cbranch_scc1 {l}")
    A(f"{d}:")

def mark(A, off, lw4_s, zero_v):
    A(f"s_add_u32 m0, s{lw4_s}, {off}")
    A("s_mov_b64 exec, 1")
    A(f"buffer_load_dword v{zero_v}, s[16:19], 0 offen sc1 lds")
    A("s_mov_b64 exec, -1")

def lds_add1(A, zero_v, one_v, off):
    A("s_mov_b64 exec, 1")
    A(f"ds_add_u32 v{zero_v}, v{one_v} offset:{off}")
    A("s_mov_b64 exec, -1")

def signal_last(A, zero_v, one_v, tmp_v, tmp_s, off, n, setter):
    sk = lab("SG")
    A("s_mov_b64 exec, 1")
    A(f"ds_add_rtn_u32 v{tmp_v}, v{zero_v}, v{one_v} offset:{off}")
    A("s_waitcnt lgkmcnt(0)")
    A(f"v_readfirstlane_b32 s{tmp_s}, v{tmp_v}")
    A("s_nop 0")
    A(f"s_cmp_eq_u32 s{tmp_s}, {n-1}")
    A("s_mov_b64 exec, -1")
    A(f"s_cbranch_scc0 {sk}")
    setter()
    A(f"{sk}:")

def mfma16(D, Aop, Bop):
    return f"v_mfma_f32_16x16x32_bf16 {vr(D,4)}, {vr(Aop,4)}, {vr(Bop,4)}, {vr(D,4)}"

def gen_fused(A, name):
    kernel_head(A, name)
    A("F_start:")
    pad_init(A)
    npf = int(OPT.get('npf', 6 if STAMPS[0] else 5))
    A("s_load_dwordx16 s[72:87], s[0:1], 0")
    A("s_load_dwordx16 s[40:55], s[0:1], 64")
    A("v_lshrrev_b32 v2, 6, v0")
    A("s_cmp_ge_u32 s2, 256")
    A("v_readfirstlane_b32 s15, v2")
    A("s_cbranch_scc1 F_done")
    A("v_and_b32 v1, 63, v0")
    A("s_sub_u32 s15, s15, 1")
    A("s_cbranch_scc0 F_role")
    A(f"s_cmp_lt_u32 s2, {8*npf}")
    A("s_cbranch_scc0 F_pf1")
    A("s_getpc_b64 s[30:31]")
    A("s_lshr_b32 s32, s2, 3")
    A("s_lshl_b32 s32, s32, 12")
    A("v_lshl_add_u32 v2, v1, 6, s32")
    A("global_load_dword v3, v2, s[30:31]")
    A("F_pf1:")
    A("v_lshlrev_b32 v2, 4, v1")
    for r in range(4, 8): A(f"v_mov_b32 v{r}, 0")
    A("s_mov_b32 exec_hi, 0xf")
    A("ds_write_b128 v2, v[4:7]")
    A("s_mov_b32 exec_hi, -1")
    A(f"v_lshlrev_b32 v2, {FSH}, v1")
    A(f"s_lshl_b32 s33, s2, {FSH+6}")
    A(f"s_add_u32 s33, s33, {hex(F_FL)}")
    A("v_add_u32 v2, s33, v2")
    A(f"s_cmp_lt_u32 s2, {NCLR}")
    A("s_waitcnt lgkmcnt(0)")
    A("s_cbranch_scc0 F_pf2")
    A("global_store_dwordx4 v2, v[4:7], s[54:55] sc1")
    A("s_lshl_b32 s33, s2, 2")
    A("v_mov_b32 v2, s33")
    A("v_mov_b32 v8, 1")
    A("s_mov_b64 exec, 1")
    A("s_waitcnt vmcnt(0)")
    A("global_store_dword v2, v8, s[52:53] sc1")
    A("F_pf2:")
    for k, h in enumerate(HOLES):
        A(f"s_mov_b32 s32, {hex(h)}")
        A(f"s_load_dword s{16+k}, s[54:55], s32")
    A("s_load_dword s21, s[46:47], 0")
    A("s_load_dword s22, s[50:51], 0")
    A("s_mov_b64 exec, -1")
    A("s_mov_b32 s15, 14")
    A("F_role:")
    A("s_and_b32 s10, s2, 7")
    A("s_lshr_b32 s11, s2, 3")
    A("s_lshr_b32 s12, s10, 1")
    A("s_lshl_b32 s12, s12, 3")
    A("s_and_b32 s3, s11, 7")
    A("s_add_u32 s12, s12, s3")
    A("s_and_b32 s6, s10, 1")
    A("s_lshr_b32 s7, s11, 3")
    A("s_lshl2_add_u32 s13, s6, s7" if OPT.get("hgmap", "0") == "0" else "s_lshl1_add_u32 s13, s7, s6")
    A("s_lshl1_add_u32 s14, s7, s6")
    A("s_add_u32 s14, s14, s3" if OPT.get("rot2") != "1" else "s_lshl1_add_u32 s14, s3, s14")
    A("s_and_b32 s14, s14, 7")
    savewave(A)
    A("s_cmp_lt_u32 s15, 8")
    A("s_cbranch_scc0 F_notkgen")
    A("s_and_b32 s16, s15, 1")
    A("s_lshl1_add_u32 s17, s2, s16")
    A("s_lshl_b32 s18, s17, 8")
    A("v_lshl_add_u32 v2, v1, 2, s18")
    A("s_lshl_b32 s18, s17, 1")
    A("v_mov_b32 v3, s18")
    A("s_waitcnt lgkmcnt(0)")
    A("global_load_ushort v10, v3, s[86:87]")
    for k in range(2):
        A(f"global_load_dword v{4+k}, v2, s[{74+2*k}:{75+2*k}]")
    A("s_cmp_lt_u32 s15, 4")
    A("s_cbranch_scc1 F_notloader")
    for k in range(2, 6):
        A(f"global_load_dword v{4+k}, v2, s[{74+2*k}:{75+2*k}]")
    A("global_load_ushort v11, v3, s[40:41]")
    A("s_branch F_notloader")
    A("F_notkgen:")
    A("s_bitcmp1_b32 0xf00, s15")
    A("s_cbranch_scc1 F_side")
    A("s_cmp_eq_u32 s15, 14")
    A("s_cbranch_scc1 F_nl2")
    A("v_and_b32 v2, 15, v1")
    A("v_and_b32 v3, 48, v1")
    A("v_lshl_add_u32 v2, v2, 6, v3")
    A("s_waitcnt lgkmcnt(0)")
    A("global_load_dwordx4 v[64:67], v2, s[48:49]")
    A("s_branch F_notloader")
    A("F_side:")
    side(A)
    A("F_notloader:")
    A("s_waitcnt lgkmcnt(0)")
    A("F_nl2:")
    tick(A, "start")
    A("s_mov_b32 s8, s54")
    A("s_mov_b32 s9, s55")
    srd(A, 24, 54, FWS)
    A("s_cmp_lt_u32 s15, 4")
    A("s_cbranch_scc1 F_gemm")
    A("s_cmp_lt_u32 s15, 8")
    A("s_cbranch_scc1 F_kgen")
    misc(A)
    A("F_kgen:")
    kgen(A)
    A("s_branch F_conv")
    A("F_gemm:")
    gemm(A)
    A("F_conv:")
    conv(A)
    attention(A)
    A("F_done:")
    A("s_endpgm")
    A("F_codeend:")
    A(f".fill (({npf}*4096 + 256 - (F_codeend - F_start)) >> 2), 4, 0xbf810000")

def side(A):
    A("s_sub_u32 s15, s15, 8")
    A("v_lshrrev_b32 v2, 3, v1")
    A("v_bfe_u32 v3, v1, 4, 1")
    A("v_and_b32 v6, 7, v1")
    A("s_and_b32 s30, s15, 1")
    A("s_lshl_b32 s30, s30, 2")
    A("v_xor_b32 v7, v6, v3")
    A("v_xor_b32 v7, s30, v7")
    A("v_lshlrev_b32 v7, 4, v7")
    A("v_lshl_add_u32 v4, v2, 10, v7")
    A("v_xor_b32 v5, 32, v4")
    A("v_lshlrev_b32 v3, 1, v3")
    A("v_xor_b32 v7, v6, v3")
    A("v_mul_u32_u24 v6, 3072, v2")
    A("v_lshl_add_u32 v6, v7, 4, v6")
    A("v_xor_b32 v7, 64, v6")
    A("s_lshl_b32 s30, s12, 16")
    A("s_lshl_b32 s31, s15, 14")
    A("s_add_u32 s30, s30, s31")
    A("s_mul_i32 s31, s15, 49152")
    A("s_lshl_b32 s32, s13, 7")
    A("s_add_u32 s31, s31, s32")
    A("s_lshl_b32 s32, s15, 11")
    A(f"s_add_u32 s32, s32, {L_RING}")
    A("s_mov_b32 s33, 0")
    A("s_lshl_b32 s39, s15, 2")
    A(f"s_add_u32 s39, s39, {L_MK}")
    A("v_and_b32 v9, 7, v1")
    A("v_mov_b32 v8, 0")
    A("v_lshl_add_u32 v9, v9, 4, s39")
    A("ds_write_b32 v9, v8")
    A("s_waitcnt lgkmcnt(0)")
    tick(A, "start")
    pad(A, "start")
    srd(A, 16, 72, 2048 * 512 * 2)
    srd(A, 20, 44, 512 * 1536 * 2)
    A("s_setprio 3")
    thr = int(OPT.get("thr", 63))
    GW = 64; GM = 68; X = 76; GA = 84; XA = 88
    def issue():
        A("s_add_u32 s34, s14, s33")
        A("s_and_b32 s34, s34, 7")
        A("s_lshl_b32 s35, s34, 7")
        A("s_add_u32 s35, s35, s30")
        A("s_mul_i32 s36, s34, 196608")
        A("s_add_u32 s36, s36, s31")
        A("s_and_b32 s37, s33, 3")
        A("s_lshl_b32 s37, s37, 15")
        A("s_add_u32 m0, s37, s32")
        A("s_add_u32 s38, s35, 7168")
        if thr < 63: A(f"s_waitcnt vmcnt({thr})")
        A("buffer_load_dwordx4 v4, s[16:19], s35 offen lds")
        A("buffer_load_dwordx4 v5, s[16:19], s38 offen offset:1024 lds")
        if OPT.get("bke", "1") == "1":
            A("s_cmp_eq_u32 s33, 1")
            A("s_cbranch_scc0 F_ldk")
            bar(A)
            A("F_ldk:")
        for mat in range(3):
            A("s_add_u32 m0, m0, 8192")
            A(f"s_add_u32 s38, s36, {24576 - 1024}")
            if thr < 63: A(f"s_waitcnt vmcnt({thr})")
            A("buffer_load_dwordx4 v6, s[20:23], s36 offen lds")
            A("buffer_load_dwordx4 v7, s[20:23], s38 offen offset:1024 lds")
            if mat < 2: A("s_add_u32 s36, s36, 1024")
    A("s_getpc_b64 s[28:29]")
    A("F_ld:")
    A("s_bitcmp1_b32 0xac, s33" if OPT.get("bke", "1") != "1" else "s_bitcmp1_b32 0xa8, s33")
    A("s_cbranch_scc0 F_ld1")
    bar(A)
    A("F_ld1:")
    issue()
    A("s_mov_b32 m0, s39")
    A("s_mov_b64 exec, 1")
    A("global_load_lds_dword v8, s[28:29]")
    A("s_mov_b64 exec, -1")
    A("s_add_u32 s39, s39, 16")
    A("s_add_u32 s33, s33, 1")
    A("s_cmp_lt_u32 s33, 8")
    A("s_cbranch_scc1 F_ld")
    A("s_mov_b32 s8, s54")
    A("s_mov_b32 s9, s55")
    srd(A, 24, 54, FWS)
    bar(A)
    tick(A, "ld_done")
    if PAD[0] == "endmin":
        A("s_not_b32 s58, s56")
        A("v_mov_b32 v2, 0")
        A("v_mov_b32 v3, s58")
        A("s_mov_b64 exec, 1")
        A("global_atomic_umax v2, v3, s[52:53] offset:128")
        A("s_mov_b64 exec, -1")
    A("v_lshlrev_b32 v3, 4, v1")
    srd(A, 16, 52, 256)
    A("v_mov_b32 v8, 0")
    A("v_mov_b32 v9, 1")
    A("s_lshl_b32 s29, s15, 2")
    outproj_setup(A)
    A("s_and_b32 s31, s11, 3")
    A("s_lshl2_add_u32 s31, s10, s31")
    A("s_lshr_b32 s28, s11, 2")
    A("s_lshl3_add_u32 s30, s31, s28")
    A(f"s_lshl_b32 s30, s30, {FSH}")
    A(f"s_add_u32 s30, s30, {hex(F_F1)}")
    A("s_lshl_b32 s20, s15, 3")
    A("s_lshl_b32 s37, s31, 11")
    A("s_lshl2_add_u32 s32, s28, s15")
    A("s_lshl_b32 s32, s32, 16")
    A("s_add_u32 s37, s37, s32")
    A("s_lshl_b32 s31, s31, 17" if not KVT else "s_lshl_b32 s31, s31, 12")
    A(f"s_add_u32 s31, s31, {hex(F_KV)}")
    A("s_lshl_b32 s32, s15, 11")
    A(f"s_add_u32 s37, s37, {hex(F_Q)}")
    A(f"s_add_u32 s38, s32, {L_Q}")
    if KVT:
        A("s_lshl_b32 s32, s15, 17")
        A("s_add_u32 s31, s31, s32")
    else: A("s_lshl1_add_u32 s31, s32, s31")
    A(f"s_mul_i32 s33, s15, {KVS}")
    A(f"s_add_u32 s33, s33, {L_KV}")
    A("v_and_b32 v10, 1, v1")
    A("v_cmp_eq_u32 vcc, 0, v10")
    A("v_bfe_u32 v11, v1, 1, 4")
    A("v_mov_b32 v16, 0x3f803f80")
    A("v_cndmask_b32 v16, 0, v16, vcc")
    A(f"v_mul_u32_u24 v11, {4*KVS}, v11")
    A("v_lshl_add_u32 v11, v10, 4, v11")
    A("v_add_u32 v11, s33, v11")
    for r in range(17, 20): A(f"v_mov_b32 v{r}, v16")
    lds_wait(A, 8, C_FR, 6, 10, 34, 35)
    A("ds_write_b128 v11, v[16:19] offset:2048")
    A("s_waitcnt lgkmcnt(0)")
    A("s_mov_b32 s36, 0xff")
    A("s_mov_b32 s39, 0")
    A(f"s_mul_i32 s33, s15, {2*KVS}")
    A(f"s_add_u32 s33, s33, {L_KV}")
    A(f"s_mov_b32 s43, {32*KVS}")
    A("s_cmp_eq_u32 s15, 0")
    A("s_cbranch_scc0 F_f1w")
    A("s_lshl_b32 s41, 0x01010101, s28")
    pd1 = int(OPT.get("pd1", 3))
    if pd1 > 1: mask_wait_p(A, [20, 21, 22, 23][:pd1], 8, 30, 35, 34, "s41", 42, int(OPT.get("pg", 4)))
    else: mask_wait(A, 10, 8, 30, 35, 34, "s41", 42, sleep=int(OPT.get("f1sl", 0)))
    A("v_mov_b32 v10, s35")
    A(f"ds_write_b32 v8, v10 offset:{C_F1}")
    A("s_branch F_f1d")
    A("F_f1w:")
    lds_wait(A, 8, C_F1, 1, 10, 35, 34)
    A("s_lshr_b32 s35, s35, s20")
    A("F_f1d:")
    tick(A, "F1seen")
    A("s_mov_b32 m0, s38")
    A("s_mov_b32 s34, 0")
    A("buffer_load_dwordx4 v3, s[24:27], s37 offen sc1 lds")
    A("buffer_load_dwordx4 v3, s[24:27], s37 offen offset:1024 sc1 lds")
    A("s_and_b32 s35, s35, s36")
    A("s_cbranch_scc1 F_kv1")
    A("F_kv:")
    mask_read(A, 10, 8, 30, 35)
    A("s_add_u32 s34, s34, 1")
    A("s_lshr_b32 s35, s35, s20")
    A(f"s_cmp_lt_u32 s34, {hex(SPIN)}")
    A("s_cselect_b32 s35, s35, -1")
    A("s_and_b32 s35, s35, s36")
    A("s_cbranch_scc1 F_kv1")
    A("s_sleep 1")
    A("s_branch F_kv")
    A("F_kv1:")
    A("s_ff1_i32_b32 s40, s35")
    A("F_kv2:")
    A("s_lshl_b32 s41, s40, 14" if not KVT else "s_lshl_b32 s41, s40, 19")
    A("s_mov_b32 m0, s33")
    A("s_add_u32 s41, s41, s31")
    A("buffer_load_dwordx4 v3, s[24:27], s41 offen sc1 lds")
    A("buffer_load_dwordx4 v3, s[24:27], s41 offen offset:1024 sc1 lds")
    A(f"s_add_u32 m0, s33, {KVS - 2048}")
    A("s_bitset0_b32 s35, s40")
    A("buffer_load_dwordx4 v3, s[24:27], s41 offen offset:2048 sc1 lds")
    A("buffer_load_dwordx4 v3, s[24:27], s41 offen offset:3072 sc1 lds")
    A("s_bitset0_b32 s36, s40")
    A("s_bitcmp1_b32 s39, 0")
    A(f"s_cselect_b32 s42, {hex((-24*KVS) & 0xffffffff)}, s43")
    A("s_add_u32 s33, s33, s42")
    A("s_bitcmp1_b32 0xa3, s39")
    A("s_cbranch_scc0 F_kv3")
    mark(A, L_S1, 29, 8)
    A("s_add_u32 s29, s29, 16")
    tick(A, "mk")
    A("F_kv3:")
    A("s_add_u32 s39, s39, 1")
    A("F_kv4:")
    A("s_cmp_lg_u32 s35, 0")
    A("s_cbranch_scc1 F_kv1")
    A("s_cmp_lg_u32 s36, 0")
    A("s_cbranch_scc1 F_kv")
    tick(A, "kv_issued")
    outproj(A)

GA = 80
def outproj_setup(A):
    A("s_and_b32 s30, s15, 1")
    A("s_lshr_b32 s31, s15, 1")
    A("v_and_b32 v2, 31, v1")
    A("v_lshrrev_b32 v12, 5, v1")
    A("v_lshlrev_b32 v113, 15, v12")
    A("v_lshl_add_u32 v113, v2, 3, v113")
    A("v_lshlrev_b32 v114, 10, v12")
    A("v_lshl_add_u32 v114, v2, 2, v114")
    A("s_lshl_b32 s36, s30, 7")
    A("v_lshl_add_u32 v115, v2, 2, s36")
    A("v_lshrrev_b32 v4, 3, v1")
    A("v_lshlrev_b32 v4, 10, v4")
    A("v_and_b32 v5, 7, v1")
    A("v_bfe_u32 v6, v1, 4, 1")
    A("v_lshlrev_b32 v6, 2, v6")
    A("v_xor_b32 v5, v5, v6")
    A("v_lshl_add_u32 v112, v5, 4, v4")
    A("v_bfe_u32 v13, v1, 2, 2")
    A("v_lshl_add_u32 v14, v12, 2, v13")
    A("v_lshlrev_b32 v14, 7, v14")
    A("v_lshrrev_b32 v13, 1, v13")
    A("v_xor_b32 v13, s31, v13")
    A("v_lshl_add_u32 v14, v13, 6, v14")
    A("v_and_b32 v13, 16, v1")
    A("v_lshl_add_u32 v14, v13, 1, v14")
    A("v_and_b32 v13, 1, v1")
    A("v_lshl_add_u32 v14, v13, 4, v14")
    A("v_and_b32 v13, 2, v1")
    A("v_lshl_add_u32 v14, v13, 2, v14")
    A("s_lshl_b32 s36, s31, 15")
    A(f"s_add_u32 s36, s36, {L_WO}")
    A("v_add_u32 v5, s36, v14")
    A("v_xor_b32 v4, 64, v5")
    A("v_and_b32 v6, 28, v1")
    A("v_add_lshl_u32 v6, v6, v12, 10")
    A("v_lshl_add_u32 v6, v13, 3, v6")
    A("v_and_b32 v13, 1, v1")
    A("v_lshl_add_u32 v6, v13, 5, v6")
    A("s_lshl_b32 s36, s15, 12")
    A(f"s_add_u32 s36, s36, {L_O}")
    A("v_add_u32 v7, s36, v3")
    A("v_xor_b32 v0, 0x2000, v7")
    for r in range(GA, GA + 32): A(f"v_mov_b32 v{r}, 0")

def outproj(A):
    A("s_and_b32 s30, s15, 1")
    A("s_lshr_b32 s31, s15, 1")
    A("s_lshl_b32 s32, s12, 6")
    A("s_lshl_b32 s33, s30, 5")
    A("s_add_u32 s32, s32, s33")
    A("s_lshl_b32 s33, s13, 6")
    A("s_lshl_b32 s34, s31, 5")
    A("s_add_u32 s33, s33, s34")
    A("s_lshl_b32 s34, s33, 12")
    A("s_lshr_b32 s35, s12, 2")
    A("s_lshl1_add_u32 s35, s35, s30")
    A("s_lshl_b32 s35, s35, 8")
    A("s_add_u32 s34, s34, s35")
    A("s_and_b32 s35, s12, 3")
    A("s_lshl1_add_u32 s34, s35, s34")
    A(f"s_add_u32 s34, s34, {hex(F_YA)}")
    srd(A, 16, 46, 512 * 512 * 2)
    srd(A, 20, 50, 2048 * 512 * 2)
    A("s_lshl_b32 s36, s15, 17")
    A("s_lshl_b32 s37, s13, 7")
    A("s_add_u32 s36, s36, s37")
    A("s_lshl_b32 s37, s15, 14")
    A(f"s_add_u32 s37, s37, {L_WO}")
    lds_wait(A, 8, C_FREE, 4, 11, 38, 39, sleep=32)
    lds_wait(A, 8, C_YA, 2, 11, 38, 39, sleep=8)
    lds_wait(A, 8, C_YA2, 8, 11, 38, 39, sleep=16)
    A("s_mov_b32 s38, 16")
    A("F_wo:")
    A("s_mov_b32 m0, s37")
    A("s_add_u32 s37, s37, 1024")
    A("buffer_load_dwordx4 v112, s[16:19], s36 offen lds")
    A("s_add_u32 s36, s36, 8192")
    A("s_sub_u32 s38, s38, 1")
    A("s_cmp_lg_u32 s38, 0")
    A("s_cbranch_scc1 F_wo")
    A("s_lshl3_add_u32 s28, s12, s13")
    A(f"s_lshl_b32 s28, s28, {FSH}")
    A(f"s_add_u32 s28, s28, {hex(F_F2)}")
    mask_wait(A, 11, 8, 28, 36, 38, "-1", 37, sleep=16)
    A("s_add_u32 s28, s28, 4")
    for c in range(2):
        for p in range(8):
            A(f"s_add_u32 s36, s34, {(16*c + p)*4096}")
            A(f"buffer_load_short_d16_hi v{GA+8*c+p}, v113, s[24:27], s36 offen sc1")
    A("s_and_b32 s36, s32, 255")
    A("s_cbranch_scc1 F_nc")
    A("s_lshr_b32 s36, s32, 4")
    A("s_cbranch_scc0 F_nc")
    A("s_lshl_b32 s37, s33, 7")
    A("s_add_u32 s36, s36, s37")
    A(f"s_add_u32 s36, s36, {hex(F_YC - 16)}")
    A("s_mov_b32 exec_lo, 7")
    A("s_mov_b32 exec_hi, 7")
    for c in range(2):
        for p in range(8):
            A(f"buffer_load_dword v{GA+16+8*c+p}, v114, s[24:27], s36 offen offset:{(16*c + p)*128} sc1")
    A("s_mov_b64 exec, -1")
    A("F_nc:")
    A(f"ds_read_b32 v11, v115 offset:{L_G}")
    A("s_mov_b32 s40, 0x55555555")
    A("s_mov_b32 s41, s40")
    A("s_mov_b32 s42, 0x33333333")
    A("s_mov_b32 s43, s42")
    A("s_lshl_b32 s32, s32, 10")
    A("s_lshl_b32 s33, s33, 1")
    A("s_add_u32 s32, s32, s33")
    A("s_lshl1_add_u32 s34, s12, s31")
    A("s_lshl_b32 s34, s34, 15")
    A("s_lshl_b32 s35, s30, 10")
    A("s_add_u32 s34, s34, s35")
    A(f"s_add_u32 s34, s34, {hex(F_Q)}")
    A("s_lshl_b32 s35, s31, 4")
    A("s_lshl_b32 s35, 0xffff, s35")
    GP = 16; A1 = 24; A0 = 40; OF = 80
    WB = lambda k: 56 + 8 * (k % 3)
    OB_ = lambda k: OF + 4 * (k % 12)
    def wrd(ks):
        for av, b in ((4, WB(ks)), (5, WB(ks) + 4)):
            A(f"ds_read_b64_tr_b16 {vr(b,2)}, v{av} offset:{ks*2048}")
            A(f"ds_read_b64_tr_b16 {vr(b+2,2)}, v{av} offset:{ks*2048+1024}")
    def old(ks):
        A(f"buffer_load_dwordx4 {vr(OB_(ks),4)}, v3, s[24:27], s34 offen offset:{(ks&1)*2048} sc1")
        if ks < 15 and ks & 1: A("s_add_u32 s34, s34, 4096")
    A("s_waitcnt vmcnt(0) lgkmcnt(0)")
    tick(A, "op_ready")
    A("s_barrier")
    tick(A, "op_go")
    def fill0():
        for ks in range(3): wrd(ks)
        for r in range(GA, GA + 16): A(f"v_add_f32 v{r}, v{r}, v{r+16}")
        for r in range(GA, GA + 16): A(f"v_mul_f32 v{r}, v11, v{r}")
    def fill1():
        for p in range(8): A(f"v_cvt_pk_bf16_f32 v{GP+p}, v{GA+2*p}, v{GA+2*p+1}")
        A("v_sub_f32 v11, 1.0, v11")
        A("v_cvt_pk_bf16_f32 v11, v11, v11")
        A("v_and_b32 v11, 0xffff0000, v11")
        A("s_sleep 2")
    mask_wait_p(A, [13, 12, 14], 8, 28, 36, 38, "s35", 37, [fill0, fill1])
    tick(A, "F3seen")
    for ks in range(12): old(ks)
    for ks in range(16):
        A(f"s_waitcnt vmcnt({min(11, 15-ks)}) lgkmcnt({4*min(2, 15-ks)})")
        A(mfma32(A1, WB(ks), OB_(ks), "0" if ks == 0 else None))
        A(mfma32(A0, WB(ks) + 4, OB_(ks), "0" if ks == 0 else None))
        if ks < 4: old(ks + 12)
        if ks + 3 < 16: wrd(ks + 3)
    tick(A, "op_mm")
    GU = 96
    for q in range(8):
        A(f"v_lshlrev_b32 v{GU+2*q}, 16, v{GP+q}")
        if q < 3: A(f"v_and_b32 v{GU+2*q+1}, 0xffff0000, v{GP+q}")
    for q in range(4): A(f"ds_write_b128 v7, {vr(A1+4*q,4)} offset:{q*1024}")
    for q in range(3, 8): A(f"v_and_b32 v{GU+2*q+1}, 0xffff0000, v{GP+q}")
    for r in range(16): A(f"v_fma_f32 v{GU+r}, v{A0+r}, v11, v{GU+r}")
    A("s_waitcnt lgkmcnt(0)")
    A("s_barrier")
    tick(A, "op_x")
    for q in range(4): A(f"ds_read_b128 {vr(A0+4*q,4)}, v0 offset:{q*1024}")
    A("s_mov_b64 vcc, s[40:41]")
    for hf in range(2):
        A(f"s_waitcnt lgkmcnt({2 - 2*hf})")
        for r in range(8*hf, 8*hf + 8): A(f"v_fma_f32 v{GU+r}, v{A0+r}, v11, v{GU+r}")
        for p in range(4*hf, 4*hf + 4): A(f"v_cvt_pk_bf16_f32 v{GP+p}, v{GU+2*p}, v{GU+2*p+1}")
    def xswap(src, dst, perm):
        for d in range(4): A(f"v_cndmask_b32_dpp v{dst+d}, v{src+4+d}, v{src+d}, vcc quad_perm:{perm} row_mask:0xf bank_mask:0xf")
        A("s_not_b64 vcc, vcc")
        for d in range(4): A(f"v_cndmask_b32_dpp v{dst+4+d}, v{src+d}, v{src+4+d}, vcc quad_perm:{perm} row_mask:0xf bank_mask:0xf")
    xswap(GP, 24, "[1,0,3,2]")
    A("s_mov_b64 vcc, s[42:43]")
    for d in range(4): A(f"v_permlane32_swap_b32 v{24+d}, v{28+d}")
    xswap(24, GP, "[2,3,0,1]")
    om = OPT.get("omod", "sc1")
    A(f"buffer_store_dwordx4 {vr(GP,4)}, v6, s[20:23], s32 offen {om}")
    A(f"buffer_store_dwordx4 {vr(GP+4,4)}, v6, s[20:23], s32 offen offset:2048 {om}")
    tick(A, "op_st")
    pad(A, "end")
    if PAD[0] == "endmin":
        A("v_mov_b32 v2, 0")
        A("global_load_dword v3, v2, s[52:53] offset:128 sc1")
        A("s_waitcnt vmcnt(0)")
        A("v_readfirstlane_b32 s56, v3")
        A("s_nop 3")
        A("s_not_b32 s56, s56")
        pad(A, "endmin")
    dump(A, 0, 6)
    A("s_endpgm")

def misc(A):
    A("v_mov_b32 v8, 0")
    A("v_mov_b32 v9, 1")
    A("s_setprio 3")
    A("s_cmp_eq_u32 s15, 14")
    A("s_cbranch_scc0 F_gate")
    srd(A, 36, 52, 256)
    A("v_and_b32 v5, 15, v1")
    A(f"v_min_u32 v2, {NCLR-1}, v1")
    A("v_lshlrev_b32 v2, 2, v2")
    A("v_bfe_u32 v4, v1, 3, 1")
    A("v_bfe_u32 v6, v1, 1, 1")
    A("v_lshl_or_b32 v4, v4, 1, v6")
    A("v_lshlrev_b32 v4, 4, v4")
    A("v_lshl_add_u32 v4, v5, 7, v4")
    A("v_bfe_u32 v6, v1, 4, 1")
    A("v_lshl_add_u32 v4, v6, 12, v4")
    A("v_lshrrev_b32 v6, 5, v1")
    A("v_lshl_add_u32 v4, v6, 3, v4")
    A(f"v_add_u32 v20, {L_RING}, v4")
    for k in range(1, 8): A(f"v_xor_b32 v{20+k}, {16*k}, v20")
    A("v_bfe_u32 v4, v1, 2, 3")
    A("v_lshlrev_b32 v4, 5, v4")
    A("v_lshl_add_u32 v7, v6, 14, v4")
    A("v_and_b32 v4, 1, v1")
    A("v_lshl_add_u32 v7, v4, 4, v7")
    A("v_bfe_u32 v4, v1, 1, 1")
    A("v_lshl_add_u32 v7, v4, 13, v7")
    A("s_lshl_b32 s31, s14, 18")
    A("s_lshl_b32 s32, s12, 8")
    A("s_add_u32 s31, s31, s32")
    A(f"s_add_u32 s31, s31, {hex(F_UT)}")
    A(f"s_lshl_b32 s33, s14, {FSH+5}")
    A(f"s_add_u32 s33, s33, {hex(F_FL)}")
    A(f"v_lshlrev_b32 v11, {FSH}, v1")
    A("v_lshlrev_b32 v12, s12, v9")
    UT = 32
    bar(A)
    mark_wait(A, 8, L_MK, 16, 34, 35, sleep=1)
    for i in range(8):
        for eh in range(2):
            A(f"ds_read_b64_tr_b16 {vr(UT+4*i+2*eh,2)}, v{20 + (i ^ (4*eh))} offset:{eh*2048}")
    for i in range(8):
        if i % 2 == 0: A(f"s_waitcnt lgkmcnt({12 - 2*i})")
        A(f"buffer_store_dwordx4 {vr(UT+4*i,4)}, v7, s[24:27], s31 offen sc1")
        if i < 7: A("s_add_u32 s31, s31, 0x8000")
    A("buffer_load_dword v10, v2, s[36:39], 0 offen sc1")
    utb = int(OPT.get("utb", 1))
    for k in range(utb): bar(A)
    A("s_waitcnt vmcnt(0)")
    A("v_cmp_eq_u32 vcc, 1, v10")
    A("s_nop 1")
    A("s_cmp_eq_u64 vcc, -1")
    A("s_cbranch_scc1 F_m2")
    flag_wait(A, 2, "0", 10, 34, srd_="s[36:39]", sleep=2)
    A("F_m2:")
    mask_set(A, 12, 11, 33, 32)
    if STAMPS[0]:
        for k in range(4 - utb): bar(A)
    dump(A)
    A("s_endpgm")

    A("F_gate:")
    GW = 64; X = [32, 48]; GA = 16; GM = 68
    for r in range(GA, GA + 8): A(f"v_mov_b32 v{r}, 0")
    for r in range(X[1], X[1] + 16): A(f"v_mov_b32 v{r}, 0")
    for r in range(GM, GM + 8): A(f"v_mov_b32 v{r}, 0")
    xaddr(A)
    A("s_sub_u32 s16, s15, 12")
    A("s_lshl_b32 s30, s16, 12")
    A("v_add_u32 v4, s30, v4")
    A("v_add_u32 v5, s30, v5")
    A("s_lshl_b32 s30, s16, 7")
    A("v_lshl_add_u32 v10, v9, 2, s30")
    A("v_mov_b32 v8, 0")
    A("v_mov_b32 v9, 1")
    A("s_lshl_b32 s30, s14, 1")
    A("s_mov_b32 s31, 4")
    bar(A)
    A("s_waitcnt vmcnt(0)")
    def gmm(st):
        for ks in range(2):
            for mt in range(2):
                A(mfma16(GA + 4 * mt, GM + 4 * ks, X[st] + 8 * ks + 4 * mt))
    A("v_mov_b32 v6, 0")
    A("F_gt:")
    for par in range(2):
        if par == 1: bar(A)
        mark_wait(A, 6, L_MK + 16 * par, 76, 34, 35, sleep=1)
        for ks in range(2):
            for mt in range(2):
                A(f"ds_read_b128 {vr(X[par]+8*ks+4*mt,4)}, v{4+ks} offset:{par*32768 + mt*512}")
        gmm(par ^ 1)
        for ks in range(2):
            A("v_cmp_eq_u32 vcc, s30, v2")
            A("s_add_u32 s30, s30, 1")
            A("s_and_b32 s30, s30, 15")
            for r in range(4): A(f"v_cndmask_b32 v{GM+4*ks+r}, 0, v{GW+r}, vcc")
        if par == 1:
            A("v_xor_b32 v4, 0x10000, v4")
            A("v_xor_b32 v5, 0x10000, v5")
            A("v_add_u32 v6, 32, v6")
            A("s_sub_u32 s31, s31, 1")
            A("s_cmp_lg_u32 s31, 0")
        A("s_waitcnt lgkmcnt(0)")
    A("s_cbranch_scc1 F_gt")
    gmm(1)
    lds_add1(A, 8, 9, C_FR)
    A("s_nop 4")
    R = [GA, GA + 4]
    for q in R: A(f"v_add_f32 v{q}, v{q}, v{q+1}")
    for q in R: A(f"v_add_f32 v{q+2}, v{q+2}, v{q+3}")
    for q in R: A(f"v_add_f32 v{q}, v{q}, v{q+2}")
    for sw in ("v_permlane16_swap_b32", "v_permlane32_swap_b32"):
        for q in R: A(f"v_mov_b32 v{q+1}, v{q}")
        A("s_nop 1")
        for q in R: A(f"{sw} v{q}, v{q+1}")
        A("s_nop 0")
        for q in R: A(f"v_add_f32 v{q}, v{q}, v{q+1}")
    for q in R: A(f"v_cvt_pk_bf16_f32 v{q}, v{q}, v{q}")
    for q in R: A(f"v_and_b32 v{q}, 0xffff0000, v{q}")
    for q in R: A(f"v_mul_f32 v{q}, {hex(LOG2E ^ 0x80000000)}, v{q}")
    for q in R: A(f"v_exp_f32 v{q}, v{q}")
    for q in R: A(f"v_add_f32 v{q}, 1.0, v{q}")
    for q in R: A(f"v_rcp_f32 v{q}, v{q}")
    for q in R: A(f"v_cvt_pk_bf16_f32 v{q}, v{q}, v{q}")
    for q in R: A(f"v_and_b32 v{q}, 0xffff0000, v{q}")
    for mt in range(2): A(f"ds_write_b32 v10, v{R[mt]} offset:{L_G + mt*16}")
    lds_add1(A, 8, 9, C_YA)
    A("s_waitcnt lgkmcnt(0)")
    dump(A)
    A("s_endpgm")

def xaddr(A, d=4, t=0):
    A(f"v_and_b32 v{t+2}, 15, v1")
    A(f"v_lshrrev_b32 v{t+3}, 4, v1")
    A(f"v_lshrrev_b32 v{t+7}, 2, v{t+2}")
    A(f"v_and_b32 v{t+8}, 3, v1")
    A(f"v_lshl_add_u32 v{t+9}, v{t+7}, 3, v{t+8}")
    A(f"v_lshrrev_b32 v{t+10}, 1, v{t+8}")
    A(f"v_lshl_or_b32 v{t+10}, v{t+7}, 1, v{t+10}")
    A(f"v_xor_b32 v{t+10}, v{t+10}, v{t+3}")
    A(f"v_lshlrev_b32 v{t+10}, 4, v{t+10}")
    A(f"v_lshl_add_u32 v{d}, v{t+9}, 7, v{t+10}")
    A(f"v_add_u32 v{d}, {L_RING}, v{d}")
    A(f"v_xor_b32 v{d+1}, 64, v{d}")

ROW2 = 528
TABC = 60 * ROW2

def cmul_pk(A, lst):
    for (R, X, E, T) in lst:
        A(f"v_pk_mul_f32 {vr(T,2)}, {vr(X,2)}, {vr(E,2)} op_sel:[0,0] op_sel_hi:[1,0]")
    for (R, X, E, T) in lst:
        A(f"v_pk_fma_f32 {vr(R,2)}, {vr(X,2)}, {vr(E,2)}, {vr(T,2)} op_sel:[1,1,0] op_sel_hi:[0,1,1] neg_lo:[1,0,0]")

def cmul_sc(A, lst):
    for (R, X, E, T) in lst:
        A(f"v_mul_f32 v{T}, v{X}, v{E+1}")
        A(f"v_mul_f32 v{R}, v{X}, v{E}")
    for (R, X, E, T) in lst:
        A(f"v_fma_f32 v{R}, -v{X+1}, v{E+1}, v{R}")
        A(f"v_fma_f32 v{R+1}, v{X+1}, v{E}, v{T}")

AR, AI, DT = 16, 18, 14
KE = lambda k: (f32hex(k * math.log2(math.e)), f32hex(k / (2 * math.pi)))
def k_base(A):
    A(f"s_mul_i32 s19, s16, {L_RING + 3*32768 - L_TAB}")
    A(f"s_add_u32 s19, s19, {L_TAB}")
    A("s_bfe_u32 s22, s15, 0x10001")
def k_head(A):
    A(f"v_lshlrev_b32 v{DT}, 16, v10")
    A(f"v_mul_f32 v{DT}, {hex(LOG2E)}, v{DT}")
    A(f"v_exp_f32 v{DT}, v{DT}")
    A(f"v_lshlrev_b32 v{AR}, 16, v4")
    A(f"v_and_b32 v{AR+1}, 0xffff0000, v4")
    A(f"v_cvt_pk_bf16_f32 v{DT}, v{DT}, v{DT}")
    A(f"v_lshlrev_b32 v{AI}, 16, v5")
    A(f"v_and_b32 v{AI+1}, 0xffff0000, v5")
    A(f"v_and_b32 v{DT}, 0xffff0000, v{DT}")
    for r in range(AR, AR + 4): A(f"v_mul_f32 v{r}, v{DT}, v{r}")
def k_gens(A, lst):
    n = 0
    for (k1, k2), E in lst:
        for m in range(2):
            A(f"v_mul_f32 v{48+n}, {k1}, v{AR+m}")
            A(f"v_mul_f32 v{56+n}, {k2}, v{AI+m}")
            n += 1
    for i in range(n):
        A(f"v_exp_f32 v{48+i}, v{48+i}")
        A(f"v_fract_f32 v{56+i}, v{56+i}")
    n = 0
    for k, E in lst:
        for m in range(2):
            A(f"v_cos_f32 v{E+2*m}, v{56+n}")
            A(f"v_sin_f32 v{E+2*m+1}, v{56+n}")
            n += 1
    n = 0
    for k, E in lst:
        for m in range(2):
            A(f"v_mul_f32 v{E+2*m}, v{48+n}, v{E+2*m}")
            A(f"v_mul_f32 v{E+2*m+1}, v{48+n}, v{E+2*m+1}")
            n += 1
PUTN = [0]
def k_put(A, X, off, neg):
    c = 44 + 2 * (PUTN[0] & 1); PUTN[0] += 1
    for m in range(2):
        A(f"v_cvt_pk_bf16_f32 v{c+m}, v{X+2*m}, {'-' if neg else ''}v{X+2*m+1}")
    A(f"ds_write_b64 v13, {vr(c,2)} offset:{off}")
def k_mul(A, lst):
    cmul_pk(A, [(R + 2 * m, X + 2 * m, E + 2 * m, 48 + 4 * i + 2 * m) for i, (R, X, E) in enumerate(lst) for m in range(2)])

def kgen_y(A):
    k_base(A)
    A(f"s_mul_i32 s30, s22, {KE(128)[0]}")
    A(f"s_mul_i32 s31, s22, {KE(128)[1]}")
    A(f"s_mul_i32 s29, s22, {16*ROW2}")
    A("s_add_u32 s29, s29, s19")
    A("v_lshl_add_u32 v13, v1, 3, s29")
    A("s_mov_b32 s21, 3")
    A("s_waitcnt vmcnt(0)")
    tick(A, "params")
    k_head(A)
    E8 = 20; Y = 24
    k_gens(A, [(KE(8), E8), (("s30", "s31"), Y)])
    A(".p2align 3")
    A("F_ky:")
    A("s_sub_u32 s21, s21, 1")
    A("s_nop 0")
    for j in range(4):
        k_put(A, Y, j * ROW2, False)
        k_mul(A, [(Y, Y, E8)])
    A(f"v_add_u32 v13, {4*ROW2}, v13")
    A("s_cbranch_scc0 F_ky")
    A("s_waitcnt lgkmcnt(0)")
    tick(A, "tables")
    bar(A)

def kgen(A):
    P = 4
    k_base(A)
    A(f"s_add_u32 s20, s19, {32*ROW2}")
    A("v_and_b32 v16, 31, v1")
    A("v_lshrrev_b32 v17, 5, v1")
    A("v_lshlrev_b32 v17, 4, v17")
    A(f"v_mul_u32_u24 v2, {ROW2}, v16")
    A("v_add3_u32 v2, v2, v17, s19")
    A("v_bfe_u32 v18, v1, 2, 1")
    A("v_bfe_u32 v19, v1, 4, 1")
    A("v_lshl_add_u32 v18, v19, 1, v18")
    A("v_and_b32 v19, 3, v1")
    A("v_bfe_u32 v20, v1, 3, 1")
    A("v_lshl_add_u32 v19, v20, 2, v19")
    A("s_mov_b32 s35, 0x11100000")
    A("s_mov_b32 s36, 0x1a181614")
    A("s_cmp_eq_u32 s22, 0")
    A("s_cselect_b32 s32, 0x22111000, s35")
    A("s_cselect_b32 s33, 0xd7ccc6bb, s35")
    A("s_cselect_b32 s34, 0x54392108, s35")
    A("s_cselect_b32 s35, 0x110e0000, s36")
    A("v_mov_b32 v20, s32")
    A("v_mov_b32 v21, s33")
    A("v_mov_b32 v22, s34")
    A("v_cmp_eq_u32 vcc, 1, v18")
    A("v_lshlrev_b32 v23, 2, v19")
    A("v_lshlrev_b32 v24, 3, v18")
    A("v_cndmask_b32 v20, v20, v21, vcc")
    A("v_cmp_eq_u32 vcc, 0, v18")
    A("v_bfe_u32 v24, s35, v24, 8")
    A("s_lshl_b32 s31, s22, 23")
    A("v_cndmask_b32 v20, v20, v22, vcc")
    A("v_bfe_u32 v20, v20, v23, 4")
    A("v_add_u32 v20, v20, v24")
    A(f"v_mul_u32_u24 v12, {ROW2}, v20")
    A("v_add3_u32 v12, v12, v17, s20")
    A("s_mul_i32 s31, s31, 9")
    A(f"s_add_u32 s30, s31, {KE(1)[0]}")
    A(f"s_add_u32 s31, s31, {KE(1)[1]}")
    A(f"s_mul_i32 s29, s22, {6*ROW2}")
    A("s_add_u32 s29, s29, s20")
    A("v_lshl_add_u32 v13, v1, 3, s29")
    A("s_setprio 1")
    A("s_waitcnt vmcnt(0)")
    tick(A, "params")
    k_head(A)
    EV = 20; E4 = 24; E256 = 28; C0 = 32; C1 = 36; C2 = 40; B_ = 64; C_ = 68; X1 = 72; X2 = 76
    for k, dst in ((2, B_), (3, B_ + 1), (4, C_), (5, C_ + 1)):
        A(f"v_lshlrev_b32 v{dst}, 16, v{P+k}")
        A(f"v_and_b32 v{dst+2}, 0xffff0000, v{P+k}")
    for r in range(B_, B_ + 4): A(f"v_mul_f32 v{r}, v{DT}, v{r}")
    k_gens(A, [(("s30", "s31"), EV), (KE(4), E4), (KE(256), E256)])
    put = lambda X, row: k_put(A, X, row * ROW2, True)
    A(".p2align 3")
    k_mul(A, [(C0, C_, B_)])
    A("s_cmp_eq_u32 s22, 0")
    A("s_cbranch_scc1 F_kx0")
    k_mul(A, [(C0, C0, EV)])
    A("F_kx0:")
    put(C0, 8)
    k_mul(A, [(C1, C0, E4)])
    put(C1, 9)
    k_mul(A, [(C2, C1, E4)])
    put(C2, 10)
    A("s_cbranch_scc0 F_kx3")
    A("s_nop 0")
    k_mul(A, [(X1, C0, EV), (X2, C1, EV)])
    put(X1, 0); put(X2, 3)
    k_mul(A, [(X1, X1, EV), (X2, X2, EV)])
    put(X1, 1); put(X2, 4)
    k_mul(A, [(B_, X1, E256), (C_, X2, E256)])
    put(B_, 6); put(C_, 7)
    k_mul(A, [(X1, X1, EV), (X2, X2, EV)])
    put(X1, 2); put(X2, 5)
    A("F_kx3:")
    k_mul(A, [(C0, C0, E256), (C1, C1, E256), (C2, C2, E256)])
    put(C0, 11); put(C1, 12); put(C2, 13)
    A("s_cbranch_scc1 F_kt")
    A("s_mov_b32 s21, 3")
    A("F_kx2:")
    A("s_sub_u32 s21, s21, 1")
    A("s_nop 0")
    k_mul(A, [(C0, C0, E256), (C2, C2, E256)])
    put(C0, 14); put(C2, 15)
    A(f"v_add_u32 v13, {2*ROW2}, v13")
    A("s_cbranch_scc0 F_kx2")
    A("F_kt:")
    A("s_setprio 0")
    A("s_waitcnt lgkmcnt(0)")
    tick(A, "tables")
    bar(A)
    AC = 112
    F = 16
    NS = 12
    def rd(ks):
        b = F + 8 * (ks % NS)
        A(f"ds_read_b128 {vr(b,4)}, v12 offset:{ks*32}")
        A(f"ds_read_b128 {vr(b+4,4)}, v2 offset:{ks*32}")
    kb = int(OPT.get("kb", 15))
    for ks in range(6): rd(ks)
    for ks in range(16):
        if ks < 5:
            rd(6 + 2 * ks); rd(7 + 2 * ks)
            A("s_waitcnt lgkmcnt(14)")
        if ks == 5: A("s_waitcnt lgkmcnt(0)")
        if ks == kb: bar(A)
        A(mfma32(AC, F + 8 * (ks % NS), F + 8 * (ks % NS) + 4, "0" if ks == 0 else None))
    A("s_nop 0")
    A("s_lshl_b32 s21, s22, 6")
    A("v_cmp_eq_u32 vcc, s21, v1")
    A("v_lshlrev_b32 v11, 16, v11")
    A("s_mul_i32 s30, s22, 0xaaaaaaaa")
    A("v_cndmask_b32 v11, 0, v11, vcc")
    A("s_mov_b32 s31, s30")
    A("s_mul_i32 s23, s16, 4608")
    A("s_lshl_b32 s29, s22, 11")
    A("s_add_u32 s23, s23, s29")
    A(f"s_add_u32 s23, s23, {L_KXA}")
    A("v_lshl_add_u32 v24, v1, 4, s23")
    A(f"v_add_f32 v{AC}, v{AC}, v11")
    A(f"v_cndmask_b32 v{AC+4}, v{AC+4}, v{AC+5}, s[30:31]")
    A(f"v_cndmask_b32 v{AC+12}, v{AC+12}, v{AC+13}, s[30:31]")
    for p in range(8): A(f"v_cvt_pk_bf16_f32 v{16+p}, v{AC+2*p}, v{AC+2*p+1}")
    A(f"s_mul_i32 s21, s16, {TABW}")
    A(f"s_add_u32 s21, s21, {L_TAB}")
    A("v_lshrrev_b32 v25, 5, v1")
    A("v_and_b32 v25, s16, v25")
    A("v_lshlrev_b32 v25, 12, v25")
    A("v_lshl_add_u32 v25, v1, 4, v25")
    A("v_add_u32 v25, s21, v25")
    A("v_lshrrev_b32 v26, 2, v1")
    A("v_lshrrev_b32 v27, 4, v1")
    A("v_xor_b32 v26, v26, v27")
    A("v_and_b32 v26, 1, v26")
    A("v_lshlrev_b32 v26, 4, v26")
    A("v_and_b32 v27, 3, v1")
    A("v_lshl_add_u32 v26, v27, 5, v26")
    A("v_lshrrev_b32 v27, 3, v1")
    A("v_lshl_add_u32 v26, v27, 7, v26")
    A("v_mov_b32 v8, 0")
    A("v_mov_b32 v9, 1")
    A("v_mov_b32 v27, 0")
    A(f"s_lshl_b32 s20, s2, {FSH}")
    A(f"s_add_u32 s20, s20, {hex(F_FL)}")
    A("s_and_b32 s21, s15, 3")
    A("s_lshl_b32 s21, s21, 11")
    A("s_lshl_b32 s29, s2, 13")
    A("s_add_u32 s29, s29, s21")
    A(f"s_add_u32 s29, s29, {hex(F_UT)}")
    A(f"s_add_u32 m0, s21, {L_U}")
    bar(A)
    for t in conv_setup(A): A(t)
    bar(A)
    attn_setup(A)
    A("s_mov_b64 exec, 1")
    A("buffer_atomic_or v27, v8, s[24:27], s20 offen sc0 sc1")
    A("s_mov_b64 exec, -1")
    bar(A)
    A("s_waitcnt vmcnt(0)")
    A("v_readfirstlane_b32 s21, v27")
    A("s_nop 0")
    A("s_cmp_eq_u32 s21, -1")
    A("s_cbranch_scc1 F_ku")
    mask_wait(A, 27, 8, 20, 21, 33, "-1", 34, sleep=0)
    A("F_ku:")
    A("buffer_load_dwordx4 v26, s[24:27], s29 offen sc1 lds")
    A("buffer_load_dwordx4 v26, s[24:27], s29 offen offset:1024 sc1 lds")
    A("s_waitcnt vmcnt(0)")
    A(f"ds_write_b128 v25, {vr(CAC,4)}")
    A("ds_write_b128 v24, v[16:19]")
    A("ds_write_b128 v24, v[20:23] offset:1024")
    lds_add1(A, 8, 9, C_CIN)
    tick(A, "kg_end")

CAC = 64
def conv_setup(A):
    return [
        "s_and_b32 s16, s15, 3",
        "s_lshr_b32 s17, s15, 2",
        "v_bfe_u32 v7, v1, 2, 3",
        "v_lshrrev_b32 v10, 5, v1",
        "v_add_u32 v7, v7, v10",
        "v_add_u32 v4, 3, v7",
        "v_bfe_u32 v4, v4, 1, 1",
        "v_xor_b32 v4, s17, v4",
        "v_lshlrev_b32 v4, 6, v4",
        "v_lshl_add_u32 v4, v7, 7, v4",
        "v_and_b32 v7, 3, v1",
        "v_lshl_add_u32 v4, v7, 4, v4",
        "s_lshl_b32 s35, s16, 10",
        f"s_add_u32 s36, s35, {L_U - 128 - 1280}",
        "v_add_u32 v5, s36, v4",
        f"s_sub_u32 s36, {L_U - 128 - 1280 + 7*1024}, s35",
        "v_add_u32 v4, s36, v4",
        "v_xor_b32 v13, 64, v4",
        "v_xor_b32 v14, 64, v5",
        "v_and_b32 v6, 16, v1",
        "v_lshlrev_b32 v6, 1, v6",
        "v_lshl_add_u32 v6, v7, 3, v6",
        "v_bfe_u32 v7, v1, 2, 2",
        "v_lshl_add_u32 v7, v10, 3, v7",
        "v_lshlrev_b32 v7, 3, v7",
        "v_sub_u32 v6, v6, v7",
        "s_mul_i32 s36, s17, 4608",
        f"s_add_u32 s36, s36, {L_KXA + 32}",
        "v_add_u32 v6, s36, v6",
    ] + [f"v_mov_b32 v{r}, 0" for r in range(CAC, CAC + 32)]

def conv(A):
    AC = CAC
    A("s_add_u32 s30, s16, 1")
    lds_wait(A, 8, C_CIN, 4, 10, 33, 34, sleep=1)
    A("s_setprio 2")
    tick(A, "conv_go")
    SB_ = lambda k: 16 + 12 * (k & 3)
    def rd(nn, both):
        b = SB_(nn)
        A(f"ds_read_b64_tr_b16 {vr(b,2)}, v6 offset:{nn*128 + 32}")
        A(f"ds_read_b64_tr_b16 {vr(b+2,2)}, v6 offset:{nn*128}")
        A(f"ds_read_b128 {vr(b+4,4)}, v{13 if nn & 1 else 4} offset:{(5-nn)*256}")
        if both: A(f"ds_read_b128 {vr(b+8,4)}, v{14 if nn & 1 else 5} offset:{(5-nn)*256}")
    def mm(nn, both):
        b = SB_(nn)
        A(mfma32(AC, b + 4, b))
        if both: A(mfma32(AC + 16, b + 8, b))
    rd(0, True); rd(1, True)
    A("F_c1:")
    A("s_sub_u32 s30, s30, 1")
    A("s_cmp_lg_u32 s30, 0")
    for nn in range(4):
        rd(nn + 2, True)
        A("s_waitcnt lgkmcnt(8)")
        mm(nn, True)
    A("v_add_u32 v6, 512, v6")
    for r in (4, 5, 13, 14): A(f"v_subrev_u32 v{r}, 1024, v{r}")
    A("s_cbranch_scc1 F_c1")
    A("s_lshl_b32 s30, s16, 1")
    A("s_sub_u32 s30, 7, s30")
    A("F_c2:")
    A("s_sub_u32 s30, s30, 1")
    A("s_cmp_lg_u32 s30, 0")
    for nn in range(4):
        rd(nn + 2, False)
        A("s_waitcnt lgkmcnt(6)")
        mm(nn, False)
    A("v_add_u32 v6, 512, v6")
    for r in (4, 13): A(f"v_subrev_u32 v{r}, 1024, v{r}")
    A("s_cbranch_scc1 F_c2")
    A("s_nop 6")
    A("s_waitcnt lgkmcnt(0)")
    tick(A, "conv_mm_end")
    T = 16
    def lvl(dst, src, add):
        for g in range(1, 4):
            for k in (1, 0):
                A(f"v_add_f32_dpp v{dst(k,g)}, v{src(k,g-1)}, v{add(k,g)} wave_ror:1 row_mask:0x1 bank_mask:0x1")
        for k in (1, 0):
            A(f"v_add_f32_dpp v{dst(k,0)}, v{src(k,0)}, v{add(k,0)} wave_shr:1 row_mask:0xf bank_mask:0xf bound_ctrl:0")
        for g in range(1, 4):
            for k in (1, 0):
                A(f"v_add_f32_dpp v{dst(k,g)}, v{src(k,g)}, v{add(k,g)} wave_shr:1 row_mask:0xf bank_mask:0xf")
    Z = lambda rho: (lambda k, g: AC + 16 * k + 4 * g + rho)
    TT = lambda k, g: T + 4 * k + g
    lvl(TT, Z(3), Z(2))
    lvl(Z(2), TT, Z(1))
    lvl(Z(1), Z(2), Z(0))
    for k in range(2):
        A(f"v_mov_b32 v{YK+4+4*k}, v{Z(2)(k,3)}")
        A(f"v_mov_b32 v{YK+5+4*k}, v{TT(k,3)}")
        A(f"v_mov_b32 v{YK+6+4*k}, v{Z(3)(k,3)}")
    for k in range(2):
        A(f"v_cvt_pk_bf16_f32 v{YK+2*k}, v{Z(1)(k,0)}, v{Z(1)(k,1)}")
        A(f"v_cvt_pk_bf16_f32 v{YK+1+2*k}, v{Z(1)(k,2)}, v{Z(1)(k,3)}")
    tick(A, "conv_st")

ACC = 80
SET = [16, 44]
GX, GWA, GST = 72, 74, 75
def gemm_setup(A):
    t = 16
    xaddr(A, GX, t)
    A(f"v_lshl_add_u32 v{t+10}, v{t+3}, 3, v{t+7}")
    A(f"v_lshlrev_b32 v{t+10}, 7, v{t+10}")
    A(f"v_lshrrev_b32 v{t+11}, 1, v{t+7}")
    A(f"v_and_b32 v{t+12}, 1, v{t+3}")
    A(f"v_lshl_or_b32 v{t+11}, v{t+12}, 1, v{t+11}")
    A(f"v_xor_b32 v{t+11}, s15, v{t+11}")
    A(f"v_lshl_add_u32 v{t+10}, v{t+11}, 5, v{t+10}")
    A(f"v_lshl_add_u32 v{t+10}, v{t+8}, 3, v{t+10}")
    A(f"v_add_u32 v{GWA}, {L_RING + 8192}, v{t+10}")
    A(f"v_lshl_add_u32 v{t+9}, v{t+12}, 2, v{t+9}")
    A(f"v_and_b32 v{t+10}, 32, v1")
    A(f"v_add_lshl_u32 v{GST}, v{t+9}, v{t+10}, 4")
    for r in range(ACC, ACC + 48): A(f"v_mov_b32 v{r}, 0")
    A("s_lshl2_add_u32 s33, s13, s15")
    A(f"s_lshl_b32 s40, s33, {FSH+3}")
    A("s_lshl_b32 s32, s33, 17" if not KVT else "s_lshl_b32 s32, s33, 12")
    A("s_lshl_b32 s38, s12, 12" if not KVT else "s_lshl_b32 s38, s12, 17")
    A("s_add_u32 s32, s32, s38")
    A("s_lshl_b32 s33, s33, 11")
    A("s_lshl_b32 s38, s12, 16")
    A("s_add_u32 s33, s33, s38")
    A(f"s_add_u32 s33, s33, {hex(F_Q)}")
    A(f"s_add_u32 s32, s32, {hex(F_KV)}")
    A(f"s_mov_b32 s38, {hex(QSCALE)}")
    A(f"s_mov_b32 s39, {hex(QSCALE)}")
    A(f"s_add_u32 s40, s40, {hex(F_F1)}")
    A("s_and_b32 s41, s12, 3")
    A("s_lshr_b32 s42, s12, 2")
    A("s_lshl3_add_u32 s41, s41, s42")
    A("s_mov_b32 s36, 4")

def gemm(A):
    gemm_setup(A)
    kgen_y(A)
    A("s_setprio 2")
    A("v_lshlrev_b32 v3, 4, v1")
    A("v_mov_b32 v8, 0")
    A("v_mov_b32 v9, 1")
    MORD = (1, 2, 0)
    def step(ks, st, par, mm=True, extra=None, late=()):
        b = SET[st]; c = SET[st ^ 1]; o = par * 32768
        rds = []
        for mat in MORD:
            for e in range(2):
                rds.append(f"ds_read_b64_tr_b16 {vr(b+16+4*mat+2*e,2)}, v{GWA} offset:{o + mat*8192 + ks*4096 + e*512}")
        for mt in range(4):
            rds.insert(4 + mt, f"ds_read_b128 {vr(b+4*mt,4)}, v{GX+ks} offset:{o + (mt&1)*512 + (mt>>1)*4096}")
        if extra: rds.append(extra)
        per = int(OPT.get("rpm", 2))
        late = list(late)
        n = 0
        for mat in MORD:
            for mt in range(4):
                d = ACC + 16 * mat + 4 * mt
                x = c + 4 * mt; w = c + 16 + 4 * mat
                for t in rds[per*n:per*n+per]: A(t)
                if per * n >= len(rds) and late:
                    for t in late.pop(0): A(t)
                n += 1
                if mm: A(mfma16(d, x, w) if mat == 2 else mfma16(d, w, x))
        for g in late:
            for t in g: A(t)
    A("v_mov_b32 v2, 0")
    mark_wait(A, 2, L_MK, 4, 34, 35, sleep=1)
    tick(A, "c0")
    step(0, 0, 0, mm=False, extra=f"ds_read_b128 v[4:7], v2 offset:{L_MK + 16}")
    A("s_branch F_gl1")
    for par in range(2):
        A(f"F_gw{par}:")
        mark_wait(A, 2, L_MK + 16 * par, 4, 34, 35)
        A(f"s_branch F_gc{par}")
    A(".p2align 3")
    A("F_gl:")
    for par in range(2):
        A("s_cmp_eq_u32 s37, 0")
        A("s_waitcnt lgkmcnt(0)")
        if par == 1: bar(A)
        else: A("s_nop 0")
        A(f"s_cbranch_scc1 F_gw{par}")
        A(f"F_gc{par}:")
        step(0, 0, par, extra=f"ds_read_b128 v[4:7], v2 offset:{L_MK + 16 * (par + 1)}")
        if par == 0: A("F_gl1:")
        A("s_waitcnt lgkmcnt(0)")
        A("s_sub_u32 s36, s36, 1" if par == 0 else "s_cmp_lg_u32 s36, 0")
        late = [["v_min3_u32 v4, v4, v5, v6"], ["v_min_u32 v4, v4, v7", "s_nop 0"], ["v_readfirstlane_b32 s37, v4", "s_nop 0"]]
        if par == 1:
            late += [[f"v_xor_b32 v{r}, 0x10000, v{r}"] for r in (GX, GX + 1, GWA)] + [["v_add_u32 v2, 32, v2", "s_nop 0"]]
        step(1, 1, par, late=late)
    A("s_cbranch_scc1 F_gl")
    A("s_waitcnt lgkmcnt(0)")
    c = SET[1]
    muls = [f"v_mul_f32 v{r}, s38, v{r}" for r in range(ACC, ACC + 16)]
    for mat in (0, 1, 2):
        for mt in range(4):
            d = ACC + 16 * mat + 4 * mt
            x = c + 4 * mt; w = c + 16 + 4 * mat
            A(mfma16(d, x, w) if mat == 2 else mfma16(d, w, x))
            if mat == 2:
                A(muls.pop(0)); A(muls.pop(0))
    tick(A, "g_mm_end")
    pad(A, "gemmend")
    PK = 16
    def pack(mat, dst):
        for mt in range(4):
            d = ACC + 16 * mat + 4 * mt
            A(f"v_cvt_pk_bf16_f32 v{dst+2*mt}, v{d}, v{d+1}")
            A(f"v_cvt_pk_bf16_f32 v{dst+2*mt+1}, v{d+2}, v{d+3}")
    def swaps(dst):
        for gp in range(2):
            A(f"v_permlane16_swap_b32 v{dst+4*gp}, v{dst+4*gp+2}")
            A(f"v_permlane16_swap_b32 v{dst+4*gp+1}, v{dst+4*gp+3}")
    pack(1, PK)
    A(muls.pop(0))
    swaps(PK)
    for gp in range(2):
        A(f"buffer_store_dwordx4 {vr(PK+4*gp,4)}, v{GST}, s[24:27], s32 offen offset:{gp*2048} sc1")
    pack(2, PK + 8)
    for gp in range(2):
        A(f"buffer_store_dwordx4 {vr(PK+8+4*gp,4)}, v3, s[24:27], s32 offen offset:{gp*2048+1024} sc1")
    for t in muls: A(t)
    pack(0, PK + 16)
    A("s_nop 0")
    swaps(PK + 16)
    for gp in range(2):
        A(f"buffer_store_dwordx4 {vr(PK+16+4*gp,4)}, v{GST}, s[24:27], s33 offen offset:{gp*1024} sc1")
    lds_add1(A, 8, 9, C_FR)
    tick(A, "g_st")
    for t in conv_setup(A): A(t)
    attn_setup(A)
    A(f"v_lshlrev_b32 v7, {FSH}, v1")
    A("v_lshlrev_b32 v10, s41, v9")
    A("s_waitcnt vmcnt(0)")
    mask_set(A, 10, 7, 40, 8)
    tick(A, "signaled")

SA, SB, OA, OB, QA, QB = 16, 32, 96, 112, 64, 68
FS = [72, 84]
VIDX, VK, VV0, VV1 = 2, 0, 11, 12
YK, MT = 48, 60
def pv(O, V, S):
    return f"v_smfmac_f32_32x32x32_bf16 {vr(O,16)}, {vr(V,4)}, {vr(S,8)}, v{VIDX}"

def attn_setup(A, mid=None):
    A("v_lshlrev_b32 v3, 4, v1")
    A("s_and_b32 s88, s11, 3")
    A("s_lshl2_add_u32 s88, s10, s88")
    A("s_lshr_b32 s89, s11, 2")
    A("s_and_b32 s90, s15, 3")
    A("s_lshr_b32 s91, s15, 2")
    A("s_lshl2_add_u32 s92, s89, s90")
    A("s_lshl_b32 s92, s92, 16")
    A("s_lshl_b32 s93, s88, 11")
    A("s_add_u32 s92, s92, s93")
    A(f"s_add_u32 s92, s92, {hex(F_Q)}")
    A(f"s_mul_i32 s93, s91, {32*KVS}")
    A(f"s_add_u32 s93, s93, {L_KV}")
    A("v_and_b32 v7, 31, v1")
    A("v_lshrrev_b32 v10, 5, v1")
    A(f"v_add_u32 v{VK}, s93, v3")
    A("v_lshlrev_b32 v10, 8, v10")
    A("v_lshl_add_u32 v10, v7, 4, v10")
    A("v_add_u32 v10, 1024, v10")
    A(f"v_and_b32 v{VV0}, 27, v7")
    A(f"v_cmp_eq_u32 vcc, 16, v{VV0}")
    A(f"v_mov_b32 v{VV1}, 2064")
    A(f"v_mov_b32 v{VV0}, 2048")
    A(f"v_cndmask_b32 v{VV1}, v{VV1}, v{VV0}, vcc")
    A("v_cmp_gt_u32 vcc, 16, v7")
    A("v_add_u32 v7, 512, v10")
    A(f"v_mov_b32 v{VIDX}, 0xdddddddd")
    A(f"v_cndmask_b32 v{VV0}, v{VV1}, v10, vcc")
    A(f"v_cndmask_b32 v{VV1}, v{VV1}, v7, vcc")
    A(f"v_add_u32 v{VV0}, s93, v{VV0}")
    A(f"v_add_u32 v{VV1}, s93, v{VV1}")
    if mid: mid()
    for r in range(OA, OA + 32): A(f"v_mov_b32 v{r}, 0")

def attention(A):
    A("s_lshl_b32 s36, s90, 11")
    A("v_add_u32 v10, s36, v3")
    A("s_lshl_b32 s36, s91, 4")
    A("v_mov_b32 v4, s36")
    A("s_setprio 1")
    mark_wait(A, 4, L_S1, MT, 36, 37)
    A(f"ds_read_b128 {vr(QA,4)}, v10 offset:{L_Q}")
    A(f"ds_read_b128 {vr(FS[0],4)}, v{VK}")
    A(f"ds_read_b128 {vr(QB,4)}, v10 offset:{L_Q + 1024}")
    A(f"ds_read_b128 {vr(FS[0]+4,4)}, v{VV0}")
    A("s_mov_b32 s36, 0")
    A("s_mov_b32 s37, 0")
    A("s_waitcnt lgkmcnt(2)")
    tick(A, "attn_go")
    pad(A, "attn")
    A(mfma32(SA, FS[0], QA, "0"))
    A("s_cmp_lg_u32 s36, 0")
    A("s_nop 7")
    A("s_nop 1")
    A("s_waitcnt lgkmcnt(0)")
    A(f"v_exp_f32 v{SA}, v{SA}")
    A(f"v_exp_f32 v{SA+1}, v{SA+1}")
    A("s_branch F_al1")
    def E(S, a, b):
        for i in range(a, b): A(f"v_exp_f32 v{S+i}, v{S+i}")
    A(".p2align 3")
    A("F_al:")
    A("s_sub_u32 s36, s36, 1")
    A("s_cmp_lg_u32 s36, 0")
    U = 4
    for t in range(U):
        cur, oth = FS[t & 1], FS[(t & 1) ^ 1]
        E(SA, 0, 2)
        A(pv(OB, oth + 8, SB + 8))
        if t == 0: A("F_al1:")
        A(f"ds_read_b128 {vr(cur+8,4)}, v{VV1} offset:{t*KVS}")
        A(f"ds_read_b128 {vr(oth,4)}, v{VK} offset:{(t+1)*KVS}")
        E(SA, 2, 6)
        A(mfma32(SB, cur, QB, "0"))
        A(f"ds_read_b128 {vr(oth+4,4)}, v{VV0} offset:{(t+1)*KVS}")
        if t == U - 1:
            for r in (VK, VV0, VV1): A(f"v_add_u32 v{r}, {U*KVS}, v{r}")
        E(SA, 6, 12)
        A(pv(OA, cur + 4, SA))
        E(SA, 12, 16)
        A("s_waitcnt lgkmcnt(0)")
        E(SB, 0, 1)
        A(pv(OA, cur + 8, SA + 8))
        E(SB, 1, 5)
        A(mfma32(SA, oth, QA, "0"))
        E(SB, 5, 11)
        A(pv(OB, cur + 4, SB))
        A(f"v_exp_f32_e64 v{SB+11}, v{SB+11}")
        E(SB, 12, 16)
    A("s_cbranch_scc1 F_al")
    A("s_add_u32 s37, s37, 1")
    A("s_cmp_eq_u32 s37, 6")
    A("s_cbranch_scc1 F_aend")
    A("s_cmp_eq_u32 s37, 1")
    A("s_cbranch_scc0 F_ev2")
    tick(A, "it1")
    mark_wait(A, 8, L_S2, MT, 38, 39, sleep=1)
    A("s_mov_b32 s36, 1")
    A("v_lshlrev_b32 v7, 3, v1")
    A("s_lshl1_add_u32 s20, s2, s17")
    A("s_lshl_b32 s18, s20, 12")
    A(f"s_add_u32 s18, s18, {hex(F_YA)}")
    A("s_lshl_b32 s22, s16, 9")
    A("s_add_u32 s19, s18, s22")
    A("s_add_u32 s18, s18, 3584")
    A("s_sub_u32 s18, s18, s22")
    A("s_lshl_b32 s20, s20, 7")
    A(f"s_add_u32 s20, s20, {hex(F_YC)}")
    A("s_lshl_b32 s22, s16, 4")
    A("s_add_u32 s21, s20, s22")
    A("s_add_u32 s20, s20, 112")
    A("s_sub_u32 s20, s20, s22")
    for k in range(2):
        A(f"buffer_store_dwordx2 {vr(YK+2*k,2)}, v7, s[24:27], s{18+k} offen sc1")
    A("s_mov_b32 exec_lo, 0")
    A("s_mov_b32 exec_hi, 0x80000000")
    for k in range(2):
        A(f"buffer_store_dwordx4 {vr(YK+4+4*k,4)}, v8, s[24:27], s{20+k} offen sc1")
    A("s_mov_b64 exec, -1")
    A("s_branch F_al")
    A("F_ev2:")
    A("s_cmp_eq_u32 s37, 2")
    A("s_cbranch_scc0 F_ev2b")
    A("s_waitcnt vmcnt(0)")
    def setf2():
        A("s_lshr_b32 s40, s2, 5")
        A(f"s_lshl_b32 s40, s40, {FSH}")
        A(f"s_add_u32 s40, s40, {hex(F_F2)}")
        A(f"v_lshlrev_b32 v7, {FSH+3}, v1")
        A("v_lshlrev_b32 v6, s2, v9")
        mask_set(A, 6, 7, 40, 32)
    signal_last(A, 8, 9, 6, 38, C_YA2, 8, setf2)
    A("s_mov_b32 s36, 3")
    A("s_branch F_al")
    A("F_ev2b:")
    A("s_cmp_eq_u32 s37, 3")
    A("s_cbranch_scc0 F_ev3")
    mark_wait(A, 8, L_S3, MT, 38, 39, sleep=1)
    A("s_lshl_b32 s38, s90, 12")
    A(f"s_add_u32 s38, s38, {L_XCH}")
    A("v_add_u32 v10, s38, v3")
    A("s_lshl_b32 s38, s90, 9")
    A(f"s_add_u32 s38, s38, {L_LX}")
    A("v_lshl_add_u32 v5, v1, 2, s38")
    A("s_lshl_b32 s38, s90, 2")
    A("v_mov_b32 v13, s38")
    if OPT.get("drop6", "0") == "1":
        A("s_add_u32 s36, s91, 1")
        A("s_add_u32 s37, s37, s91")
    else:
        A("s_mov_b32 s36, 2")
        A("s_add_u32 s37, s37, 1")
    A("s_lshl2_add_u32 s40, s89, s90")
    A(f"s_lshl_b32 s40, s40, {FSH+3}")
    A(f"s_add_u32 s40, s40, {hex(F_F3)}")
    A("s_mov_b32 s42, 0x17800000")
    A("s_mov_b32 s43, 0x50000000")
    A("s_branch F_al")
    A("F_ev3:")
    A("s_setprio 0")
    A("s_mov_b32 s36, 1")
    A("s_cmp_eq_u32 s37, 4")
    A("s_cbranch_scc1 F_al")
    tick(A, "it7")
    A("s_cmp_eq_u32 s91, 0")
    A("s_cbranch_scc0 F_em")
    lds_add1(A, 8, 9, C_FREE)
    A("s_branch F_al")
    A("F_em:")
    A(f"ds_read_b32 v6, v13 offset:{C_PAIR}")
    A("s_waitcnt lgkmcnt(0)")
    A("v_readfirstlane_b32 s41, v6")
    A("s_nop 0")
    A("s_cmp_eq_u32 s41, 0")
    A("s_cbranch_scc1 F_al")
    A("F_mg:")
    A("ds_read2st64_b32 v[6:7], v5 offset0:0 offset1:1")
    for q in range(4): A(f"ds_read_b128 {vr(YK+4*q,4)}, v10 offset:{q*1024}")
    A("s_waitcnt lgkmcnt(2)")
    A(f"v_add_f32 v{OA+8}, v{OA+8}, v6")
    for r in range(8): A(f"v_add_f32 v{OA+r}, v{OA+r}, v{YK+r}")
    A("s_waitcnt lgkmcnt(0)")
    A(f"v_add_f32 v{OB+8}, v{OB+8}, v7")
    for r in range(8): A(f"v_add_f32 v{OB+r}, v{OB+r}, v{YK+8+r}")
    A("s_cmp_eq_u32 s37, 5")
    A("s_cbranch_scc1 F_al")
    A("s_branch F_x2")
    A("F_aend:")
    tick(A, "it8")
    A(pv(OB, FS[1] + 8, SB + 8))
    A("s_cmp_eq_u32 s91, 0")
    A("s_cbranch_scc0 F_x1")
    lds_wait(A, 8, C_FREE, 4, 6, 38, 39)
    A(f"ds_write_b128 v10, {vr(OA,4)}")
    A(f"ds_write_b128 v10, {vr(OA+4,4)} offset:1024")
    A("s_nop 1")
    A(f"ds_write_b128 v10, {vr(OB,4)} offset:2048")
    A(f"ds_write_b128 v10, {vr(OB+4,4)} offset:3072")
    A(f"ds_write2st64_b32 v5, v{OA+8}, v{OB+8} offset0:0 offset1:1")
    lds_add1(A, 13, 9, C_PAIR)
    A("s_waitcnt lgkmcnt(0)")
    dump(A)
    A("s_endpgm")
    A("F_x1:")
    A("s_cmp_lg_u32 s41, 0")
    A("s_cbranch_scc1 F_x2")
    lds_wait(A, 13, C_PAIR, 1, 6, 38, 39, sleep=0)
    A("s_branch F_mg")
    A("F_x2:")
    A(f"v_rcp_f32 v6, v{OA+8}")
    A("s_nop 0")
    for r in range(8): A(f"v_mul_f32 v{OA+r}, v{OA+r}, v6")
    A(f"v_rcp_f32 v14, v{OB+8}")
    for p in range(4): A(f"v_cvt_pk_bf16_f32 v{SB+p}, v{OA+2*p}, v{OA+2*p+1}")
    A(f"buffer_store_dwordx4 {vr(SB,4)}, v3, s[24:27], s92 offen sc1")
    for r in range(8): A(f"v_mul_f32 v{OB+r}, v{OB+r}, v14")
    for p in range(4): A(f"v_cvt_pk_bf16_f32 v{SB+4+p}, v{OB+2*p}, v{OB+2*p+1}")
    A(f"buffer_store_dwordx4 {vr(SB+4,4)}, v3, s[24:27], s92 offen offset:1024 sc1")
    tick(A, "o_st")
    if OPT.get("eb", "2") == "1": A("s_barrier")
    for r in range(8):
        A(f"v_fma_f32 v{OA+8}, v{OA+r}, 0, v{OA+8}")
        A(f"v_fma_f32 v{OB+8}, v{OB+r}, 0, v{OB+8}")
    A(f"v_subrev_u32 v7, s42, v{OA+8}")
    A(f"v_subrev_u32 v6, s42, v{OB+8}")
    A("v_max_u32 v7, v7, v6")
    A("v_cmp_gt_u32 vcc, s43, v7")
    A("s_nop 0")
    A("s_cmp_eq_u64 vcc, -1")
    A("s_cbranch_scc0 F_slow")
    A("F_pub:")
    pad(A, "ostore")
    A(f"v_lshlrev_b32 v7, {FSH}, v1")
    A("v_lshlrev_b32 v6, s88, v9")
    A("s_waitcnt vmcnt(0)")
    mask_set(A, 6, 7, 40, 8)
    tick(A, "o_fl")
    if OPT.get("eb", "2") == "2": A("s_barrier")
    dump(A, nowait=True)
    A("s_endpgm")
    A("F_slow:")
    A("s_mov_b32 s37, 2")
    A("F_slow0:")
    A("s_lshl_b32 s35, s88, 12")
    A(f"s_add_u32 s35, s35, {hex(F_KV)}")
    A("v_mov_b32 v6, 0xff800000")
    A("s_mov_b32 s36, s35")
    A("s_mov_b32 s41, 64")
    A("F_slow1:")
    A(f"buffer_load_dwordx4 {vr(FS[0],4)}, v3, s[24:27], s36 offen sc1")
    A("s_bitcmp1_b32 s41, 0")
    A(f"s_cselect_b32 s38, {hex(131072 - 4096)}, 0")
    A("s_add_u32 s36, s36, s38")
    A("s_add_u32 s36, s36, 2048")
    A("s_waitcnt vmcnt(0)")
    A(mfma32(SA, FS[0], QA, "0"))
    A("s_nop 7")
    A("s_nop 3")
    for r in range(0, 16, 2): A(f"v_max3_f32 v6, v6, v{SA+r}, v{SA+r+1}")
    A("s_sub_u32 s41, s41, 1")
    A("s_cmp_lg_u32 s41, 0")
    A("s_cbranch_scc1 F_slow1")
    A("v_mov_b32 v13, v6")
    A("s_nop 1")
    A("v_permlane32_swap_b32 v6, v13")
    A("s_nop 1")
    A("v_max_f32 v14, v6, v13")
    for r in range(16): A(f"v_mov_b32 v{OA+r}, 0")
    for r in range(4, 12): A(f"v_mov_b32 v{FS[0]+r}, 0x3f803f80")
    A("v_and_b32 v10, 15, v1")
    A("v_lshrrev_b32 v5, 5, v1")
    A("v_lshlrev_b32 v5, 8, v5")
    A("v_lshl_add_u32 v10, v10, 4, v5")
    A("s_mov_b32 s41, 64")
    A("F_slow2:")
    A(f"buffer_load_dwordx4 {vr(FS[0],4)}, v3, s[24:27], s35 offen sc1")
    A("s_mov_b32 exec_lo, 0xffff")
    A("s_mov_b32 exec_hi, 0xffff")
    A(f"buffer_load_dwordx4 {vr(FS[0]+4,4)}, v10, s[24:27], s35 offen offset:1024 sc1")
    A(f"buffer_load_dwordx4 {vr(FS[0]+8,4)}, v10, s[24:27], s35 offen offset:1536 sc1")
    A("s_mov_b64 exec, -1")
    A("s_bitcmp1_b32 s41, 0")
    A(f"s_cselect_b32 s38, {hex(131072 - 4096)}, 0")
    A("s_add_u32 s35, s35, s38")
    A("s_add_u32 s35, s35, 2048")
    A("s_waitcnt vmcnt(0)")
    A(mfma32(SA, FS[0], QA, "0"))
    A("s_nop 7")
    A("s_nop 3")
    for r in range(16): A(f"v_sub_f32 v{SA+r}, v{SA+r}, v14")
    for r in range(16): A(f"v_exp_f32 v{SA+r}, v{SA+r}")
    A("s_nop 1")
    A(pv(OA, FS[0] + 4, SA))
    A(pv(OA, FS[0] + 8, SA + 8))
    A("s_sub_u32 s41, s41, 1")
    A("s_cmp_lg_u32 s41, 0")
    A("s_nop 7")
    A("s_nop 3")
    A("s_cbranch_scc1 F_slow2")
    A(f"v_rcp_f32 v6, v{OA+8}")
    for r in range(4): A(f"v_mov_b32 v{QA+r}, v{QB+r}")
    for r in range(8): A(f"v_mul_f32 v{OA+r}, v{OA+r}, v6")
    for p in range(4): A(f"v_cvt_pk_bf16_f32 v{SB+p}, v{OA+2*p}, v{OA+2*p+1}")
    A(f"buffer_store_dwordx4 {vr(SB,4)}, v3, s[24:27], s92 offen sc1")
    A("s_add_u32 s92, s92, 1024")
    A("s_sub_u32 s37, s37, 1")
    A("s_cmp_lg_u32 s37, 0")
    A("s_cbranch_scc1 F_slow0")
    A("s_branch F_pub")
```

```python
NAME = "gated_mix__ssm_conv_s4__softmax_full_mha__prompt"

WS_QKV = 0
WS_Q = 0
WS_K = 2 << 20
WS_V = 4 << 20
WS_UT = 6 << 20
WS_KX = 8 << 20
WS_O = 10 << 20
WS_YA = 12 << 20
WS_G = 14 << 20
WS_SIZE = 16 << 20

KA = dict(u=0, Are=8, Aim=16, Bre=24, Bim=32, Cre=40, Cim=48, logdt=56, Dskip=64, x=72, wqkv=80, wo=88, gw=96, out=104, dbg=112, ws=120)

class Asm:
    def __init__(self):
        self.l = []
    def __call__(self, s):
        for t in s.split("\n"):
            t = t.strip()
            if t: self.l.append(t if t.endswith(":") or t.startswith(".") else "  " + t)
    def text(self):
        return "\n".join(self.l) + "\n"

def vr(a, n):
    return f"v[{a}:{a+n-1}]" if n > 1 else f"v{a}"
def sr(a, n):
    return f"s[{a}:{a+n-1}]" if n > 1 else f"s{a}"

def srd(A, d, base, nbytes):
    A(f"s_mov_b32 s{d}, s{base}")
    A(f"s_mov_b32 s{d+1}, s{base+1}")
    A(f"s_mov_b32 s{d+2}, {hex(nbytes)}")
    A(f"s_mov_b32 s{d+3}, 0x20000")

def kernel_head(A, name):
    A(f".globl {name}")
    A(".p2align 8")
    A(f".type {name},@function")
    A(f"{name}:")

def kernel_desc(A, name, vgpr, sgpr=96):
    acc = (vgpr + 3) // 4 * 4
    A(".p2align 6")
    A(f".amdhsa_kernel {name}")
    for t in (f".amdhsa_next_free_vgpr {vgpr}", f".amdhsa_next_free_sgpr {sgpr}", f".amdhsa_accum_offset {acc}",
              ".amdhsa_group_segment_fixed_size 0", ".amdhsa_kernarg_size 128", ".amdhsa_user_sgpr_count 2",
              ".amdhsa_user_sgpr_kernarg_segment_ptr 1", ".amdhsa_system_sgpr_workgroup_id_x 1",
              ".amdhsa_float_denorm_mode_32 3"):
        A.l.append("  " + t)
    A(".end_amdhsa_kernel")

def mfma32(D, Aop, Bop, C=None):
    c = vr(D, 16) if C is None else (C if isinstance(C, str) else vr(C, 16))
    return f"v_mfma_f32_32x32x16_bf16 {vr(D,16)}, {vr(Aop,4)}, {vr(Bop,4)}, {c}"

def swap23(A, dst, src, t0, t1):
    A(f"v_and_b32 v{dst}, 0x13, v{src}")
    A(f"v_and_b32 v{t0}, 4, v{src}")
    A(f"v_and_b32 v{t1}, 8, v{src}")
    A(f"v_lshl_or_b32 v{dst}, v{t0}, 1, v{dst}")
    A(f"v_lshrrev_b32 v{t1}, 1, v{t1}")
    A(f"v_or_b32 v{dst}, v{dst}, v{t1}")

STAMPS = [False]
WS_ST = 32 << 20
NAMES = {}
def tick(A, name):
    if not STAMPS[0]: return
    i = NAMES.setdefault(name, len(NAMES) + 1)
    A("s_cselect_b32 s70, 1, 0")
    A("s_memtime s[64:65]")
    A("s_memrealtime s[66:67]")
    A("s_waitcnt lgkmcnt(0)")
    A("s_and_b32 s66, s66, 0xffffff")
    A(f"s_or_b32 s66, s66, {hex(i << 24)}")
    A("s_mov_b32 s71, m0")
    A("s_mov_b32 m0, s68")
    A("v_writelane_b32 v15, s64, m0")
    A("s_add_u32 m0, s68, 1")
    A("s_add_u32 s68, s68, 2")
    A("v_writelane_b32 v15, s66, m0")
    A("s_mov_b32 m0, s71")
    A("s_cmp_lg_u32 s70, 0")
def stamp(A, idx): pass
def dump(A, kidx=0, n=0, wave_sgpr="s63", nowait=False):
    if not STAMPS[0]: return
    if not nowait: A("s_waitcnt vmcnt(0)")
    tick(A, "end")
    A("s_lshl_b32 s60, s2, 4")
    A(f"s_add_u32 s60, s60, {wave_sgpr}")
    A("s_lshl_b32 s60, s60, 8")
    A(f"s_add_u32 s60, s60, {hex(WS_ST)}")
    A("v_lshl_add_u32 v0, v1, 2, s60")
    A("global_store_dword v0, v15, s[8:9]")
def entry_stamp(A):
    if STAMPS[0]:
        A("s_memtime s[56:57]")
        A("s_memrealtime s[58:59]")
def entry_log(A):
    if STAMPS[0]:
        i = NAMES.setdefault("entry", len(NAMES) + 1)
        A("s_and_b32 s58, s58, 0xffffff")
        A(f"s_or_b32 s58, s58, {hex(i << 24)}")
        A("v_writelane_b32 v15, s56, 0")
        A("v_writelane_b32 v15, s58, 1")
def savewave(A):
    if STAMPS[0]:
        A("s_mov_b32 s63, s15")
        A("s_mov_b32 s68, 2")
        A("v_mov_b32 v15, 0")
def bar(A, name="bar"):
    import os
    if os.environ.get("BARTICK"): tick(A, name + "<")
    A("s_barrier")

PAD = [None, 0]
def pad_init(A):
    if PAD[0] is not None: A("s_memrealtime s[56:57]")
def pad(A, point):
    if PAD[0] != point: return
    import random
    l = "PD%d" % random.randrange(1 << 30)
    A(f"{l}:")
    A("s_memrealtime s[58:59]")
    A("s_waitcnt lgkmcnt(0)")
    A("s_sub_u32 s58, s58, s56")
    A(f"s_cmp_lt_u32 s58, {PAD[1]}")
    A(f"s_cbranch_scc1 {l}")
```

```python
from common import *
import math, struct

def f32hex(x): return hex(struct.unpack("<I", struct.pack("<f", x))[0])
LOG2E = 0x3fb8aa3b
QSCALE = 0x3eb8aa3b

def reg(i): return (i << 21) + ((i + 1) << 12)
F_Q = reg(0)
F_KV = reg(1)
F_UT = reg(3)
F_YA = reg(4)
F_FL = reg(5)
NCLR = 4
F_F1 = F_FL + 4
F_F2 = F_FL + 8
F_F3 = F_FL + 12
F_YC = F_FL + (1088 << 10)
F_O = F_Q
FWS = 12 << 20
HOLES = [0, (1 << 21) + (1 << 12), (3 << 21) + (2 << 12), (4 << 21) + (4 << 12), (5 << 21) + (5 << 12)]

L_CNT = 0
C_QKV, C_KV1, C_KV2, C_CARRY, C_YA, C_FREE, C_O, C_RING, C_PAIR, C_F1, C_CIN, C_YA2 = 0, 4, 8, 12, 16, 20, 24, 28, 32, 48, 52, 56
C_FULL, C_FR, C_KX, C_ANN, C_UT, C_ISS, C_TAB, C_CAR2 = 64, 96, 60, 28, 672, 676, 680, 688
L_G = 128
L_S1, L_S2, L_S3, L_SU = 384, 416, 432, 464
L_MK = 576
C_WO = 448
C_GO = 452
L_TAB = 768
TABW = 9216
L_U = L_TAB + 1024
L_KXA = L_TAB + 9216 + 512
ROW = 272
L_RING = 32768
L_Q = L_TAB + 2 * TABW
L_KV = L_Q + 8192
KVS = 2080
L_WO = 1024
L_XCH = 66560
L_LX = L_KV + 64 * KVS
L_O = 98304
F_LDS = 163840
SPIN = 200000
import os
OPT = dict(kv.split('=') for kv in os.environ.get('FOPT', '').split(',') if kv)
PM = OPT.get("pm", "sc1").replace("+", " ")
FM = OPT.get("fm", "sc1").replace("+", " ")
FSH = int(OPT.get("fsh", 7))
KVT = True
NPF = int(OPT.get('npf', 5 if not STAMPS[0] else 7))

class G:
    n = 0
def lab(p):
    G.n += 1
    return f"{p}{G.n}"

def lds_wait(A, addr_v, off, target, tmp_v, tmp_s, cnt_s, sleep=1, pre=False):
    l = lab("LW"); d = lab("LD")
    if pre:
        A(f"v_readfirstlane_b32 s{tmp_s}, v{tmp_v}")
        A(f"s_mov_b32 s{cnt_s}, 0")
        A(f"s_cmp_ge_u32 s{tmp_s}, {target}")
        A(f"s_cbranch_scc1 {d}")
    else:
        A(f"s_mov_b32 s{cnt_s}, 0")
    A(f"{l}:")
    A(f"ds_read_b32 v{tmp_v}, v{addr_v} offset:{off}")
    A("s_waitcnt lgkmcnt(0)")
    A(f"v_readfirstlane_b32 s{tmp_s}, v{tmp_v}")
    A(f"s_add_u32 s{cnt_s}, s{cnt_s}, 1")
    A(f"s_cmp_ge_u32 s{tmp_s}, {target}")
    A(f"s_cbranch_scc1 {d}")
    if sleep: A(f"s_sleep {sleep}")
    A(f"s_cmp_lt_u32 s{cnt_s}, {hex(SPIN * 8)}")
    A(f"s_cbranch_scc1 {l}")
    A(f"{d}:")

def mask_read(A, tmp_v, zero_v, addr_s, dst_s):
    A("s_mov_b64 exec, 1")
    A(f"v_mov_b32 v{tmp_v}, 0")
    A(f"buffer_atomic_or v{tmp_v}, v{zero_v}, s[24:27], s{addr_s} offen sc0 sc1")
    A("s_waitcnt vmcnt(0)")
    A(f"v_readfirstlane_b32 s{dst_s}, v{tmp_v}")
    A("s_mov_b64 exec, -1")

def mask_wait(A, tmp_v, zero_v, addr_s, dst_s, cnt_s, want, tmp_s, sleep=1):
    l = lab("KW"); d = lab("KD")
    A(f"s_mov_b32 s{cnt_s}, 0")
    A(f"{l}:")
    mask_read(A, tmp_v, zero_v, addr_s, dst_s)
    A(f"s_andn2_b32 s{tmp_s}, {want}, s{dst_s}")
    A(f"s_cbranch_scc0 {d}")
    if sleep: A(f"s_sleep {sleep}")
    A(f"s_add_u32 s{cnt_s}, s{cnt_s}, 1")
    A(f"s_cmp_lt_u32 s{cnt_s}, {hex(SPIN)}")
    A(f"s_cbranch_scc1 {l}")
    A(f"s_mov_b32 s{dst_s}, -1")
    A(f"{d}:")

def mask_wait_p(A, regs, zero_v, addr_s, dst_s, cnt_s, want, tmp_s, gap):
    l = lab("KW"); d = lab("KD"); D = len(regs)
    A(f"s_mov_b32 s{cnt_s}, 0")
    A("s_mov_b64 exec, 1")
    for r in regs[:-1]:
        A(f"v_mov_b32 v{r}, 0")
        A(f"buffer_atomic_or v{r}, v{zero_v}, s[24:27], s{addr_s} offen sc0 sc1")
        if isinstance(gap, list):
            A("s_mov_b64 exec, -1")
            gap.pop(0)()
            A("s_mov_b64 exec, 1")
        else: A(f"s_sleep {gap}")
    A(f"{l}:")
    for i in range(D):
        r = regs[(i - 1) % D]
        A(f"v_mov_b32 v{r}, 0")
        A(f"buffer_atomic_or v{r}, v{zero_v}, s[24:27], s{addr_s} offen sc0 sc1")
        A(f"s_waitcnt vmcnt({D-1})")
        A(f"v_readfirstlane_b32 s{dst_s}, v{regs[i]}")
        A("s_nop 0")
        A(f"s_andn2_b32 s{tmp_s}, {want}, s{dst_s}")
        A(f"s_cbranch_scc0 {d}")
    A(f"s_add_u32 s{cnt_s}, s{cnt_s}, 1")
    A(f"s_cmp_lt_u32 s{cnt_s}, {hex(SPIN)}")
    A(f"s_cbranch_scc1 {l}")
    A(f"s_mov_b32 s{dst_s}, -1")
    A(f"{d}:")
    A("s_mov_b64 exec, -1")

def mask_set(A, bit_v, off_v, addr_s, lanes):
    A(f"s_mov_b64 exec, {hex((1 << lanes) - 1)}" if lanes < 32 else "s_mov_b32 exec_hi, 0")
    A(f"buffer_atomic_or v{bit_v}, v{off_v}, s[24:27], s{addr_s} offen sc1")
    A("s_mov_b64 exec, -1")

def flag_wait(A, voff, soff, tmp_v, cnt_s, srd_="s[24:27]", sleep=1, lanes=0):
    l = lab("FW"); d = lab("FD")
    A(f"s_mov_b32 s{cnt_s}, 0")
    A(f"{l}:")
    A(f"buffer_load_dword v{tmp_v}, v{voff}, {srd_}, {soff} offen sc1")
    A("s_waitcnt vmcnt(0)")
    A(f"v_cmp_eq_u32 vcc, 1, v{tmp_v}")
    A(f"s_add_u32 s{cnt_s}, s{cnt_s}, 1")
    A("s_cmp_eq_u64 vcc, -1")
    A(f"s_cbranch_scc1 {d}")
    if sleep: A(f"s_sleep {sleep}")
    A(f"s_cmp_lt_u32 s{cnt_s}, {hex(SPIN)}")
    A(f"s_cbranch_scc1 {l}")
    A(f"{d}:")

def mark_wait(A, zero_v, off, tmp4, tmp_s, cnt_s, sleep=0, pre=False):
    l = lab("MW"); d = lab("MD")
    if pre:
        A(f"v_min3_u32 v{tmp4}, v{tmp4}, v{tmp4+1}, v{tmp4+2}")
        A(f"v_min_u32 v{tmp4}, v{tmp4}, v{tmp4+3}")
        A(f"s_mov_b32 s{cnt_s}, 0")
        A(f"v_readfirstlane_b32 s{tmp_s}, v{tmp4}")
        A("s_nop 0")
        A(f"s_cmp_lg_u32 s{tmp_s}, 0")
        A(f"s_cbranch_scc1 {d}")
    else:
        A(f"s_mov_b32 s{cnt_s}, 0")
    A(f"{l}:")
    A(f"ds_read_b128 {vr(tmp4,4)}, v{zero_v} offset:{off}")
    A("s_waitcnt lgkmcnt(0)")
    A(f"v_min3_u32 v{tmp4}, v{tmp4}, v{tmp4+1}, v{tmp4+2}")
    A(f"v_min_u32 v{tmp4}, v{tmp4}, v{tmp4+3}")
    A(f"s_add_u32 s{cnt_s}, s{cnt_s}, 1")
    A(f"v_readfirstlane_b32 s{tmp_s}, v{tmp4}")
    A("s_nop 0")
    A(f"s_cmp_lg_u32 s{tmp_s}, 0")
    A(f"s_cbranch_scc1 {d}")
    if sleep: A(f"s_sleep {sleep}")
    A(f"s_cmp_lt_u32 s{cnt_s}, {hex(SPIN * 8)}")
    A(f"s_cbranch_scc1 {l}")
    A(f"{d}:")

def mark(A, off, lw4_s, zero_v):
    A(f"s_add_u32 m0, s{lw4_s}, {off}")
    A("s_mov_b64 exec, 1")
    A(f"buffer_load_dword v{zero_v}, s[16:19], 0 offen sc1 lds")
    A("s_mov_b64 exec, -1")

def lds_add1(A, zero_v, one_v, off):
    A("s_mov_b64 exec, 1")
    A(f"ds_add_u32 v{zero_v}, v{one_v} offset:{off}")
    A("s_mov_b64 exec, -1")

def signal_last(A, zero_v, one_v, tmp_v, tmp_s, off, n, setter):
    sk = lab("SG")
    A("s_mov_b64 exec, 1")
    A(f"ds_add_rtn_u32 v{tmp_v}, v{zero_v}, v{one_v} offset:{off}")
    A("s_waitcnt lgkmcnt(0)")
    A(f"v_readfirstlane_b32 s{tmp_s}, v{tmp_v}")
    A("s_nop 0")
    A(f"s_cmp_eq_u32 s{tmp_s}, {n-1}")
    A("s_mov_b64 exec, -1")
    A(f"s_cbranch_scc0 {sk}")
    setter()
    A(f"{sk}:")

def mfma16(D, Aop, Bop):
    return f"v_mfma_f32_16x16x32_bf16 {vr(D,4)}, {vr(Aop,4)}, {vr(Bop,4)}, {vr(D,4)}"

def gen_fused(A, name):
    kernel_head(A, name)
    A("F_start:")
    pad_init(A)
    entry_stamp(A)
    npf = int(OPT.get('npf', 6 if STAMPS[0] else 5))
    A("s_load_dwordx16 s[72:87], s[0:1], 0")
    A("s_load_dwordx16 s[40:55], s[0:1], 64")
    A("v_lshrrev_b32 v2, 6, v0")
    A("s_cmp_ge_u32 s2, 256")
    A("v_readfirstlane_b32 s15, v2")
    A("s_cbranch_scc1 F_done")
    A("v_and_b32 v1, 63, v0")
    A("s_sub_u32 s15, s15, 1")
    A("s_cbranch_scc0 F_role")
    A(f"s_cmp_lt_u32 s2, {8*npf}")
    A("s_cbranch_scc0 F_pf1")
    A("s_getpc_b64 s[30:31]")
    A("s_lshr_b32 s32, s2, 3")
    A("s_lshl_b32 s32, s32, 12")
    A("v_lshl_add_u32 v2, v1, 6, s32")
    A("global_load_dword v3, v2, s[30:31]")
    A("F_pf1:")
    A("v_lshlrev_b32 v2, 4, v1")
    for r in range(4, 8): A(f"v_mov_b32 v{r}, 0")
    A("s_mov_b32 exec_hi, 0xf")
    A("ds_write_b128 v2, v[4:7]")
    A("s_mov_b32 exec_hi, -1")
    A(f"v_lshlrev_b32 v2, {FSH}, v1")
    A(f"s_lshl_b32 s33, s2, {FSH+6}")
    A(f"s_add_u32 s33, s33, {hex(F_FL)}")
    A("v_add_u32 v2, s33, v2")
    A(f"s_cmp_lt_u32 s2, {NCLR}")
    A("s_waitcnt lgkmcnt(0)")
    A("s_cbranch_scc0 F_pf2")
    A("global_store_dwordx4 v2, v[4:7], s[54:55] sc1")
    A("s_lshl_b32 s33, s2, 2")
    A("v_mov_b32 v2, s33")
    A("v_mov_b32 v8, 1")
    A("s_mov_b64 exec, 1")
    A("s_waitcnt vmcnt(0)")
    A("global_store_dword v2, v8, s[52:53] sc1")
    A("F_pf2:")
    if OPT.get("warm", "0") == "1":
        for k, h in enumerate(HOLES):
            A(f"s_mov_b32 s32, {hex(h)}")
            A(f"s_load_dword s{16+k}, s[54:55], s32")
        A("s_load_dword s21, s[46:47], 0")
        A("s_load_dword s22, s[50:51], 0")
    A("s_mov_b64 exec, -1")
    A("s_mov_b32 s15, 14")
    A("F_role:")
    A("s_and_b32 s10, s2, 7")
    A("s_lshr_b32 s11, s2, 3")
    A("s_lshr_b32 s12, s10, 1")
    A("s_lshl_b32 s12, s12, 3")
    A("s_and_b32 s3, s11, 7")
    A("s_add_u32 s12, s12, s3")
    A("s_and_b32 s6, s10, 1")
    A("s_lshr_b32 s7, s11, 3")
    A("s_lshl2_add_u32 s13, s6, s7" if OPT.get("hgmap", "0") == "0" else "s_lshl1_add_u32 s13, s7, s6")
    A("s_lshl1_add_u32 s14, s7, s6")
    A("s_add_u32 s14, s14, s3" if OPT.get("rot2") != "1" else "s_lshl1_add_u32 s14, s3, s14")
    A("s_and_b32 s14, s14, 7")
    if OPT.get("hx", "1") != "0": A(f"s_xor_b32 s10, s10, {OPT.get('hx', '1')}")
    savewave(A)
    A("s_cmp_lt_u32 s15, 8")
    A("s_cbranch_scc0 F_notkgen")
    A("s_and_b32 s16, s15, 1")
    A("s_lshl1_add_u32 s17, s2, s16")
    A("s_lshl_b32 s18, s17, 8")
    A("v_lshl_add_u32 v2, v1, 2, s18")
    A("s_lshl_b32 s18, s17, 1")
    A("v_mov_b32 v3, s18")
    A("s_waitcnt lgkmcnt(0)")
    A("global_load_ushort v10, v3, s[86:87]")
    for k in range(2):
        A(f"global_load_dword v{4+k}, v2, s[{74+2*k}:{75+2*k}]")
    A("s_cmp_lt_u32 s15, 4")
    A("s_cbranch_scc1 F_notloader")
    for k in range(2, 6):
        A(f"global_load_dword v{4+k}, v2, s[{74+2*k}:{75+2*k}]")
    A("global_load_ushort v11, v3, s[40:41]")
    A("s_branch F_notloader")
    A("F_notkgen:")
    A("s_bitcmp1_b32 0xf00, s15")
    A("s_cbranch_scc1 F_side")
    A("s_cmp_eq_u32 s15, 14")
    A("s_cbranch_scc1 F_nl2")
    A("v_and_b32 v2, 15, v1")
    A("v_and_b32 v3, 48, v1")
    A("v_lshl_add_u32 v2, v2, 6, v3")
    A("s_waitcnt lgkmcnt(0)")
    A("global_load_dwordx4 v[64:67], v2, s[48:49]")
    A("s_branch F_notloader")
    A("F_side:")
    side(A)
    A("F_notloader:")
    A("s_waitcnt lgkmcnt(0)")
    A("F_nl2:")
    tick(A, "start")
    entry_log(A)
    A("s_mov_b32 s8, s54")
    A("s_mov_b32 s9, s55")
    srd(A, 24, 54, FWS)
    A("s_cmp_lt_u32 s15, 4")
    A("s_cbranch_scc1 F_gemm")
    A("s_cmp_lt_u32 s15, 8")
    A("s_cbranch_scc1 F_kgen")
    misc(A)
    A("F_kgen:")
    kgen(A)
    A("s_branch F_conv")
    A("F_gemm:")
    gemm(A)
    A("F_conv:")
    conv(A)
    attention(A)
    A("F_done:")
    A("s_endpgm")
    A("F_codeend:")
    A(f".fill (({npf}*4096 + 256 - (F_codeend - F_start)) >> 2), 4, 0xbf810000")

def side(A):
    A("s_sub_u32 s15, s15, 8")
    A("v_lshrrev_b32 v2, 3, v1")
    A("v_bfe_u32 v3, v1, 4, 1")
    A("v_and_b32 v6, 7, v1")
    A("s_and_b32 s30, s15, 1")
    A("s_lshl_b32 s30, s30, 2")
    A("v_xor_b32 v7, v6, v3")
    A("v_xor_b32 v7, s30, v7")
    A("v_lshlrev_b32 v7, 4, v7")
    A("v_lshl_add_u32 v4, v2, 10, v7")
    A("v_xor_b32 v5, 32, v4")
    A("v_lshlrev_b32 v3, 1, v3")
    A("v_xor_b32 v7, v6, v3")
    A("v_mul_u32_u24 v6, 3072, v2")
    A("v_lshl_add_u32 v6, v7, 4, v6")
    A("v_xor_b32 v7, 64, v6")
    A("s_lshl_b32 s30, s12, 16")
    A("s_lshl_b32 s31, s15, 14")
    A("s_add_u32 s30, s30, s31")
    A("s_mul_i32 s31, s15, 49152")
    A("s_lshl_b32 s32, s13, 7")
    A("s_add_u32 s31, s31, s32")
    A("s_lshl_b32 s32, s15, 11")
    A(f"s_add_u32 s32, s32, {L_RING}")
    A("s_mov_b32 s33, 0")
    A("s_lshl_b32 s39, s15, 2")
    A(f"s_add_u32 s39, s39, {L_MK}")
    A("v_and_b32 v9, 7, v1")
    A("v_mov_b32 v8, 0")
    A("v_lshl_add_u32 v9, v9, 4, s39")
    A("ds_write_b32 v9, v8")
    A("s_waitcnt lgkmcnt(0)")
    tick(A, "start")
    entry_log(A)
    pad(A, "start")
    srd(A, 16, 72, 2048 * 512 * 2)
    srd(A, 20, 44, 512 * 1536 * 2)
    A("s_setprio 3")
    thr = int(OPT.get("thr", 63))
    GW = 64; GM = 68; X = 76; GA = 84; XA = 88
    def issue():
        A("s_add_u32 s34, s14, s33")
        A("s_and_b32 s34, s34, 7")
        A("s_lshl_b32 s35, s34, 7")
        A("s_add_u32 s35, s35, s30")
        A("s_mul_i32 s36, s34, 196608")
        A("s_add_u32 s36, s36, s31")
        A("s_and_b32 s37, s33, 3")
        A("s_lshl_b32 s37, s37, 15")
        A("s_add_u32 m0, s37, s32")
        A("s_add_u32 s38, s35, 7168")
        if thr < 63: A(f"s_waitcnt vmcnt({thr})")
        A("buffer_load_dwordx4 v4, s[16:19], s35 offen lds")
        A("buffer_load_dwordx4 v5, s[16:19], s38 offen offset:1024 lds")
        if OPT.get("bke", "1") == "1":
            A("s_cmp_eq_u32 s33, 1")
            A("s_cbranch_scc0 F_ldk")
            bar(A)
            A("F_ldk:")
        for mat in range(3):
            A("s_add_u32 m0, m0, 8192")
            A(f"s_add_u32 s38, s36, {24576 - 1024}")
            if thr < 63: A(f"s_waitcnt vmcnt({thr})")
            A("buffer_load_dwordx4 v6, s[20:23], s36 offen lds")
            A("buffer_load_dwordx4 v7, s[20:23], s38 offen offset:1024 lds")
            if mat < 2: A("s_add_u32 s36, s36, 1024")
    A("s_getpc_b64 s[28:29]")
    A("F_ld:")
    A("s_bitcmp1_b32 0xac, s33" if OPT.get("bke", "1") != "1" else "s_bitcmp1_b32 0xa8, s33")
    A("s_cbranch_scc0 F_ld1")
    bar(A)
    A("F_ld1:")
    issue()
    A("s_mov_b32 m0, s39")
    A("s_mov_b64 exec, 1")
    A("global_load_lds_dword v8, s[28:29]")
    A("s_mov_b64 exec, -1")
    if OPT.get("ltick"): tick(A, "iss")
    A("s_add_u32 s39, s39, 16")
    A("s_add_u32 s33, s33, 1")
    A("s_cmp_lt_u32 s33, 8")
    A("s_cbranch_scc1 F_ld")
    A("s_mov_b32 s8, s54")
    A("s_mov_b32 s9, s55")
    srd(A, 24, 54, FWS)
    bar(A)
    tick(A, "ld_done")
    if PAD[0] == "endmin":
        A("s_not_b32 s58, s56")
        A("v_mov_b32 v2, 0")
        A("v_mov_b32 v3, s58")
        A("s_mov_b64 exec, 1")
        A("global_atomic_umax v2, v3, s[52:53] offset:128")
        A("s_mov_b64 exec, -1")
    A("v_lshlrev_b32 v3, 4, v1")
    srd(A, 16, 52, 256)
    A("v_mov_b32 v8, 0")
    A("v_mov_b32 v9, 1")
    A("s_lshl_b32 s29, s15, 2")
    outproj_setup(A)
    A("s_and_b32 s31, s11, 3")
    A("s_lshl2_add_u32 s31, s10, s31")
    A("s_lshr_b32 s28, s11, 2")
    A("s_lshl3_add_u32 s30, s31, s28")
    A(f"s_lshl_b32 s30, s30, {FSH}")
    A(f"s_add_u32 s30, s30, {hex(F_F1)}")
    A("s_lshl_b32 s20, s15, 3")
    A("s_lshl_b32 s37, s31, 11")
    A("s_lshl2_add_u32 s32, s28, s15")
    A("s_lshl_b32 s32, s32, 16")
    A("s_add_u32 s37, s37, s32")
    A("s_lshl_b32 s31, s31, 17" if not KVT else "s_lshl_b32 s31, s31, 12")
    A(f"s_add_u32 s31, s31, {hex(F_KV)}")
    A("s_lshl_b32 s32, s15, 11")
    A(f"s_add_u32 s37, s37, {hex(F_Q)}")
    A(f"s_add_u32 s38, s32, {L_Q}")
    if KVT:
        A("s_lshl_b32 s32, s15, 17")
        A("s_add_u32 s31, s31, s32")
    else: A("s_lshl1_add_u32 s31, s32, s31")
    A(f"s_mul_i32 s33, s15, {KVS}")
    A(f"s_add_u32 s33, s33, {L_KV}")
    A("v_and_b32 v10, 1, v1")
    A("v_cmp_eq_u32 vcc, 0, v10")
    A("v_bfe_u32 v11, v1, 1, 4")
    A("v_mov_b32 v16, 0x3f803f80")
    A("v_cndmask_b32 v16, 0, v16, vcc")
    A(f"v_mul_u32_u24 v11, {4*KVS}, v11")
    A("v_lshl_add_u32 v11, v10, 4, v11")
    A("v_add_u32 v11, s33, v11")
    for r in range(17, 20): A(f"v_mov_b32 v{r}, v16")
    lds_wait(A, 8, C_FR, 6, 10, 34, 35)
    A("ds_write_b128 v11, v[16:19] offset:2048")
    A("s_waitcnt lgkmcnt(0)")
    A("s_mov_b32 s36, 0xff")
    A("s_mov_b32 s39, 0")
    A(f"s_mul_i32 s33, s15, {2*KVS}")
    A(f"s_add_u32 s33, s33, {L_KV}")
    A(f"s_mov_b32 s43, {32*KVS}")
    A("s_cmp_eq_u32 s15, 0")
    A("s_cbranch_scc0 F_f1w")
    A("s_lshl_b32 s41, 0x01010101, s28")
    pd1 = int(OPT.get("pd1", 3))
    if pd1 > 1: mask_wait_p(A, [20, 21, 22, 23][:pd1], 8, 30, 35, 34, "s41", 42, int(OPT.get("pg", 4)))
    else: mask_wait(A, 10, 8, 30, 35, 34, "s41", 42, sleep=int(OPT.get("f1sl", 0)))
    A("v_mov_b32 v10, s35")
    A(f"ds_write_b32 v8, v10 offset:{C_F1}")
    A("s_branch F_f1d")
    A("F_f1w:")
    lds_wait(A, 8, C_F1, 1, 10, 35, 34)
    A("s_lshr_b32 s35, s35, s20")
    A("F_f1d:")
    tick(A, "F1seen")
    A("s_mov_b32 m0, s38")
    A("s_mov_b32 s34, 0")
    A("buffer_load_dwordx4 v3, s[24:27], s37 offen sc1 lds")
    A("buffer_load_dwordx4 v3, s[24:27], s37 offen offset:1024 sc1 lds")
    A("s_and_b32 s35, s35, s36")
    A("s_cbranch_scc1 F_kv1")
    A("F_kv:")
    mask_read(A, 10, 8, 30, 35)
    A("s_add_u32 s34, s34, 1")
    A("s_lshr_b32 s35, s35, s20")
    A(f"s_cmp_lt_u32 s34, {hex(SPIN)}")
    A("s_cselect_b32 s35, s35, -1")
    A("s_and_b32 s35, s35, s36")
    A("s_cbranch_scc1 F_kv1")
    A("s_sleep 1")
    A("s_branch F_kv")
    A("F_kv1:")
    A("s_ff1_i32_b32 s40, s35")
    A("F_kv2:")
    A("s_lshl_b32 s41, s40, 14" if not KVT else "s_lshl_b32 s41, s40, 19")
    A("s_mov_b32 m0, s33")
    A("s_add_u32 s41, s41, s31")
    A("buffer_load_dwordx4 v3, s[24:27], s41 offen sc1 lds")
    A("buffer_load_dwordx4 v3, s[24:27], s41 offen offset:1024 sc1 lds")
    A(f"s_add_u32 m0, s33, {KVS - 2048}")
    A("s_bitset0_b32 s35, s40")
    A("buffer_load_dwordx4 v3, s[24:27], s41 offen offset:2048 sc1 lds")
    A("buffer_load_dwordx4 v3, s[24:27], s41 offen offset:3072 sc1 lds")
    A("s_bitset0_b32 s36, s40")
    A("s_bitcmp1_b32 s39, 0")
    A(f"s_cselect_b32 s42, {hex((-24*KVS) & 0xffffffff)}, s43")
    A("s_add_u32 s33, s33, s42")
    A("s_bitcmp1_b32 0xa3, s39")
    A("s_cbranch_scc0 F_kv3")
    mark(A, L_S1, 29, 8)
    A("s_add_u32 s29, s29, 16")
    tick(A, "mk")
    A("F_kv3:")
    A("s_add_u32 s39, s39, 1")
    A("F_kv4:")
    A("s_cmp_lg_u32 s35, 0")
    A("s_cbranch_scc1 F_kv1")
    A("s_cmp_lg_u32 s36, 0")
    A("s_cbranch_scc1 F_kv")
    tick(A, "kv_issued")
    outproj(A)

GA = 80
def outproj_setup(A):
    A("s_and_b32 s30, s15, 1")
    A("s_lshr_b32 s31, s15, 1")
    A("v_and_b32 v2, 31, v1")
    A("v_lshrrev_b32 v12, 5, v1")
    A("v_lshlrev_b32 v113, 15, v12")
    A("v_lshl_add_u32 v113, v2, 3, v113")
    A("v_lshlrev_b32 v114, 10, v12")
    A("v_lshl_add_u32 v114, v2, 2, v114")
    A("s_lshl_b32 s36, s30, 7")
    A("v_lshl_add_u32 v115, v2, 2, s36")
    A("v_lshrrev_b32 v4, 3, v1")
    A("v_lshlrev_b32 v4, 10, v4")
    A("v_and_b32 v5, 7, v1")
    A("v_bfe_u32 v6, v1, 4, 1")
    A("v_lshlrev_b32 v6, 2, v6")
    A("v_xor_b32 v5, v5, v6")
    A("v_lshl_add_u32 v112, v5, 4, v4")
    A("v_bfe_u32 v13, v1, 2, 2")
    A("v_lshl_add_u32 v14, v12, 2, v13")
    A("v_lshlrev_b32 v14, 7, v14")
    A("v_lshrrev_b32 v13, 1, v13")
    A("v_xor_b32 v13, s31, v13")
    A("v_lshl_add_u32 v14, v13, 6, v14")
    A("v_and_b32 v13, 16, v1")
    A("v_lshl_add_u32 v14, v13, 1, v14")
    A("v_and_b32 v13, 1, v1")
    A("v_lshl_add_u32 v14, v13, 4, v14")
    A("v_and_b32 v13, 2, v1")
    A("v_lshl_add_u32 v14, v13, 2, v14")
    A("s_lshl_b32 s36, s31, 15")
    A(f"s_add_u32 s36, s36, {L_WO}")
    A("v_add_u32 v5, s36, v14")
    A("v_xor_b32 v4, 64, v5")
    A("v_and_b32 v6, 28, v1")
    A("v_add_lshl_u32 v6, v6, v12, 10")
    A("v_lshl_add_u32 v6, v13, 3, v6")
    A("v_and_b32 v13, 1, v1")
    A("v_lshl_add_u32 v6, v13, 5, v6")
    A("s_lshl_b32 s36, s15, 12")
    A(f"s_add_u32 s36, s36, {L_O}")
    A("v_add_u32 v7, s36, v3")
    A("v_xor_b32 v0, 0x2000, v7")
    for r in range(GA, GA + 32): A(f"v_mov_b32 v{r}, 0")

def outproj(A):
    A("s_and_b32 s30, s15, 1")
    A("s_lshr_b32 s31, s15, 1")
    A("s_lshl_b32 s32, s12, 6")
    A("s_lshl_b32 s33, s30, 5")
    A("s_add_u32 s32, s32, s33")
    A("s_lshl_b32 s33, s13, 6")
    A("s_lshl_b32 s34, s31, 5")
    A("s_add_u32 s33, s33, s34")
    A("s_lshl_b32 s34, s33, 12")
    A("s_lshr_b32 s35, s12, 2")
    A("s_lshl1_add_u32 s35, s35, s30")
    A("s_lshl_b32 s35, s35, 8")
    A("s_add_u32 s34, s34, s35")
    A("s_and_b32 s35, s12, 3")
    A("s_lshl1_add_u32 s34, s35, s34")
    A(f"s_add_u32 s34, s34, {hex(F_YA)}")
    srd(A, 16, 46, 512 * 512 * 2)
    srd(A, 20, 50, 2048 * 512 * 2)
    A("s_lshl_b32 s36, s15, 17")
    A("s_lshl_b32 s37, s13, 7")
    A("s_add_u32 s36, s36, s37")
    A("s_lshl_b32 s37, s15, 14")
    A(f"s_add_u32 s37, s37, {L_WO}")
    lds_wait(A, 8, C_FREE, 4, 11, 38, 39, sleep=32)
    lds_wait(A, 8, C_YA, 2, 11, 38, 39, sleep=8)
    lds_wait(A, 8, C_YA2, 4, 11, 38, 39, sleep=16)
    A("s_cmp_eq_u32 s15, 0")
    A("s_cbranch_scc0 F_nf2")
    A("s_lshr_b32 s38, s2, 5")
    A(f"s_lshl_b32 s38, s38, {FSH}")
    A(f"s_add_u32 s38, s38, {hex(F_F2)}")
    A(f"v_lshlrev_b32 v12, {FSH+3}, v1")
    A("v_lshlrev_b32 v13, s2, v9")
    mask_set(A, 13, 12, 38, 32)
    A("F_nf2:")
    A("s_mov_b32 s38, 16")
    A("F_wo:")
    A("s_mov_b32 m0, s37")
    A("s_add_u32 s37, s37, 1024")
    A("buffer_load_dwordx4 v112, s[16:19], s36 offen lds")
    A("s_add_u32 s36, s36, 8192")
    A("s_sub_u32 s38, s38, 1")
    A("s_cmp_lg_u32 s38, 0")
    A("s_cbranch_scc1 F_wo")
    A("s_lshl3_add_u32 s28, s12, s13")
    A(f"s_lshl_b32 s28, s28, {FSH}")
    A(f"s_add_u32 s28, s28, {hex(F_F2)}")
    mask_wait(A, 11, 8, 28, 36, 38, "-1", 37, sleep=16)
    A("s_add_u32 s28, s28, 4")
    for c in range(2):
        for p in range(8):
            A(f"s_add_u32 s36, s34, {(16*c + p)*4096}")
            A(f"buffer_load_short_d16_hi v{GA+8*c+p}, v113, s[24:27], s36 offen sc1")
    A("s_and_b32 s36, s32, 255")
    A("s_cbranch_scc1 F_nc")
    A("s_lshr_b32 s36, s32, 4")
    A("s_cbranch_scc0 F_nc")
    A("s_lshl_b32 s37, s33, 7")
    A("s_add_u32 s36, s36, s37")
    A(f"s_add_u32 s36, s36, {hex(F_YC - 16)}")
    A("s_mov_b32 exec_lo, 7")
    A("s_mov_b32 exec_hi, 7")
    for c in range(2):
        for p in range(8):
            A(f"buffer_load_dword v{GA+16+8*c+p}, v114, s[24:27], s36 offen offset:{(16*c + p)*128} sc1")
    A("s_mov_b64 exec, -1")
    A("F_nc:")
    if OPT.get("vwarm"): A("buffer_load_dword v12, v8, s[20:23], 0 offen sc1")
    A(f"ds_read_b32 v11, v115 offset:{L_G}")
    A("s_mov_b32 s40, 0x55555555")
    A("s_mov_b32 s41, s40")
    A("s_mov_b32 s42, 0x33333333")
    A("s_mov_b32 s43, s42")
    A("s_lshl_b32 s32, s32, 10")
    A("s_lshl_b32 s33, s33, 1")
    A("s_add_u32 s32, s32, s33")
    A("s_lshl1_add_u32 s34, s12, s31")
    A("s_lshl_b32 s34, s34, 15")
    A("s_lshl_b32 s35, s30, 10")
    A("s_add_u32 s34, s34, s35")
    A(f"s_add_u32 s34, s34, {hex(F_Q)}")
    A("s_lshl_b32 s35, s31, 4")
    A("s_lshl_b32 s35, 0xffff, s35")
    GP = 16; A1 = 24; A0 = 40; OF = 80
    WB = lambda k: 56 + 8 * (k % 3)
    OB_ = lambda k: OF + 4 * (k % 12)
    def wrd(ks):
        for av, b in ((4, WB(ks)), (5, WB(ks) + 4)):
            A(f"ds_read_b64_tr_b16 {vr(b,2)}, v{av} offset:{ks*2048}")
            A(f"ds_read_b64_tr_b16 {vr(b+2,2)}, v{av} offset:{ks*2048+1024}")
    def old(ks):
        A(f"buffer_load_dwordx4 {vr(OB_(ks),4)}, v3, s[24:27], s34 offen offset:{(ks&1)*2048} sc1")
        if ks < 15 and ks & 1: A("s_add_u32 s34, s34, 4096")
    A("s_waitcnt vmcnt(0) lgkmcnt(0)")
    tick(A, "op_ready")
    A("s_barrier")
    tick(A, "op_go")
    def fill0():
        for ks in range(3): wrd(ks)
        for r in range(GA, GA + 16): A(f"v_add_f32 v{r}, v{r}, v{r+16}")
        for r in range(GA, GA + 16): A(f"v_mul_f32 v{r}, v11, v{r}")
    def fill1():
        for p in range(8): A(f"v_cvt_pk_bf16_f32 v{GP+p}, v{GA+2*p}, v{GA+2*p+1}")
        A("v_sub_f32 v11, 1.0, v11")
        A("v_cvt_pk_bf16_f32 v11, v11, v11")
        A("v_and_b32 v11, 0xffff0000, v11")
        A("s_sleep 2")
    mask_wait_p(A, [13, 12, 14], 8, 28, 36, 38, "s35", 37, [fill0, fill1])
    tick(A, "F3seen")
    for ks in range(12): old(ks)
    for ks in range(16):
        A(f"s_waitcnt vmcnt({min(11, 15-ks)}) lgkmcnt({4*min(2, 15-ks)})")
        A(mfma32(A1, WB(ks), OB_(ks), "0" if ks == 0 else None))
        A(mfma32(A0, WB(ks) + 4, OB_(ks), "0" if ks == 0 else None))
        if ks < 4: old(ks + 12)
        if ks + 3 < 16: wrd(ks + 3)
    tick(A, "op_mm")
    GU = 96
    for q in range(8):
        A(f"v_lshlrev_b32 v{GU+2*q}, 16, v{GP+q}")
        if q < 3: A(f"v_and_b32 v{GU+2*q+1}, 0xffff0000, v{GP+q}")
    for q in range(4): A(f"ds_write_b128 v7, {vr(A1+4*q,4)} offset:{q*1024}")
    for q in range(3, 8): A(f"v_and_b32 v{GU+2*q+1}, 0xffff0000, v{GP+q}")
    for r in range(16): A(f"v_fma_f32 v{GU+r}, v{A0+r}, v11, v{GU+r}")
    A("s_waitcnt lgkmcnt(0)")
    A("s_barrier")
    tick(A, "op_x")
    for q in range(4): A(f"ds_read_b128 {vr(A0+4*q,4)}, v0 offset:{q*1024}")
    A("s_mov_b64 vcc, s[40:41]")
    for hf in range(2):
        A(f"s_waitcnt lgkmcnt({2 - 2*hf})")
        for r in range(8*hf, 8*hf + 8): A(f"v_fma_f32 v{GU+r}, v{A0+r}, v11, v{GU+r}")
        for p in range(4*hf, 4*hf + 4): A(f"v_cvt_pk_bf16_f32 v{GP+p}, v{GU+2*p}, v{GU+2*p+1}")
    def xswap(src, dst, perm):
        for d in range(4): A(f"v_cndmask_b32_dpp v{dst+d}, v{src+4+d}, v{src+d}, vcc quad_perm:{perm} row_mask:0xf bank_mask:0xf")
        A("s_not_b64 vcc, vcc")
        for d in range(4): A(f"v_cndmask_b32_dpp v{dst+4+d}, v{src+d}, v{src+4+d}, vcc quad_perm:{perm} row_mask:0xf bank_mask:0xf")
    xswap(GP, 24, "[1,0,3,2]")
    A("s_mov_b64 vcc, s[42:43]")
    for d in range(4): A(f"v_permlane32_swap_b32 v{24+d}, v{28+d}")
    xswap(24, GP, "[2,3,0,1]")
    om = OPT.get("omod", "sc1")
    A(f"buffer_store_dwordx4 {vr(GP,4)}, v6, s[20:23], s32 offen {om}")
    A(f"buffer_store_dwordx4 {vr(GP+4,4)}, v6, s[20:23], s32 offen offset:2048 {om}")
    tick(A, "op_st")
    pad(A, "end")
    if PAD[0] == "endmin":
        A("v_mov_b32 v2, 0")
        A("global_load_dword v3, v2, s[52:53] offset:128 sc1")
        A("s_waitcnt vmcnt(0)")
        A("v_readfirstlane_b32 s56, v3")
        A("s_nop 3")
        A("s_not_b32 s56, s56")
        pad(A, "endmin")
    dump(A, 0, 6)
    A("s_endpgm")

def misc(A):
    A("v_mov_b32 v8, 0")
    A("v_mov_b32 v9, 1")
    A("s_setprio 3")
    A("s_cmp_eq_u32 s15, 14")
    A("s_cbranch_scc0 F_gate")
    srd(A, 36, 52, 256)
    A("v_and_b32 v5, 15, v1")
    A(f"v_min_u32 v2, {NCLR-1}, v1")
    A("v_lshlrev_b32 v2, 2, v2")
    A("v_bfe_u32 v4, v1, 3, 1")
    A("v_bfe_u32 v6, v1, 1, 1")
    A("v_lshl_or_b32 v4, v4, 1, v6")
    A("v_lshlrev_b32 v4, 4, v4")
    A("v_lshl_add_u32 v4, v5, 7, v4")
    A("v_bfe_u32 v6, v1, 4, 1")
    A("v_lshl_add_u32 v4, v6, 12, v4")
    A("v_lshrrev_b32 v6, 5, v1")
    A("v_lshl_add_u32 v4, v6, 3, v4")
    A(f"v_add_u32 v20, {L_RING}, v4")
    for k in range(1, 8): A(f"v_xor_b32 v{20+k}, {16*k}, v20")
    A("v_bfe_u32 v4, v1, 2, 3")
    A("v_lshlrev_b32 v4, 5, v4")
    A("v_lshl_add_u32 v7, v6, 14, v4")
    A("v_and_b32 v4, 1, v1")
    A("v_lshl_add_u32 v7, v4, 4, v7")
    A("v_bfe_u32 v4, v1, 1, 1")
    A("v_lshl_add_u32 v7, v4, 13, v7")
    A("s_lshl_b32 s31, s14, 18")
    A("s_lshl_b32 s32, s12, 8")
    A("s_add_u32 s31, s31, s32")
    A(f"s_add_u32 s31, s31, {hex(F_UT)}")
    A(f"s_lshl_b32 s33, s14, {FSH+5}")
    A(f"s_add_u32 s33, s33, {hex(F_FL)}")
    A(f"v_lshlrev_b32 v11, {FSH}, v1")
    A("v_lshlrev_b32 v12, s12, v9")
    UT = 32
    bar(A)
    mark_wait(A, 8, L_MK, 16, 34, 35, sleep=1)
    for i in range(8):
        for eh in range(2):
            A(f"ds_read_b64_tr_b16 {vr(UT+4*i+2*eh,2)}, v{20 + (i ^ (4*eh))} offset:{eh*2048}")
    for i in range(8):
        if i % 2 == 0: A(f"s_waitcnt lgkmcnt({12 - 2*i})")
        if not OPT.get("nout"): A(f"buffer_store_dwordx4 {vr(UT+4*i,4)}, v7, s[24:27], s31 offen sc1")
        if i < 7: A("s_add_u32 s31, s31, 0x8000")
    A("buffer_load_dword v10, v2, s[36:39], 0 offen sc1")
    utb = int(OPT.get("utb", 1))
    for k in range(utb): bar(A)
    A("s_waitcnt vmcnt(0)")
    A("v_cmp_eq_u32 vcc, 1, v10")
    A("s_nop 1")
    A("s_cmp_eq_u64 vcc, -1")
    A("s_cbranch_scc1 F_m2")
    flag_wait(A, 2, "0", 10, 34, srd_="s[36:39]", sleep=2)
    A("F_m2:")
    mask_set(A, 12, 11, 33, 32)
    if STAMPS[0]:
        for k in range(4 - utb): bar(A)
    dump(A)
    A("s_endpgm")

    A("F_gate:")
    GW = 64; X = [32, 48]; GA = 16; GM = 68
    for r in range(GA, GA + 8): A(f"v_mov_b32 v{r}, 0")
    for r in range(X[1], X[1] + 16): A(f"v_mov_b32 v{r}, 0")
    for r in range(GM, GM + 8): A(f"v_mov_b32 v{r}, 0")
    xaddr(A)
    A("s_sub_u32 s16, s15, 12")
    A("s_lshl_b32 s30, s16, 12")
    A("v_add_u32 v4, s30, v4")
    A("v_add_u32 v5, s30, v5")
    A("s_lshl_b32 s30, s16, 7")
    A("v_lshl_add_u32 v10, v9, 2, s30")
    A("v_mov_b32 v8, 0")
    A("v_mov_b32 v9, 1")
    A("s_lshl_b32 s30, s14, 1")
    A("s_mov_b32 s31, 4")
    bar(A)
    A("s_waitcnt vmcnt(0)")
    def gmm(st):
        for ks in range(2):
            for mt in range(2):
                A(mfma16(GA + 4 * mt, GM + 4 * ks, X[st] + 8 * ks + 4 * mt))
    A("v_mov_b32 v6, 0")
    A("F_gt:")
    for par in range(2):
        if par == 1: bar(A)
        mark_wait(A, 6, L_MK + 16 * par, 76, 34, 35, sleep=1)
        for ks in range(2):
            for mt in range(2):
                A(f"ds_read_b128 {vr(X[par]+8*ks+4*mt,4)}, v{4+ks} offset:{par*32768 + mt*512}")
        gmm(par ^ 1)
        for ks in range(2):
            A("v_cmp_eq_u32 vcc, s30, v2")
            A("s_add_u32 s30, s30, 1")
            A("s_and_b32 s30, s30, 15")
            for r in range(4): A(f"v_cndmask_b32 v{GM+4*ks+r}, 0, v{GW+r}, vcc")
        if par == 1:
            A("v_xor_b32 v4, 0x10000, v4")
            A("v_xor_b32 v5, 0x10000, v5")
            A("v_add_u32 v6, 32, v6")
            A("s_sub_u32 s31, s31, 1")
            A("s_cmp_lg_u32 s31, 0")
        A("s_waitcnt lgkmcnt(0)")
    A("s_cbranch_scc1 F_gt")
    gmm(1)
    lds_add1(A, 8, 9, C_FR)
    A("s_nop 4")
    R = [GA, GA + 4]
    for q in R: A(f"v_add_f32 v{q}, v{q}, v{q+1}")
    for q in R: A(f"v_add_f32 v{q+2}, v{q+2}, v{q+3}")
    for q in R: A(f"v_add_f32 v{q}, v{q}, v{q+2}")
    for sw in ("v_permlane16_swap_b32", "v_permlane32_swap_b32"):
        for q in R: A(f"v_mov_b32 v{q+1}, v{q}")
        A("s_nop 1")
        for q in R: A(f"{sw} v{q}, v{q+1}")
        A("s_nop 0")
        for q in R: A(f"v_add_f32 v{q}, v{q}, v{q+1}")
    for q in R: A(f"v_cvt_pk_bf16_f32 v{q}, v{q}, v{q}")
    for q in R: A(f"v_and_b32 v{q}, 0xffff0000, v{q}")
    for q in R: A(f"v_mul_f32 v{q}, {hex(LOG2E ^ 0x80000000)}, v{q}")
    for q in R: A(f"v_exp_f32 v{q}, v{q}")
    for q in R: A(f"v_add_f32 v{q}, 1.0, v{q}")
    for q in R: A(f"v_rcp_f32 v{q}, v{q}")
    for q in R: A(f"v_cvt_pk_bf16_f32 v{q}, v{q}, v{q}")
    for q in R: A(f"v_and_b32 v{q}, 0xffff0000, v{q}")
    for mt in range(2): A(f"ds_write_b32 v10, v{R[mt]} offset:{L_G + mt*16}")
    lds_add1(A, 8, 9, C_YA)
    A("s_waitcnt lgkmcnt(0)")
    dump(A)
    A("s_endpgm")

def xaddr(A, d=4, t=0):
    A(f"v_and_b32 v{t+2}, 15, v1")
    A(f"v_lshrrev_b32 v{t+3}, 4, v1")
    A(f"v_lshrrev_b32 v{t+7}, 2, v{t+2}")
    A(f"v_and_b32 v{t+8}, 3, v1")
    A(f"v_lshl_add_u32 v{t+9}, v{t+7}, 3, v{t+8}")
    A(f"v_lshrrev_b32 v{t+10}, 1, v{t+8}")
    A(f"v_lshl_or_b32 v{t+10}, v{t+7}, 1, v{t+10}")
    A(f"v_xor_b32 v{t+10}, v{t+10}, v{t+3}")
    A(f"v_lshlrev_b32 v{t+10}, 4, v{t+10}")
    A(f"v_lshl_add_u32 v{d}, v{t+9}, 7, v{t+10}")
    A(f"v_add_u32 v{d}, {L_RING}, v{d}")
    A(f"v_xor_b32 v{d+1}, 64, v{d}")

ROW2 = 528
TABC = 60 * ROW2

def cmul_pk(A, lst):
    for (R, X, E, T) in lst:
        A(f"v_pk_mul_f32 {vr(T,2)}, {vr(X,2)}, {vr(E,2)} op_sel:[0,0] op_sel_hi:[1,0]")
    for (R, X, E, T) in lst:
        A(f"v_pk_fma_f32 {vr(R,2)}, {vr(X,2)}, {vr(E,2)}, {vr(T,2)} op_sel:[1,1,0] op_sel_hi:[0,1,1] neg_lo:[1,0,0]")

def cmul_sc(A, lst):
    for (R, X, E, T) in lst:
        A(f"v_mul_f32 v{T}, v{X}, v{E+1}")
        A(f"v_mul_f32 v{R}, v{X}, v{E}")
    for (R, X, E, T) in lst:
        A(f"v_fma_f32 v{R}, -v{X+1}, v{E+1}, v{R}")
        A(f"v_fma_f32 v{R+1}, v{X+1}, v{E}, v{T}")

AR, AI, DT = 16, 18, 14
KE = lambda k: (f32hex(k * math.log2(math.e)), f32hex(k / (2 * math.pi)))
def k_base(A):
    A(f"s_mul_i32 s19, s16, {L_RING + 3*32768 - L_TAB}")
    A(f"s_add_u32 s19, s19, {L_TAB}")
    A("s_bfe_u32 s22, s15, 0x10001")
def k_head(A):
    A(f"v_lshlrev_b32 v{DT}, 16, v10")
    A(f"v_mul_f32 v{DT}, {hex(LOG2E)}, v{DT}")
    A(f"v_exp_f32 v{DT}, v{DT}")
    A(f"v_lshlrev_b32 v{AR}, 16, v4")
    A(f"v_and_b32 v{AR+1}, 0xffff0000, v4")
    A(f"v_cvt_pk_bf16_f32 v{DT}, v{DT}, v{DT}")
    A(f"v_lshlrev_b32 v{AI}, 16, v5")
    A(f"v_and_b32 v{AI+1}, 0xffff0000, v5")
    A(f"v_and_b32 v{DT}, 0xffff0000, v{DT}")
    for r in range(AR, AR + 4): A(f"v_mul_f32 v{r}, v{DT}, v{r}")
def k_gens(A, lst):
    n = 0
    for (k1, k2), E in lst:
        for m in range(2):
            A(f"v_mul_f32 v{48+n}, {k1}, v{AR+m}")
            A(f"v_mul_f32 v{56+n}, {k2}, v{AI+m}")
            n += 1
    for i in range(n):
        A(f"v_exp_f32 v{48+i}, v{48+i}")
        A(f"v_fract_f32 v{56+i}, v{56+i}")
    n = 0
    for k, E in lst:
        for m in range(2):
            A(f"v_cos_f32 v{E+2*m}, v{56+n}")
            A(f"v_sin_f32 v{E+2*m+1}, v{56+n}")
            n += 1
    n = 0
    for k, E in lst:
        for m in range(2):
            A(f"v_mul_f32 v{E+2*m}, v{48+n}, v{E+2*m}")
            A(f"v_mul_f32 v{E+2*m+1}, v{48+n}, v{E+2*m+1}")
            n += 1
PUTN = [0]
def k_put(A, X, off, neg):
    c = 44 + 2 * (PUTN[0] & 1); PUTN[0] += 1
    for m in range(2):
        A(f"v_cvt_pk_bf16_f32 v{c+m}, v{X+2*m}, {'-' if neg else ''}v{X+2*m+1}")
    A(f"ds_write_b64 v13, {vr(c,2)} offset:{off}")
def k_mul(A, lst):
    cmul_pk(A, [(R + 2 * m, X + 2 * m, E + 2 * m, 48 + 4 * i + 2 * m) for i, (R, X, E) in enumerate(lst) for m in range(2)])

def kgen_y(A):
    k_base(A)
    A(f"s_mul_i32 s30, s22, {KE(128)[0]}")
    A(f"s_mul_i32 s31, s22, {KE(128)[1]}")
    A(f"s_mul_i32 s29, s22, {16*ROW2}")
    A("s_add_u32 s29, s29, s19")
    A("v_lshl_add_u32 v13, v1, 3, s29")
    A("s_mov_b32 s21, 3")
    A("s_waitcnt vmcnt(0)")
    tick(A, "params")
    k_head(A)
    E8 = 20; Y = 24
    k_gens(A, [(KE(8), E8), (("s30", "s31"), Y)])
    A(".p2align 3")
    A("F_ky:")
    A("s_sub_u32 s21, s21, 1")
    A("s_nop 0")
    for j in range(4):
        k_put(A, Y, j * ROW2, False)
        k_mul(A, [(Y, Y, E8)])
    A(f"v_add_u32 v13, {4*ROW2}, v13")
    A("s_cbranch_scc0 F_ky")
    A("s_waitcnt lgkmcnt(0)")
    tick(A, "tables")
    bar(A)

def kgen(A):
    P = 4
    k_base(A)
    A(f"s_add_u32 s20, s19, {32*ROW2}")
    A("v_and_b32 v16, 31, v1")
    A("v_lshrrev_b32 v17, 5, v1")
    A("v_lshlrev_b32 v17, 4, v17")
    A(f"v_mul_u32_u24 v2, {ROW2}, v16")
    A("v_add3_u32 v2, v2, v17, s19")
    A("v_bfe_u32 v18, v1, 2, 1")
    A("v_bfe_u32 v19, v1, 4, 1")
    A("v_lshl_add_u32 v18, v19, 1, v18")
    A("v_and_b32 v19, 3, v1")
    A("v_bfe_u32 v20, v1, 3, 1")
    A("v_lshl_add_u32 v19, v20, 2, v19")
    A("s_mov_b32 s35, 0x11100000")
    A("s_mov_b32 s36, 0x1a181614")
    A("s_cmp_eq_u32 s22, 0")
    A("s_cselect_b32 s32, 0x22111000, s35")
    A("s_cselect_b32 s33, 0xd7ccc6bb, s35")
    A("s_cselect_b32 s34, 0x54392108, s35")
    A("s_cselect_b32 s35, 0x110e0000, s36")
    A("v_mov_b32 v20, s32")
    A("v_mov_b32 v21, s33")
    A("v_mov_b32 v22, s34")
    A("v_cmp_eq_u32 vcc, 1, v18")
    A("v_lshlrev_b32 v23, 2, v19")
    A("v_lshlrev_b32 v24, 3, v18")
    A("v_cndmask_b32 v20, v20, v21, vcc")
    A("v_cmp_eq_u32 vcc, 0, v18")
    A("v_bfe_u32 v24, s35, v24, 8")
    A("s_lshl_b32 s31, s22, 23")
    A("v_cndmask_b32 v20, v20, v22, vcc")
    A("v_bfe_u32 v20, v20, v23, 4")
    A("v_add_u32 v20, v20, v24")
    A(f"v_mul_u32_u24 v12, {ROW2}, v20")
    A("v_add3_u32 v12, v12, v17, s20")
    A("s_mul_i32 s31, s31, 9")
    A(f"s_add_u32 s30, s31, {KE(1)[0]}")
    A(f"s_add_u32 s31, s31, {KE(1)[1]}")
    A(f"s_mul_i32 s29, s22, {6*ROW2}")
    A("s_add_u32 s29, s29, s20")
    A("v_lshl_add_u32 v13, v1, 3, s29")
    A("s_setprio 1")
    A("s_waitcnt vmcnt(0)")
    tick(A, "params")
    k_head(A)
    EV = 20; E4 = 24; E256 = 28; C0 = 32; C1 = 36; C2 = 40; B_ = 64; C_ = 68; X1 = 72; X2 = 76
    for k, dst in ((2, B_), (3, B_ + 1), (4, C_), (5, C_ + 1)):
        A(f"v_lshlrev_b32 v{dst}, 16, v{P+k}")
        A(f"v_and_b32 v{dst+2}, 0xffff0000, v{P+k}")
    for r in range(B_, B_ + 4): A(f"v_mul_f32 v{r}, v{DT}, v{r}")
    k_gens(A, [(("s30", "s31"), EV), (KE(4), E4), (KE(256), E256)])
    put = lambda X, row: k_put(A, X, row * ROW2, True)
    A(".p2align 3")
    k_mul(A, [(C0, C_, B_)])
    A("s_cmp_eq_u32 s22, 0")
    A("s_cbranch_scc1 F_kx0")
    k_mul(A, [(C0, C0, EV)])
    A("F_kx0:")
    put(C0, 8)
    k_mul(A, [(C1, C0, E4)])
    put(C1, 9)
    k_mul(A, [(C2, C1, E4)])
    put(C2, 10)
    A("s_cbranch_scc0 F_kx3")
    A("s_nop 0")
    k_mul(A, [(X1, C0, EV), (X2, C1, EV)])
    put(X1, 0); put(X2, 3)
    k_mul(A, [(X1, X1, EV), (X2, X2, EV)])
    put(X1, 1); put(X2, 4)
    k_mul(A, [(B_, X1, E256), (C_, X2, E256)])
    put(B_, 6); put(C_, 7)
    k_mul(A, [(X1, X1, EV), (X2, X2, EV)])
    put(X1, 2); put(X2, 5)
    A("F_kx3:")
    k_mul(A, [(C0, C0, E256), (C1, C1, E256), (C2, C2, E256)])
    put(C0, 11); put(C1, 12); put(C2, 13)
    A("s_cbranch_scc1 F_kt")
    A("s_mov_b32 s21, 3")
    A("F_kx2:")
    A("s_sub_u32 s21, s21, 1")
    A("s_nop 0")
    k_mul(A, [(C0, C0, E256), (C2, C2, E256)])
    put(C0, 14); put(C2, 15)
    A(f"v_add_u32 v13, {2*ROW2}, v13")
    A("s_cbranch_scc0 F_kx2")
    A("F_kt:")
    A("s_setprio 0")
    A("s_waitcnt lgkmcnt(0)")
    tick(A, "tables")
    bar(A)
    AC = 112
    F = 16
    NS = 12
    def rd(ks):
        b = F + 8 * (ks % NS)
        A(f"ds_read_b128 {vr(b,4)}, v12 offset:{ks*32}")
        A(f"ds_read_b128 {vr(b+4,4)}, v2 offset:{ks*32}")
    kb = int(OPT.get("kb", 15))
    for ks in range(6): rd(ks)
    for ks in range(16):
        if ks < 5:
            rd(6 + 2 * ks); rd(7 + 2 * ks)
            A("s_waitcnt lgkmcnt(14)")
        if ks == 5: A("s_waitcnt lgkmcnt(0)")
        if ks == kb: bar(A)
        A(mfma32(AC, F + 8 * (ks % NS), F + 8 * (ks % NS) + 4, "0" if ks == 0 else None))
    A("s_nop 0")
    A("s_lshl_b32 s21, s22, 6")
    A("v_cmp_eq_u32 vcc, s21, v1")
    A("v_lshlrev_b32 v11, 16, v11")
    A("s_mul_i32 s30, s22, 0xaaaaaaaa")
    A("v_cndmask_b32 v11, 0, v11, vcc")
    A("s_mov_b32 s31, s30")
    A("s_mul_i32 s23, s16, 4608")
    A("s_lshl_b32 s29, s22, 11")
    A("s_add_u32 s23, s23, s29")
    A(f"s_add_u32 s23, s23, {L_KXA}")
    A("v_lshl_add_u32 v24, v1, 4, s23")
    A(f"v_add_f32 v{AC}, v{AC}, v11")
    A(f"v_cndmask_b32 v{AC+4}, v{AC+4}, v{AC+5}, s[30:31]")
    A(f"v_cndmask_b32 v{AC+12}, v{AC+12}, v{AC+13}, s[30:31]")
    for p in range(8): A(f"v_cvt_pk_bf16_f32 v{16+p}, v{AC+2*p}, v{AC+2*p+1}")
    A(f"s_mul_i32 s21, s16, {TABW}")
    A(f"s_add_u32 s21, s21, {L_TAB}")
    A("v_lshrrev_b32 v25, 5, v1")
    A("v_and_b32 v25, s16, v25")
    A("v_lshlrev_b32 v25, 12, v25")
    A("v_lshl_add_u32 v25, v1, 4, v25")
    A("v_add_u32 v25, s21, v25")
    A("v_lshrrev_b32 v26, 2, v1")
    A("v_lshrrev_b32 v27, 4, v1")
    A("v_xor_b32 v26, v26, v27")
    A("v_and_b32 v26, 1, v26")
    A("v_lshlrev_b32 v26, 4, v26")
    A("v_and_b32 v27, 3, v1")
    A("v_lshl_add_u32 v26, v27, 5, v26")
    A("v_lshrrev_b32 v27, 3, v1")
    A("v_lshl_add_u32 v26, v27, 7, v26")
    A("v_mov_b32 v8, 0")
    A("v_mov_b32 v9, 1")
    A("v_mov_b32 v27, 0")
    A(f"s_lshl_b32 s20, s2, {FSH}")
    A(f"s_add_u32 s20, s20, {hex(F_FL)}")
    A("s_and_b32 s21, s15, 3")
    A("s_lshl_b32 s21, s21, 11")
    A("s_lshl_b32 s29, s2, 13")
    A("s_add_u32 s29, s29, s21")
    A(f"s_add_u32 s29, s29, {hex(F_UT)}")
    A(f"s_add_u32 m0, s21, {L_U}")
    bar(A)
    for t in conv_setup(A): A(t)
    bar(A)
    attn_setup(A)
    A("s_mov_b64 exec, 1")
    A("buffer_atomic_or v27, v8, s[24:27], s20 offen sc0 sc1")
    A("s_mov_b64 exec, -1")
    bar(A)
    A("s_waitcnt vmcnt(0)")
    A("v_readfirstlane_b32 s21, v27")
    A("s_nop 0")
    A("s_cmp_eq_u32 s21, -1")
    A("s_cbranch_scc1 F_ku")
    mask_wait(A, 27, 8, 20, 21, 33, "-1", 34, sleep=0)
    A("F_ku:")
    A("buffer_load_dwordx4 v26, s[24:27], s29 offen sc1 lds")
    A("buffer_load_dwordx4 v26, s[24:27], s29 offen offset:1024 sc1 lds")
    A("s_waitcnt vmcnt(0)")
    A(f"ds_write_b128 v25, {vr(CAC,4)}")
    A("ds_write_b128 v24, v[16:19]")
    A("ds_write_b128 v24, v[20:23] offset:1024")
    lds_add1(A, 8, 9, C_CIN)
    tick(A, "kg_end")

CAC = 64
def conv_setup(A):
    return [
        "s_and_b32 s16, s15, 3",
        "s_lshr_b32 s17, s15, 2",
        "v_bfe_u32 v7, v1, 2, 3",
        "v_lshrrev_b32 v10, 5, v1",
        "v_add_u32 v7, v7, v10",
        "v_add_u32 v4, 3, v7",
        "v_bfe_u32 v4, v4, 1, 1",
        "v_xor_b32 v4, s17, v4",
        "v_lshlrev_b32 v4, 6, v4",
        "v_lshl_add_u32 v4, v7, 7, v4",
        "v_and_b32 v7, 3, v1",
        "v_lshl_add_u32 v4, v7, 4, v4",
        "s_lshl_b32 s35, s16, 10",
        f"s_add_u32 s36, s35, {L_U - 128 - 1280}",
        "v_add_u32 v5, s36, v4",
        f"s_sub_u32 s36, {L_U - 128 - 1280 + 7*1024}, s35",
        "v_add_u32 v4, s36, v4",
        "v_xor_b32 v13, 64, v4",
        "v_xor_b32 v14, 64, v5",
        "v_and_b32 v6, 16, v1",
        "v_lshlrev_b32 v6, 1, v6",
        "v_lshl_add_u32 v6, v7, 3, v6",
        "v_bfe_u32 v7, v1, 2, 2",
        "v_lshl_add_u32 v7, v10, 3, v7",
        "v_lshlrev_b32 v7, 3, v7",
        "v_sub_u32 v6, v6, v7",
        "s_mul_i32 s36, s17, 4608",
        f"s_add_u32 s36, s36, {L_KXA + 32}",
        "v_add_u32 v6, s36, v6",
    ] + [f"v_mov_b32 v{r}, 0" for r in range(CAC, CAC + 32)]

def conv(A):
    AC = CAC
    A("s_add_u32 s30, s16, 1")
    lds_wait(A, 8, C_CIN, 4, 10, 33, 34, sleep=1)
    A("s_setprio 2")
    tick(A, "conv_go")
    SB_ = lambda k: 16 + 12 * (k & 3)
    def rd(nn, both):
        b = SB_(nn)
        A(f"ds_read_b64_tr_b16 {vr(b,2)}, v6 offset:{nn*128 + 32}")
        A(f"ds_read_b64_tr_b16 {vr(b+2,2)}, v6 offset:{nn*128}")
        A(f"ds_read_b128 {vr(b+4,4)}, v{13 if nn & 1 else 4} offset:{(5-nn)*256}")
        if both: A(f"ds_read_b128 {vr(b+8,4)}, v{14 if nn & 1 else 5} offset:{(5-nn)*256}")
    def mm(nn, both):
        b = SB_(nn)
        A(mfma32(AC, b + 4, b))
        if both: A(mfma32(AC + 16, b + 8, b))
    rd(0, True); rd(1, True)
    A("F_c1:")
    A("s_sub_u32 s30, s30, 1")
    A("s_cmp_lg_u32 s30, 0")
    for nn in range(4):
        rd(nn + 2, True)
        A("s_waitcnt lgkmcnt(8)")
        mm(nn, True)
    A("v_add_u32 v6, 512, v6")
    for r in (4, 5, 13, 14): A(f"v_subrev_u32 v{r}, 1024, v{r}")
    A("s_cbranch_scc1 F_c1")
    A("s_lshl_b32 s30, s16, 1")
    A("s_sub_u32 s30, 7, s30")
    A("F_c2:")
    A("s_sub_u32 s30, s30, 1")
    A("s_cmp_lg_u32 s30, 0")
    for nn in range(4):
        rd(nn + 2, False)
        A("s_waitcnt lgkmcnt(6)")
        mm(nn, False)
    A("v_add_u32 v6, 512, v6")
    for r in (4, 13): A(f"v_subrev_u32 v{r}, 1024, v{r}")
    A("s_cbranch_scc1 F_c2")
    A("s_nop 6")
    A("s_waitcnt lgkmcnt(0)")
    tick(A, "conv_mm_end")
    T = 16
    def lvl(dst, src, add):
        for g in range(1, 4):
            for k in (1, 0):
                A(f"v_add_f32_dpp v{dst(k,g)}, v{src(k,g-1)}, v{add(k,g)} wave_ror:1 row_mask:0x1 bank_mask:0x1")
        for k in (1, 0):
            A(f"v_add_f32_dpp v{dst(k,0)}, v{src(k,0)}, v{add(k,0)} wave_shr:1 row_mask:0xf bank_mask:0xf bound_ctrl:0")
        for g in range(1, 4):
            for k in (1, 0):
                A(f"v_add_f32_dpp v{dst(k,g)}, v{src(k,g)}, v{add(k,g)} wave_shr:1 row_mask:0xf bank_mask:0xf")
    Z = lambda rho: (lambda k, g: AC + 16 * k + 4 * g + rho)
    TT = lambda k, g: T + 4 * k + g
    lvl(TT, Z(3), Z(2))
    lvl(Z(2), TT, Z(1))
    lvl(Z(1), Z(2), Z(0))
    for k in range(2):
        A(f"v_mov_b32 v{YK+4+4*k}, v{Z(2)(k,3)}")
        A(f"v_mov_b32 v{YK+5+4*k}, v{TT(k,3)}")
        A(f"v_mov_b32 v{YK+6+4*k}, v{Z(3)(k,3)}")
    for k in range(2):
        A(f"v_cvt_pk_bf16_f32 v{YK+2*k}, v{Z(1)(k,0)}, v{Z(1)(k,1)}")
        A(f"v_cvt_pk_bf16_f32 v{YK+1+2*k}, v{Z(1)(k,2)}, v{Z(1)(k,3)}")
    tick(A, "conv_st")

ACC = 80
SET = [16, 44]
GX, GWA, GST = 72, 74, 75
def gemm_setup(A):
    t = 16
    xaddr(A, GX, t)
    A(f"v_lshl_add_u32 v{t+10}, v{t+3}, 3, v{t+7}")
    A(f"v_lshlrev_b32 v{t+10}, 7, v{t+10}")
    A(f"v_lshrrev_b32 v{t+11}, 1, v{t+7}")
    A(f"v_and_b32 v{t+12}, 1, v{t+3}")
    A(f"v_lshl_or_b32 v{t+11}, v{t+12}, 1, v{t+11}")
    A(f"v_xor_b32 v{t+11}, s15, v{t+11}")
    A(f"v_lshl_add_u32 v{t+10}, v{t+11}, 5, v{t+10}")
    A(f"v_lshl_add_u32 v{t+10}, v{t+8}, 3, v{t+10}")
    A(f"v_add_u32 v{GWA}, {L_RING + 8192}, v{t+10}")
    A(f"v_lshl_add_u32 v{t+9}, v{t+12}, 2, v{t+9}")
    A(f"v_and_b32 v{t+10}, 32, v1")
    A(f"v_add_lshl_u32 v{GST}, v{t+9}, v{t+10}, 4")
    for r in range(ACC, ACC + 48): A(f"v_mov_b32 v{r}, 0")
    A("s_lshl2_add_u32 s33, s13, s15")
    A(f"s_lshl_b32 s40, s33, {FSH+3}")
    A("s_lshl_b32 s32, s33, 17" if not KVT else "s_lshl_b32 s32, s33, 12")
    A("s_lshl_b32 s38, s12, 12" if not KVT else "s_lshl_b32 s38, s12, 17")
    A("s_add_u32 s32, s32, s38")
    A("s_lshl_b32 s33, s33, 11")
    A("s_lshl_b32 s38, s12, 16")
    A("s_add_u32 s33, s33, s38")
    A(f"s_add_u32 s33, s33, {hex(F_Q)}")
    A(f"s_add_u32 s32, s32, {hex(F_KV)}")
    A(f"s_mov_b32 s38, {hex(QSCALE)}")
    A(f"s_mov_b32 s39, {hex(QSCALE)}")
    A(f"s_add_u32 s40, s40, {hex(F_F1)}")
    A("s_and_b32 s41, s12, 3")
    A("s_lshr_b32 s42, s12, 2")
    A("s_lshl3_add_u32 s41, s41, s42")
    A("s_mov_b32 s36, 4")

def gemm(A):
    gemm_setup(A)
    kgen_y(A)
    A("s_setprio 2")
    A("v_lshlrev_b32 v3, 4, v1")
    A("v_mov_b32 v8, 0")
    A("v_mov_b32 v9, 1")
    MORD = (1, 2, 0)
    def step(ks, st, par, mm=True, extra=None, late=()):
        b = SET[st]; c = SET[st ^ 1]; o = par * 32768
        rds = []
        for mat in MORD:
            for e in range(2):
                rds.append(f"ds_read_b64_tr_b16 {vr(b+16+4*mat+2*e,2)}, v{GWA} offset:{o + mat*8192 + ks*4096 + e*512}")
        for mt in range(4):
            rds.insert(4 + mt, f"ds_read_b128 {vr(b+4*mt,4)}, v{GX+ks} offset:{o + (mt&1)*512 + (mt>>1)*4096}")
        if OPT.get("nord"): rds = []
        if OPT.get("nomm"): mm = False
        if extra: rds.append(extra)
        per = int(OPT.get("rpm", 2))
        late = list(late)
        n = 0
        for mat in MORD:
            for mt in range(4):
                d = ACC + 16 * mat + 4 * mt
                x = c + 4 * mt; w = c + 16 + 4 * mat
                for t in rds[per*n:per*n+per]: A(t)
                if per * n >= len(rds) and late:
                    for t in late.pop(0): A(t)
                n += 1
                if mm: A(mfma16(d, x, w) if mat == 2 else mfma16(d, w, x))
        for g in late:
            for t in g: A(t)
    A("v_mov_b32 v2, 0")
    mark_wait(A, 2, L_MK, 4, 34, 35, sleep=1)
    tick(A, "c0")
    step(0, 0, 0, mm=False, extra=f"ds_read_b128 v[4:7], v2 offset:{L_MK + 16}")
    A("s_branch F_gl1")
    for par in range(2):
        A(f"F_gw{par}:")
        mark_wait(A, 2, L_MK + 16 * par, 4, 34, 35)
        A(f"s_branch F_gc{par}")
    A(".p2align 3")
    A("F_gl:")
    for par in range(2):
        A("s_cmp_eq_u32 s37, 0")
        A("s_waitcnt lgkmcnt(0)")
        if par == 1: bar(A)
        else: A("s_nop 0")
        A(f"s_cbranch_scc1 F_gw{par}")
        A(f"F_gc{par}:")
        if OPT.get("ltick"): tick(A, "c")
        step(0, 0, par, extra=f"ds_read_b128 v[4:7], v2 offset:{L_MK + 16 * (par + 1)}")
        if par == 0: A("F_gl1:")
        A("s_waitcnt lgkmcnt(0)")
        A("s_sub_u32 s36, s36, 1" if par == 0 else "s_cmp_lg_u32 s36, 0")
        late = [["v_min3_u32 v4, v4, v5, v6"], ["v_min_u32 v4, v4, v7", "s_nop 0"], ["v_readfirstlane_b32 s37, v4", "s_nop 0"]]
        if par == 1:
            late += [[f"v_xor_b32 v{r}, 0x10000, v{r}"] for r in (GX, GX + 1, GWA)] + [["v_add_u32 v2, 32, v2", "s_nop 0"]]
        step(1, 1, par, late=late)
    A("s_cbranch_scc1 F_gl")
    A("s_waitcnt lgkmcnt(0)")
    c = SET[1]
    muls = [f"v_mul_f32 v{r}, s38, v{r}" for r in range(ACC, ACC + 16)]
    for mat in (0, 1, 2):
        for mt in range(4):
            d = ACC + 16 * mat + 4 * mt
            x = c + 4 * mt; w = c + 16 + 4 * mat
            A(mfma16(d, x, w) if mat == 2 else mfma16(d, w, x))
            if mat == 2:
                A(muls.pop(0)); A(muls.pop(0))
    tick(A, "g_mm_end")
    pad(A, "gemmend")
    PK = 16
    def pack(mat, dst):
        for mt in range(4):
            d = ACC + 16 * mat + 4 * mt
            A(f"v_cvt_pk_bf16_f32 v{dst+2*mt}, v{d}, v{d+1}")
            A(f"v_cvt_pk_bf16_f32 v{dst+2*mt+1}, v{d+2}, v{d+3}")
    def swaps(dst):
        for gp in range(2):
            A(f"v_permlane16_swap_b32 v{dst+4*gp}, v{dst+4*gp+2}")
            A(f"v_permlane16_swap_b32 v{dst+4*gp+1}, v{dst+4*gp+3}")
    pack(1, PK)
    A(muls.pop(0))
    swaps(PK)
    for gp in range(2):
        A(f"buffer_store_dwordx4 {vr(PK+4*gp,4)}, v{GST}, s[24:27], s32 offen offset:{gp*2048} sc1")
    pack(2, PK + 8)
    for gp in range(2):
        A(f"buffer_store_dwordx4 {vr(PK+8+4*gp,4)}, v3, s[24:27], s32 offen offset:{gp*2048+1024} sc1")
    for t in muls: A(t)
    pack(0, PK + 16)
    A("s_nop 0")
    swaps(PK + 16)
    for gp in range(2):
        A(f"buffer_store_dwordx4 {vr(PK+16+4*gp,4)}, v{GST}, s[24:27], s33 offen offset:{gp*1024} sc1")
    lds_add1(A, 8, 9, C_FR)
    tick(A, "g_st")
    for t in conv_setup(A): A(t)
    attn_setup(A)
    A(f"v_lshlrev_b32 v7, {FSH}, v1")
    A("v_lshlrev_b32 v10, s41, v9")
    A("s_waitcnt vmcnt(0)")
    mask_set(A, 10, 7, 40, 8)
    tick(A, "signaled")

SA, SB, OA, OB, QA, QB = 16, 32, 96, 112, 64, 68
FS = [72, 84]
VIDX, VK, VV0, VV1 = 2, 0, 11, 12
YK, MT = 48, 60
RP = OPT.get("rp", "n")
def OR(r):
    z, a, e1, e0 = r >> 3, (r >> 2) & 1, (r >> 1) & 1, r & 1
    return {"n": r, "o": 8*a + 4*z + 2*e1 + e0, "e": 8*a + 4*e1 + 2*e0 + z, "t": 8*a + 4*e1 + 2*z + e0}[RP]
def pv(O, V, S):
    return f"v_smfmac_f32_32x32x32_bf16 {vr(O,16)}, {vr(V,4)}, {vr(S,8)}, v{VIDX}"

def attn_setup(A, mid=None):
    A("v_lshlrev_b32 v3, 4, v1")
    A("s_and_b32 s88, s11, 3")
    A("s_lshl2_add_u32 s88, s10, s88")
    A("s_lshr_b32 s89, s11, 2")
    A("s_and_b32 s90, s15, 3")
    A("s_lshr_b32 s91, s15, 2")
    A("s_lshl2_add_u32 s92, s89, s90")
    A("s_lshl_b32 s92, s92, 16")
    A("s_lshl_b32 s93, s88, 11")
    A("s_add_u32 s92, s92, s93")
    A(f"s_add_u32 s92, s92, {hex(F_Q)}")
    A(f"s_mul_i32 s93, s91, {32*KVS}")
    A(f"s_add_u32 s93, s93, {L_KV}")
    if RP == "n": A("v_and_b32 v7, 31, v1")
    else:
        src = {"o": (3, 4, 1, 0), "e": (0, 4, 3, 1), "t": (1, 4, 3, 0)}[RP]
        A("v_and_b32 v7, 4, v1")
        for sb, db in zip(src, (4, 3, 1, 0)):
            A(f"v_bfe_u32 v10, v1, {sb}, 1")
            A(f"v_lshl_or_b32 v7, v10, {db}, v7")
    A("v_lshrrev_b32 v10, 5, v1")
    A(f"v_add_u32 v{VK}, s93, v3")
    A("v_lshlrev_b32 v10, 8, v10")
    A("v_lshl_add_u32 v10, v7, 4, v10")
    A("v_add_u32 v10, 1024, v10")
    A(f"v_and_b32 v{VV0}, {31 if OPT.get('r16') else 27}, v7")
    A(f"v_cmp_eq_u32 vcc, 16, v{VV0}")
    A(f"v_mov_b32 v{VV1}, 2064")
    A(f"v_mov_b32 v{VV0}, 2048")
    A(f"v_cndmask_b32 v{VV1}, v{VV1}, v{VV0}, vcc")
    A("v_cmp_gt_u32 vcc, 16, v7")
    A("v_add_u32 v7, 512, v10")
    A(f"v_mov_b32 v{VIDX}, 0xdddddddd")
    A(f"v_cndmask_b32 v{VV0}, v{VV1}, v10, vcc")
    A(f"v_cndmask_b32 v{VV1}, v{VV1}, v7, vcc")
    A(f"v_add_u32 v{VV0}, s93, v{VV0}")
    A(f"v_add_u32 v{VV1}, s93, v{VV1}")
    if mid: mid()
    for O in (OA, OB):
        for r in range(9 if OPT.get("z9", "0") == "1" else 16): A(f"v_mov_b32 v{O+r}, 0")

def attention(A):
    A("v_lshlrev_b32 v7, 3, v1")
    A("s_lshl1_add_u32 s20, s2, s17")
    A("s_lshl_b32 s18, s20, 12")
    A(f"s_add_u32 s18, s18, {hex(F_YA)}")
    A("s_lshl_b32 s22, s16, 9")
    A("s_add_u32 s19, s18, s22")
    A("s_add_u32 s18, s18, 3584")
    A("s_sub_u32 s18, s18, s22")
    A("s_lshl_b32 s20, s20, 7")
    A(f"s_add_u32 s20, s20, {hex(F_YC)}")
    A("s_lshl_b32 s22, s16, 4")
    A("s_add_u32 s21, s20, s22")
    A("s_add_u32 s20, s20, 112")
    A("s_sub_u32 s20, s20, s22")
    def ystore():
        for k in range(2):
            A(f"buffer_store_dwordx2 {vr(YK+2*k,2)}, v7, s[24:27], s{18+k} offen sc1")
        A("s_mov_b32 exec_lo, 0")
        A("s_mov_b32 exec_hi, 0x80000000")
        for k in range(2):
            A(f"buffer_store_dwordx4 {vr(YK+4+4*k,4)}, v8, s[24:27], s{20+k} offen sc1")
        A("s_mov_b64 exec, -1")
    ym = OPT.get("ym", "2")
    if ym == "1":
        A("s_cmp_eq_u32 s91, 0")
        A("s_cbranch_scc1 F_ny")
        ystore()
        A("F_ny:")
    A("s_lshl_b32 s38, s90, 12")
    A(f"s_add_u32 s38, s38, {L_XCH}")
    A("v_add_u32 v10, s38, v3")
    A("s_lshl_b32 s38, s90, 9")
    A(f"s_add_u32 s38, s38, {L_LX}")
    A("v_lshl_add_u32 v5, v1, 2, s38")
    A("s_lshl_b32 s38, s90, 2")
    A("v_mov_b32 v13, s38")
    A("s_lshl2_add_u32 s40, s89, s90")
    A(f"s_lshl_b32 s40, s40, {FSH+3}")
    A(f"s_add_u32 s40, s40, {hex(F_F3)}")
    A("s_mov_b32 s42, 0x17800000")
    A("s_mov_b32 s43, 0x50000000")
    A("s_lshl_b32 s36, s90, 11")
    A("v_add_u32 v6, s36, v3")
    A("s_lshl_b32 s36, s91, 4")
    A("v_mov_b32 v4, s36")
    A("s_setprio 1")
    mark_wait(A, 4, L_S1, MT, 36, 37)
    A(f"ds_read_b128 {vr(QA,4)}, v6 offset:{L_Q}")
    A(f"ds_read_b128 {vr(FS[0],4)}, v{VK}")
    A(f"ds_read_b128 {vr(QB,4)}, v6 offset:{L_Q + 1024}")
    A(f"ds_read_b128 {vr(FS[0]+4,4)}, v{VV0}")
    if OPT.get("vm"):
        for b in (FS[0] + 8, FS[1] + 4, FS[1] + 8): A(f"ds_read_b128 {vr(b,4)}, v{VV0}")
        A("s_mov_b32 s94, 0xffff")
        A("s_mov_b32 s95, 0xffff")
        A("s_waitcnt lgkmcnt(0)")
    A("s_mov_b32 s36, 0")
    A("s_mov_b32 s37, 0")
    A("s_waitcnt lgkmcnt(2)")
    tick(A, "attn_go")
    pad(A, "attn")
    A(mfma32(SA, FS[0], QA, "0"))
    A("s_cmp_lg_u32 s36, 0")
    A("s_nop 7")
    A("s_nop 1")
    A("s_waitcnt lgkmcnt(0)")
    A(f"v_exp_f32 v{SA}, v{SA}")
    A(f"v_exp_f32 v{SA+1}, v{SA+1}")
    A("s_branch F_al1")
    def E(S, a, b):
        for i in range(a, b): A(f"v_exp_f32 v{S+i}, v{S+i}")
    A(".p2align 3")
    A("F_al:")
    A("s_sub_u32 s36, s36, 1")
    A("s_cmp_lg_u32 s36, 0")
    U = 4
    for t in range(U):
        cur, oth = FS[t & 1], FS[(t & 1) ^ 1]
        E(SA, 0, 2)
        A(pv(OB, oth + 8, SB + 8))
        if t == 0: A("F_al1:")
        if OPT.get("vm"):
            A(f"ds_read_b128 {vr(oth,4)}, v{VK} offset:{(t+1)*KVS}")
            E(SA, 2, 6)
            A(mfma32(SB, cur, QB, "0"))
            if t == U - 1: A(f"v_add_u32 v{VK}, {U*KVS}, v{VK}")
            E(SA, 6, 7)
            A("s_mov_b64 exec, s[94:95]")
            A(f"ds_read_b128 {vr(cur+8,4)}, v{VV0} offset:{t*KVS + 512}")
            A(f"ds_read_b128 {vr(oth+4,4)}, v{VV0} offset:{(t+1)*KVS}")
            if t == U - 1: A(f"v_add_u32 v{VV0}, {U*KVS}, v{VV0}")
            A("s_mov_b64 exec, -1")
        else:
            A(f"ds_read_b128 {vr(cur+8,4)}, v{VV1} offset:{t*KVS}")
            A(f"ds_read_b128 {vr(oth,4)}, v{VK} offset:{(t+1)*KVS}")
            E(SA, 2, 6)
            A(mfma32(SB, cur, QB, "0"))
            A(f"ds_read_b128 {vr(oth+4,4)}, v{VV0} offset:{(t+1)*KVS}")
            if t == U - 1:
                for r in (VK, VV0, VV1): A(f"v_add_u32 v{r}, {U*KVS}, v{r}")
        E(SA, 7 if OPT.get("vm") else 6, 12)
        A(pv(OA, cur + 4, SA))
        E(SA, 12, 16)
        A("s_waitcnt lgkmcnt(0)")
        E(SB, 0, 1)
        A(pv(OA, cur + 8, SA + 8))
        E(SB, 1, 5)
        A(mfma32(SA, oth, QA, "0"))
        E(SB, 5, 11)
        A(pv(OB, cur + 4, SB))
        A(f"v_exp_f32_e64 v{SB+11}, v{SB+11}")
        E(SB, 12, 16)
    A("s_cbranch_scc1 F_al")
    A("s_add_u32 s37, s37, 1")
    A("s_cmp_eq_u32 s37, 4")
    A("s_cbranch_scc1 F_aend")
    A("s_cmp_eq_u32 s37, 1")
    A("s_cbranch_scc0 F_ev2")
    tick(A, "it1")
    A(f"ds_read_b128 {vr(MT,4)}, v8 offset:{L_S3}")
    if ym == "1":
        A("s_cmp_eq_u32 s91, 0")
        A("s_cbranch_scc1 F_ev0")
        A("s_waitcnt vmcnt(0)")
        lds_add1(A, 8, 9, C_YA2)
        A("s_branch F_ev1")
        A("F_ev0:")
        ystore()
    else:
        ystore()
        A("s_cmp_eq_u32 s91, 0")
        A("s_cbranch_scc1 F_ev1")
        A("s_waitcnt vmcnt(0)")
        lds_add1(A, 8, 9, C_YA2)
    A("F_ev1:")
    A("s_waitcnt lgkmcnt(0)")
    A(f"v_min3_u32 v{MT}, v{MT}, v{MT+1}, v{MT+2}")
    A(f"v_min_u32 v{MT}, v{MT}, v{MT+3}")
    A("s_mov_b32 s36, 6")
    A(f"v_readfirstlane_b32 s38, v{MT}")
    A("s_mov_b32 s37, 2")
    A("s_cmp_lg_u32 s38, 0")
    A("s_cbranch_scc1 F_al")
    mark_wait(A, 8, L_S2, MT, 38, 39, sleep=1)
    A("s_mov_b32 s36, 4")
    A("s_mov_b32 s37, 1")
    A("s_branch F_al")
    A("F_ev2:")
    A("s_cmp_eq_u32 s37, 2")
    A("s_cbranch_scc0 F_ev3")
    mark_wait(A, 8, L_S3, MT, 38, 39, sleep=1)
    A("s_mov_b32 s36, 2")
    A("s_branch F_al")
    A("F_ev3:")
    tick(A, "it7")
    A("s_setprio 0")
    A("s_mov_b32 s36, 1")
    A("s_cmp_eq_u32 s91, 0")
    A("s_cbranch_scc0 F_al")
    A("s_waitcnt vmcnt(0)")
    lds_add1(A, 8, 9, C_FREE)
    A("s_branch F_al")
    A("F_x0:")
    lds_wait(A, 8, C_FREE, 4, 6, 38, 39)
    if RP in "no":
        A(f"ds_write_b128 v10, {vr(OA,4)}")
        A(f"ds_write_b128 v10, {vr(OA+OR(4),4)} offset:1024")
        A("s_nop 1")
        A(f"ds_write_b128 v10, {vr(OB,4)} offset:2048")
        A(f"ds_write_b128 v10, {vr(OB+OR(4),4)} offset:3072")
    else:
        for r in range(8): A(f"v_mov_b32 v{YK+r}, v{OA+OR(r)}")
        for r in range(8): A(f"v_mov_b32 v{YK+8+r}, v{OB+OR(r)}")
        for q in range(4): A(f"ds_write_b128 v10, {vr(YK+4*q,4)} offset:{q*1024}")
    A(f"ds_write2st64_b32 v5, v{OA+OR(8)}, v{OB+OR(8)} offset0:0 offset1:1")
    lds_add1(A, 13, 9, C_PAIR)
    A("s_waitcnt lgkmcnt(0)")
    dump(A)
    A("s_endpgm")
    A("F_aend:")
    tick(A, "it8")
    A(pv(OB, FS[1] + 8, SB + 8))
    A("s_cmp_eq_u32 s91, 0")
    A("s_cbranch_scc1 F_x0")
    A("F_mg:")
    A(f"ds_read_b32 v14, v13 offset:{C_PAIR}")
    A("ds_read2st64_b32 v[6:7], v5 offset0:0 offset1:1")
    for q in range(4): A(f"ds_read_b128 {vr(YK+4*q,4)}, v10 offset:{q*1024}")
    A("s_add_u32 s36, s36, 1")
    A("s_waitcnt lgkmcnt(2)")
    A("v_readfirstlane_b32 s41, v14")
    A(f"s_cmp_lt_u32 s36, {hex(SPIN * 8)}")
    A("s_cselect_b32 s41, s41, 1")
    A("s_cmp_eq_u32 s41, 0")
    A("s_cbranch_scc1 F_mg")
    A(f"v_add_f32 v{OA+OR(8)}, v{OA+OR(8)}, v6")
    A(f"v_add_f32 v{OB+OR(8)}, v{OB+OR(8)}, v7")
    if OPT.get("r16"):
        A(f"v_mov_b32 v6, v{OA+OR(8)}")
        A(f"v_mov_b32 v7, v{OB+OR(8)}")
        A("s_nop 0")
        A(f"v_permlane32_swap_b32 v{OA+OR(8)}, v6")
        A(f"v_permlane32_swap_b32 v{OB+OR(8)}, v7")
    A(f"v_rcp_f32 v6, v{OA+OR(8)}")
    A(f"v_rcp_f32 v14, v{OB+OR(8)}")
    for r in range(8): A(f"v_add_f32 v{OA+OR(r)}, v{OA+OR(r)}, v{YK+r}")
    for r in range(8): A(f"v_mul_f32 v{OA+OR(r)}, v{OA+OR(r)}, v6")
    for p in range(4): A(f"v_cvt_pk_bf16_f32 v{SB+p}, v{OA+OR(2*p)}, v{OA+OR(2*p+1)}")
    A(f"buffer_store_dwordx4 {vr(SB,4)}, v3, s[24:27], s92 offen sc1")
    A("s_waitcnt lgkmcnt(0)")
    for r in range(8): A(f"v_add_f32 v{OB+OR(r)}, v{OB+OR(r)}, v{YK+8+r}")
    for r in range(8): A(f"v_mul_f32 v{OB+OR(r)}, v{OB+OR(r)}, v14")
    for p in range(4): A(f"v_cvt_pk_bf16_f32 v{SB+4+p}, v{OB+OR(2*p)}, v{OB+OR(2*p+1)}")
    A(f"buffer_store_dwordx4 {vr(SB+4,4)}, v3, s[24:27], s92 offen offset:1024 sc1")
    tick(A, "o_st")
    if OPT.get("eb", "2") == "1": A("s_barrier")
    for r in range(8):
        A(f"v_fma_f32 v{OA+OR(8)}, v{OA+OR(r)}, 0, v{OA+OR(8)}")
        A(f"v_fma_f32 v{OB+OR(8)}, v{OB+OR(r)}, 0, v{OB+OR(8)}")
    A(f"v_subrev_u32 v7, s42, v{OA+OR(8)}")
    A(f"v_subrev_u32 v6, s42, v{OB+OR(8)}")
    A("v_max_u32 v7, v7, v6")
    A("v_cmp_gt_u32 vcc, s43, v7")
    A("s_nop 0")
    A("s_cmp_eq_u64 vcc, -1")
    A("s_cbranch_scc0 F_slow")
    A("F_pub:")
    pad(A, "ostore")
    A(f"v_lshlrev_b32 v7, {FSH}, v1")
    A("v_lshlrev_b32 v6, s88, v9")
    A("s_waitcnt vmcnt(0)")
    mask_set(A, 6, 7, 40, 8)
    tick(A, "o_fl")
    if OPT.get("eb", "2") == "2": A("s_barrier")
    dump(A, nowait=True)
    A("s_endpgm")
    A("F_slow:")
    A("s_mov_b32 s37, 2")
    A("F_slow0:")
    A("s_lshl_b32 s35, s88, 12")
    A(f"s_add_u32 s35, s35, {hex(F_KV)}")
    A("v_mov_b32 v6, 0xff800000")
    A("s_mov_b32 s36, s35")
    A("s_mov_b32 s41, 64")
    A("F_slow1:")
    A(f"buffer_load_dwordx4 {vr(FS[0],4)}, v3, s[24:27], s36 offen sc1")
    A("s_bitcmp1_b32 s41, 0")
    A(f"s_cselect_b32 s38, {hex(131072 - 4096)}, 0")
    A("s_add_u32 s36, s36, s38")
    A("s_add_u32 s36, s36, 2048")
    A("s_waitcnt vmcnt(0)")
    A(mfma32(SA, FS[0], QA, "0"))
    A("s_nop 7")
    A("s_nop 3")
    for r in range(0, 16, 2): A(f"v_max3_f32 v6, v6, v{SA+r}, v{SA+r+1}")
    A("s_sub_u32 s41, s41, 1")
    A("s_cmp_lg_u32 s41, 0")
    A("s_cbranch_scc1 F_slow1")
    A("v_mov_b32 v13, v6")
    A("s_nop 1")
    A("v_permlane32_swap_b32 v6, v13")
    A("s_nop 1")
    A("v_max_f32 v14, v6, v13")
    for r in range(16): A(f"v_mov_b32 v{OA+r}, 0")
    for r in range(4, 12): A(f"v_mov_b32 v{FS[0]+r}, 0x3f803f80")
    A("v_and_b32 v10, 15, v1")
    A("v_lshrrev_b32 v5, 5, v1")
    A("v_lshlrev_b32 v5, 8, v5")
    A("v_lshl_add_u32 v10, v10, 4, v5")
    A("s_mov_b32 s41, 64")
    A("F_slow2:")
    A(f"buffer_load_dwordx4 {vr(FS[0],4)}, v3, s[24:27], s35 offen sc1")
    A("s_mov_b32 exec_lo, 0xffff")
    A("s_mov_b32 exec_hi, 0xffff")
    A(f"buffer_load_dwordx4 {vr(FS[0]+4,4)}, v10, s[24:27], s35 offen offset:1024 sc1")
    A(f"buffer_load_dwordx4 {vr(FS[0]+8,4)}, v10, s[24:27], s35 offen offset:1536 sc1")
    A("s_mov_b64 exec, -1")
    A("s_bitcmp1_b32 s41, 0")
    A(f"s_cselect_b32 s38, {hex(131072 - 4096)}, 0")
    A("s_add_u32 s35, s35, s38")
    A("s_add_u32 s35, s35, 2048")
    A("s_waitcnt vmcnt(0)")
    A(mfma32(SA, FS[0], QA, "0"))
    A("s_nop 7")
    A("s_nop 3")
    for r in range(16): A(f"v_sub_f32 v{SA+r}, v{SA+r}, v14")
    for r in range(16): A(f"v_exp_f32 v{SA+r}, v{SA+r}")
    A("s_nop 1")
    A(pv(OA, FS[0] + 4, SA))
    A(pv(OA, FS[0] + 8, SA + 8))
    A("s_sub_u32 s41, s41, 1")
    A("s_cmp_lg_u32 s41, 0")
    A("s_nop 7")
    A("s_nop 3")
    A("s_cbranch_scc1 F_slow2")
    A(f"v_rcp_f32 v6, v{OA+8}")
    for r in range(4): A(f"v_mov_b32 v{QA+r}, v{QB+r}")
    for r in range(8): A(f"v_mul_f32 v{OA+r}, v{OA+r}, v6")
    for p in range(4): A(f"v_cvt_pk_bf16_f32 v{SB+p}, v{OA+2*p}, v{OA+2*p+1}")
    A(f"buffer_store_dwordx4 {vr(SB,4)}, v3, s[24:27], s92 offen sc1")
    A("s_add_u32 s92, s92, 1024")
    A("s_sub_u32 s37, s37, 1")
    A("s_cmp_lg_u32 s37, 0")
    A("s_cbranch_scc1 F_slow0")
    A("s_branch F_pub")
```
